```python
import torch

def _softmax(x, axis=-1):
    return torch.softmax(x, dim=axis)
def _gelu(x):
    return torch.nn.functional.gelu(x, approximate="tanh")
def _silu(x):
    return torch.nn.functional.silu(x)
def _sigmoid(x):
    return torch.sigmoid(x)
def _layernorm(x, axis=-1, eps=1e-5):
    m = x.mean(dim=axis, keepdim=True)
    v = x.var(dim=axis, keepdim=True, unbiased=False)
    return (x - m) / torch.sqrt(v + eps)
def _scatter_add(tgt, idx, src, axis=0):
    return tgt.clone().index_add_(axis, idx, src)
def _segment_sum(src, seg, n):
    out = torch.zeros((n,) + src.shape[1:], dtype=src.dtype)
    return out.index_add_(0, seg, src)
def _pad(x, pw):
    flat = tuple(v for pair in reversed(pw) for v in pair)
    return torch.nn.functional.pad(x, flat)

kernel_name = 'gated_mix__mha_block_cached__swiglu_ffn__decode'

def setup_inputs():

    _w = (lambda a: (lambda t: t.to(torch.bfloat16) if t.is_floating_point() else t)(torch.as_tensor(a)))
    def _A_setup():
        B, Sq, D = 4, 1, 640
        H, Sk, Dh = 32, 4096, 128
        return {
            "x": _w((lambda *s: torch.randn(*s, dtype=torch.bfloat16) * 0.05)(B, Sq, D)),
            "k_cache": _w((lambda *s: torch.randn(*s, dtype=torch.bfloat16) * 6.4)(B, H, Sk, Dh)),
            "v_cache": _w((lambda *s: torch.randn(*s, dtype=torch.bfloat16) * 0.2)(B, H, Sk, Dh)),
            "wq": _w((lambda *s: torch.randn(*s, dtype=torch.bfloat16) * 6.4)(D, H * Dh) * (D ** -0.5)),
            "wo": _w((lambda *s: torch.randn(*s, dtype=torch.bfloat16) * 0.2)(H * Dh, D) * ((H * Dh) ** -0.5)),
        }
    _A_in = _A_setup()

    def _B_setup():
        B, S, D, F = 4, 1, 640, 1728
        return {
            "x": _w((lambda *s: torch.randn(*s, dtype=torch.bfloat16) * 0.05)(B, S, D)),
            "w_gate": _w((lambda *s: torch.randn(*s, dtype=torch.bfloat16) * 0.05)(D, F)),
            "w_up": _w((lambda *s: torch.randn(*s, dtype=torch.bfloat16) * 0.05)(D, F)),
            "w_down": _w((lambda *s: torch.randn(*s, dtype=torch.bfloat16) * 0.05)(F, D)),
        }
    _B_in = _B_setup()

    return {
        "A_x": _A_in["x"],
        "A_k_cache": _A_in["k_cache"],
        "A_v_cache": _A_in["v_cache"],
        "A_wq": _A_in["wq"],
        "A_wo": _A_in["wo"],
        "B_x": _B_in["x"],
        "B_w_gate": _B_in["w_gate"],
        "B_w_up": _B_in["w_up"],
        "B_w_down": _B_in["w_down"],
        "gate_w": _w((lambda *s: torch.randn(*s, dtype=torch.bfloat16) * 0.05)(640) * 16.0),
    }

def reference(A_x, A_k_cache, A_v_cache, A_wq, A_wo, B_x, B_w_gate, B_w_up, B_w_down, gate_w):
    def _A_ref(x, k_cache, v_cache, wq, wo):
        B, Sq, D = x.shape
        H, Dh = 32, 128
        q = (lambda x, *d: x.permute(*d))((x @ wq).reshape(B, Sq, H, Dh), 0, 2, 1, 3)
        scores = torch.einsum("bhqd,bhkd->bhqk", q, k_cache) * (Dh ** -0.5)
        p = _softmax(scores, axis=-1)
        o = torch.einsum("bhqk,bhkd->bhqd", p, v_cache)
        return (lambda x, *d: x.permute(*d))(o, 0, 2, 1, 3).reshape(B, Sq, H * Dh) @ wo

    def _B_ref(x, w_gate, w_up, w_down):
        g = _silu(x @ w_gate)
        u = x @ w_up
        return (g * u) @ w_down

    x = A_x
    g = _sigmoid((x * gate_w).sum(-1, keepdims=True))
    a = _A_ref(x, A_k_cache, A_v_cache, A_wq, A_wo)
    b = _B_ref(x, B_w_gate, B_w_up, B_w_down)
    return g * a + (1 - g) * b
```

```python
import re

TRANS = ("v_exp_f32", "v_log_f32", "v_rcp_f32", "v_rsq_f32", "v_sqrt_f32", "v_sin_f32", "v_cos_f32")

def parse_reg(tok):
    tok = tok.strip()
    neg = tok.startswith("-")
    if neg: tok = tok[1:]
    if tok.startswith("abs(") or tok.startswith("|"):
        tok = tok.replace("abs(", "").replace(")", "").replace("|", "")
    m = re.fullmatch(r"([vsa])(\d+)", tok)
    if m: return [(m.group(1), int(m.group(2)))]
    m = re.fullmatch(r"([vsa])\[(\d+):(\d+)\]", tok)
    if m: return [(m.group(1), i) for i in range(int(m.group(2)), int(m.group(3)) + 1)]
    if tok == "vcc": return [("s", "vcc")]
    if tok in ("vcc_lo", "vcc_hi"): return [("s", "vcc")]
    if tok in ("exec", "exec_lo", "exec_hi"): return [("s", "exec")]
    if tok == "m0": return [("s", "m0")]
    return []

class Ins:
    def __init__(self, text):
        self.text = text
        t = text.split(";")[0].strip()
        self.label = t.endswith(":")
        self.directive = t.startswith(".")
        self.op = t.split()[0] if t else ""
        rest = t[len(self.op):].strip()
        ops = []; depth = 0; cur = ""
        for ch in rest:
            if ch == "[": depth += 1
            if ch == "]": depth -= 1
            if ch == "," and depth == 0: ops.append(cur.strip()); cur = ""
            else: cur += ch
        if cur.strip(): ops.append(cur.strip())
        self.mods = ""
        if ops:
            parts = ops[-1].split()
            ops[-1] = parts[0]; self.mods = " ".join(parts[1:])
        self.ops = ops
        op = self.op
        self.is_mfma = op.startswith("v_mfma")
        self.is_valu = op.startswith("v_") and not self.is_mfma
        self.is_salu = op.startswith("s_") and not op.startswith(("s_waitcnt", "s_nop", "s_barrier", "s_branch", "s_cbranch", "s_endpgm", "s_sleep", "s_load", "s_setprio", "s_memtime", "s_memrealtime"))
        self.is_vmem = op.startswith(("buffer_", "global_", "flat_"))
        self.is_ds = op.startswith("ds_")
        self.is_dpp = self.is_valu and ("_dpp" in op or any(k in self.mods for k in ("row_", "quad_perm")))
        self.is_trans = any(op.startswith(x) for x in TRANS)
        self.is_dot = op.startswith("v_dot")
        self.is_lane = op.startswith(("v_readlane", "v_readfirstlane"))
        self.is_permlane = op.startswith("v_permlane")
        self.w = []; self.r = []
        R = lambda i: parse_reg(ops[i]) if i < len(ops) else []
        if self.is_mfma:
            self.w = R(0); self.ra = R(1); self.rb = R(2); self.rc = R(3); self.r = self.ra + self.rb + self.rc
        elif self.is_valu:
            if op.startswith("v_cmp"):
                self.w = R(0); self.r = sum((R(i) for i in range(1, len(ops))), [])
            elif op.startswith(("v_add_co", "v_sub_co", "v_addc_co", "v_subb_co", "v_subrev_co")):
                self.w = R(0) + R(1); self.r = sum((R(i) for i in range(2, len(ops))), [])
            elif self.is_permlane and "swap" in op:
                self.w = R(0) + R(1); self.r = R(0) + R(1)
            else:
                self.w = R(0); self.r = sum((R(i) for i in range(1, len(ops))), [])
                if op.startswith(("v_fmac", "v_dot2c", "v_writelane")) or self.is_dpp: self.r += R(0)
                if op.startswith("v_cndmask") and len(ops) == 3: self.r += [("s", "vcc")]
        elif self.is_vmem:
            if "load" in op and "lds" not in self.mods.split() and "_lds_" not in op:
                self.w = R(0); self.r = sum((R(i) for i in range(1, len(ops))), [])
            elif "atomic" in op and "sc0" in self.mods.split() and op.startswith("global") and len(ops) == 4:
                self.w = R(0); self.r = sum((R(i) for i in range(1, len(ops))), [])
            else:
                self.r = sum((R(i) for i in range(0, len(ops))), [])
            self.is_wide_store = ("store" in op) and op.endswith(("x3", "x4"))
            if self.is_wide_store:
                self.sdata = R(0) if op.startswith("buffer") else R(1)
        elif self.is_ds:
            if op.startswith(("ds_read", "ds_bpermute", "ds_permute", "ds_swizzle")) or "_rtn" in op:
                self.w = R(0); self.r = sum((R(i) for i in range(1, len(ops))), [])
            else:
                self.r = sum((R(i) for i in range(0, len(ops))), [])
        elif self.is_salu:
            if op.startswith(("s_cmp", "s_bitcmp")):
                self.r = sum((R(i) for i in range(0, len(ops))), [])
            else:
                self.w = R(0); self.r = sum((R(i) for i in range(1, len(ops))), [])
        self.states = 1
        if op == "s_nop": self.states = int(ops[0], 0) + 1

def need(p, c):
    n = 0
    pw = set(p.w)
    pv = {x for x in pw if x[0] in "va"}
    ps = {x for x in pw if x[0] == "s"}
    cr = set(c.r); cw = set(c.w)
    if p.is_valu:
        if pv & cr:
            if c.is_dpp: n = max(n, 2)
            if c.is_mfma: n = max(n, 2)
            if c.is_lane: n = max(n, 1)
            if c.is_permlane: n = max(n, 2)
            if p.is_trans and (c.is_valu or c.is_mfma): n = max(n, 1)
            if p.is_dot:
                if c.is_dot and c.op == p.op:
                    ab = set(parse_reg(c.ops[1]) + parse_reg(c.ops[2]))
                    if pv & ab: n = max(n, 3)
                else: n = max(n, 3)
        if p.is_dot and (pv & cw) and not (c.is_dot and c.op == p.op): n = max(n, 3)
        if ps & cr:
            if c.is_valu or c.is_mfma:
                n = max(n, 4 if c.is_lane and len(c.ops) > 2 and set(parse_reg(c.ops[2])) & ps else 2)
            if c.is_vmem: n = max(n, 5)
            if ("s", "exec") in ps and c.is_dpp: n = max(n, 5)
    if p.is_mfma:
        passes = 8 if "32x32" in p.op else 4
        big = {4: 8, 8: 12}[passes]; ovl = {4: 6, 8: 10}[passes]
        if c.is_mfma:
            if pv & (set(c.ra) | set(c.rb)): n = max(n, big)
            if pv & set(c.rc):
                if set(c.rc) == pv and p.op == c.op: pass
                else: n = max(n, ovl)
            elif pv & cw: n = max(n, ovl)
        elif c.is_valu or c.is_vmem or c.is_ds:
            if pv & (cr | cw): n = max(n, big)
        if c.is_valu and (set(p.rc) & cw): n = max(n, {4: 3, 8: 7}[passes])
    if p.is_vmem and getattr(p, "is_wide_store", False):
        if set(p.sdata) & cw: n = max(n, 2 if c.is_valu else 1)
    if p.is_salu and ("s", "m0") in ps and c.is_vmem and ("lds" in c.mods.split() or "_lds_" in c.op): n = max(n, 1)
    return n

class Asm:
    def __init__(self):
        self.lines = []
    def __call__(self, s):
        for l in s.split("\n"):
            l = l.strip()
            if l: self.lines.append(l)
    def finalize(self, window=24):
        out = []; hist = []
        nn = 0
        for l in self.lines:
            if l.startswith((";", ".")) or not l.split(";")[0].strip():
                out.append(l); continue
            c = Ins(l)
            if c.label:
                out.append(l); continue
            dist = 0; pad = 0
            for p in reversed(hist[-window:]):
                req = need(p, c)
                if req > dist: pad = max(pad, req - dist)
                dist += p.states
                if dist >= 20: break
            while pad > 0:
                k = min(pad, 16)
                nop = Ins(f"s_nop {k-1}"); out.append(nop.text); hist.append(nop); pad -= k; nn += 1
            out.append(l); hist.append(c)
        self.nops_inserted = nn
        return "\n".join(out) + "\n"
```

```python
import sys, struct
sys.path.insert(0, "gen")
from asmb import Asm
NAME = "gated_mix__mha_block_cached__swiglu_ffn__decode"
def f2u(x): return struct.unpack("<I", struct.pack("<f", x))[0]
LOG2E = 1.4426950408889634
CSC = LOG2E / (128 ** 0.5)
CNTK = 0; CNTH = 4; SCRDY = 8; QRDY = 12; NONCE = 32
ST = 40; SCALE = 72
QB = 128; HB = 512; OB = 1024; YS = 2048; OP = 4096; FS = 6144
GP = 8192; WOL = 16384; YP2 = 49152
XL = 49152 + 16384
GWL = XL + 5120
LDS_BYTES = GWL + 1280
SX = 0; QX = 0x10000; FX = 0x50000; FY = 0x90000; OX = 0xE0000; YX = 0x100000
NFFN = 108; FFN0 = 20
SPIN = 200000
class VMQ:
    def __init__(self, A): self.q = []; self.A = A
    def issue(self, tag):
        self.q.append(tag); assert len(self.q) <= 63, len(self.q)
    def wait(self, tag):
        if tag not in self.q: return
        idx = self.q.index(tag); n = len(self.q) - 1 - idx
        self.A(f"s_waitcnt vmcnt({n})"); self.q = self.q[idx + 1:]

def gen(opt=None):
    opt = opt or {}
    KVF = opt.get("kvflags", "nt"); WF = opt.get("wflags", "nt")
    stamps = opt.get("stamps", False); FINE = opt.get("fine", False)
    NSLEEP = int(opt.get("nsleep", 10)); QSLEEP = int(opt.get("qsleep", 16))
    WK = int(opt.get("wk", 32)); WV = int(opt.get("wv", 48))
    BP = int(opt.get("bp", 2))
    FSTOP = int(opt.get("fstop", 0))
    OSL = int(opt.get("osl", 1)); FSL = int(opt.get("fsl", 48))
    A = Asm()
    A(f"; @launch grid=(256,1,1) block=(512,1,1) lds={LDS_BYTES}")
    A('.amdgcn_target "amdgcn-amd-amdhsa--gfx950"')
    A(".text"); A(f".globl {NAME}_kernel"); A(".p2align 8"); A(f".type {NAME}_kernel,@function"); A(f"{NAME}_kernel:")
    vG, vC = 34, 35
    SELL, SELH = 16, 20
    M = 36; Q = 40
    uid = [0]
    def U(): uid[0] += 1; return uid[0]
    def v4(r): return f"v[{r}:{r+3}]"
    def stamp(i):
        if stamps: A(f"s_memrealtime s[{80+2*i}:{81+2*i}]")
    def store_stamps(n):
        if not stamps: return
        A("""
        s_waitcnt lgkmcnt(0)
        s_lshl_b32 s8, s2, 10
        s_lshl_b32 s9, s3, 7
        s_add_u32 s8, s8, s9
        s_add_u32 s8, s8, 0x2000000
        v_mov_b32 v44, s8
        s_mov_b64 exec, 1
        """)
        for i in range(n):
            A(f"v_mov_b32 v45, s{80+2*i}"); A(f"global_store_dword v44, v45, s[40:41] offset:{4*i}"); A("s_nop 0")
        A("s_getreg_b32 s9, hwreg(HW_REG_XCC_ID)"); A("v_mov_b32 v45, s9"); A("global_store_dword v44, v45, s[40:41] offset:120")
        A("s_mov_b64 exec, -1")
    def lds_spin(off, cond, sleep, val=None):
        t = U()
        A(f"""
        v_mov_b32 v44, 0
        s_mov_b32 s73, {SPIN}
        L_sp{t}:
        ds_read_b32 v45, v44 offset:{off}
        s_waitcnt lgkmcnt(0)
        v_readfirstlane_b32 s8, v45
        """)
        if cond == "nz": A("s_cmp_lg_u32 s8, 0")
        else: A(f"s_cmp_ge_u32 s8, {val}")
        A(f"""
        s_cbranch_scc1 L_sp{t}_ok
        s_sleep {sleep}
        s_sub_u32 s73, s73, 1
        s_cbranch_scc0 L_sp{t}
        L_sp{t}_ok:
        """)
    def hbarrier(n, sleep=1):
        A(f"""
        s_waitcnt lgkmcnt(0)
        v_mov_b32 v44, 0
        v_mov_b32 v45, 1
        s_mov_b64 exec, 1
        ds_add_u32 v44, v45 offset:{CNTH}
        s_mov_b64 exec, -1
        """)
        lds_spin(CNTH, "ge", sleep, 4 * n)
    def perms(xreg, hi, aset):
        sel = SELH if hi else SELL
        for r in range(4): A(f"v_perm_b32 v{aset+r}, v{xreg}, v{xreg}, v{sel+r}")
    def pk(d, a, b): A(f"v_pk_add_f32 v[{d}:{d+1}], v[{a}:{a+1}], v[{b}:{b+1}]")
    def mfma(d, a, b, c): A(f"v_mfma_f32_16x16x32_bf16 {v4(d)}, {v4(a)}, {v4(b)}, {c}")
    def rowreduce(op, reg):
        A(f"{op}_dpp v{reg}, v{reg}, v{reg} row_ror:8 row_mask:0xf bank_mask:0xf")
        A(f"{op}_dpp v{reg}, v{reg}, v{reg} row_ror:4 row_mask:0xf bank_mask:0xf")
        A(f"{op}_dpp v{reg}, v{reg}, v{reg} quad_perm:[2,3,0,1] row_mask:0xf bank_mask:0xf")
        A(f"{op}_dpp v{reg}, v{reg}, v{reg} quad_perm:[1,0,3,2] row_mask:0xf bank_mask:0xf")
    def wavereduce(op, reg):
        rowreduce(op, reg)
        for k in range(4): A(f"v_readlane_b32 s{8+k}, v{reg}, {16*k}")
        A(f"v_mov_b32 v{reg}, s8")
        for k in range(1, 4): A(f"{op} v{reg}, s{8+k}, v{reg}")
    def check_tags(tags, okl):
        A(f"v_cmp_ne_u32 s[78:79], s74, v{tags[0]}")
        for t in tags[1:]:
            A(f"v_cmp_ne_u32 vcc, s74, v{t}")
            A("s_or_b64 s[78:79], s[78:79], vcc")
        A("s_cmp_eq_u64 s[78:79], 0")
        A(f"s_cbranch_scc1 {okl}")
    TG = 28
    def tag4(d, tg=TG):
        for k in range(4): A(f"v_and_or_b32 v{d+k}, v{d+k}, s75x, v{tg+k}".replace("s75x", "s14"))
    def settags(nonce_v, tg):
        A("s_mov_b32 s14, 0xffffff00")
        A(f"v_and_b32 v{tg}, 0xff, v{nonce_v}")
        for k in range(1, 4): A(f"v_bfe_u32 v{tg+k}, v{nonce_v}, {8*k}, 8")
    def chk4(quads, okl, tmp=44):
        A("s_mov_b32 s12, 0x0c0c0400"); A("s_mov_b32 s13, 0x04000c0c")
        for i, d in enumerate(quads):
            A(f"v_perm_b32 v{tmp}, v{d+1}, v{d}, s12")
            A(f"v_perm_b32 v{tmp+1}, v{d+3}, v{d+2}, s13")
            A(f"v_or_b32 v{tmp}, v{tmp}, v{tmp+1}")
            if i == 0: A(f"v_cmp_ne_u32 s[78:79], s74, v{tmp}")
            else:
                A(f"v_cmp_ne_u32 vcc, s74, v{tmp}"); A("s_or_b64 s[78:79], s[78:79], vcc")
        A("s_cmp_eq_u64 s[78:79], 0"); A(f"s_cbranch_scc1 {okl}")
    def probe(addr_v, mask, sleep):
        t = U()
        A(f"""
        s_mov_b32 s73, {SPIN}
        s_and_b32 s15, s74, 0xff
        s_mov_b64 exec, {mask:#x}
        L_pr{t}:
        global_load_dword v45, v{addr_v}, s[40:41] sc1
        s_waitcnt vmcnt(0)
        v_and_b32 v45, 0xff, v45
        v_cmp_ne_u32 vcc, s15, v45
        s_cmp_eq_u64 vcc, 0
        s_cbranch_scc1 L_pr{t}_ok
        s_sleep {sleep}
        s_sub_u32 s73, s73, 1
        s_cbranch_scc0 L_pr{t}
        L_pr{t}_ok:
        s_mov_b64 exec, -1
        """)

    A("""
    s_cmp_ge_u32 s2, 256
    s_cbranch_scc1 L_end
    s_load_dwordx16 s[16:31], s[0:1], 0
    s_load_dwordx8 s[32:39], s[0:1], 64
    s_load_dwordx2 s[40:41], s[0:1], 96
    """)
    stamp(0)
    if stamps and opt.get("clk"): A("s_memtime s[100:101]")
    A(f"""
    v_lshrrev_b32 v3, 6, v0
    v_and_b32 v1, 63, v0
    v_readfirstlane_b32 s3, v3
    v_mov_b32 v4, 0
    v_mov_b32 v5, 0
    v_mov_b32 v6, 0
    v_mov_b32 v7, 0
    s_cmp_eq_u32 s3, 4
    s_cbranch_scc0 L_noz
    s_mov_b64 exec, 1
    ds_write_b128 v4, v[4:7] offset:0
    s_mov_b64 exec, -1
    L_noz:
    s_lshr_b32 s8, s2, 1
    s_xor_b32 s9, s8, s2
    s_and_b32 s9, s9, 1
    s_and_b32 s6, s8, 1
    s_lshr_b32 s8, s2, 2
    s_lshl_b32 s8, s8, 1
    s_add_u32 s7, s8, s9
    s_and_b32 s4, s7, 31
    s_lshr_b32 s5, s7, 5
    v_lshrrev_b32 v{vG}, 4, v1
    v_and_b32 v{vC}, 15, v1
    s_cmp_ge_u32 s3, 4
    s_cbranch_scc1 L_H
    """)
    A(f"""
    s_lshl_b32 s9, s3, 12
    v_lshlrev_b32 v2, 4, v1
    v_add_u32 v2, s9, v2
    s_lshl_b32 s8, s7, 20
    s_cmp_eq_u32 s6, 0
    s_cselect_b32 s64, 0, {63*16384}
    s_mov_b32 s9, 16384
    s_cselect_b32 s43, s9, {(-16384) & 0xffffffff:#x}
    s_waitcnt lgkmcnt(0)
    s_add_u32 s52, s18, s8
    s_addc_u32 s53, s19, 0
    s_and_b32 s53, s53, 0xffff
    s_mov_b32 s54, 0x100000
    s_mov_b32 s55, 0x20000
    s_add_u32 s56, s20, s8
    s_addc_u32 s57, s21, 0
    s_and_b32 s57, s57, 0xffff
    s_mov_b32 s58, 0x100000
    s_mov_b32 s59, 0x20000
    s_mov_b32 s65, s64
    s_barrier
    """)
    vq = VMQ(A)
    def slot(sl): return 128 + 4 * sl if sl < 32 else 64 + 4 * (sl - 32)
    def kslot(i): return slot(i % WK)
    def kload(i):
        if i % 4 == 0 and i > 0: A("s_add_u32 s65, s65, s43")
        A(f"buffer_load_dwordx4 {v4(kslot(i))}, v2, s[52:55], s65 offen offset:{(i%4)*1024} {KVF}")
        vq.issue(("K", i))
    def vslot(v): return slot(v % WV)
    def vload(v):
        if v == 0: A("s_mov_b32 s65, s64")
        elif v % 4 == 0: A("s_add_u32 s65, s65, s43")
        A(f"buffer_load_dwordx4 {v4(vslot(v))}, v2, s[56:59], s65 offen offset:{(v%4)*1024} {KVF}")
        vq.issue(("V", v))
    for i in range(WK): kload(i)
    A(f"""
    v_and_b32 v44, 1, v{vC}
    v_cmp_eq_u32 vcc, 1, v44
    v_mov_b32 v45, 0x0000ffff
    v_mov_b32 v46, 0xffff0000
    v_cndmask_b32 v47, v45, v46, vcc
    v_bfe_u32 v44, v{vC}, 1, 2
    v_mov_b32 v46, 0
    """)
    for r in range(4):
        A(f"v_cmp_eq_u32 vcc, {r}, v44")
        A(f"v_cndmask_b32 v{M+r}, v46, v47, vcc")
    A(f"""
    s_mov_b32 s42, {f2u(CSC):#x}
    s_mov_b32 s66, 0xcccccccc
    s_mov_b32 s67, 0xcccccccc
    s_mov_b32 s68, 0xaaaaaaaa
    s_mov_b32 s69, 0xaaaaaaaa
    """)
    lds_spin(QRDY, "nz", 2)
    A(f"""
    v_lshlrev_b32 v46, 4, v{vC}
    ds_read_b128 {v4(Q)}, v46 offset:{QB}
    ds_read_b32 v16, v44 offset:{NONCE}
    s_waitcnt lgkmcnt(0)
    """)
    stamp(1)
    T = 48
    def reduce16(dest):
        for a in range(8):
            A(f"v_add_f32_dpp v{T+a}, v{T+a}, v{T+a} row_ror:8 row_mask:0xf bank_mask:0x3")
            A(f"v_add_f32_dpp v{T+a}, v{T+a+8}, v{T+a+8} row_ror:8 row_mask:0xf bank_mask:0xc")
        for a in range(4):
            A(f"v_add_f32_dpp v{T+a}, v{T+a}, v{T+a} row_half_mirror row_mask:0xf bank_mask:0x5")
            A(f"v_add_f32_dpp v{T+a}, v{T+a+4}, v{T+a+4} row_half_mirror row_mask:0xf bank_mask:0xa")
        for a in range(2):
            A(f"v_cndmask_b32 v{44+2*a}, v{T+a}, v{T+a+2}, s[66:67]")
            A(f"v_cndmask_b32 v{45+2*a}, v{T+a+2}, v{T+a}, s[66:67]")
        for a in range(2):
            A(f"v_add_f32_dpp v{T+a}, v{45+2*a}, v{44+2*a} quad_perm:[2,3,0,1] row_mask:0xf bank_mask:0xf")
        A(f"v_cndmask_b32 v44, v{T}, v{T+1}, s[68:69]")
        A(f"v_cndmask_b32 v45, v{T+1}, v{T}, s[68:69]")
        A(f"v_add_f32_dpp v{dest}, v45, v44 quad_perm:[1,0,3,2] row_mask:0xf bank_mask:0xf")
    SC = 24
    nv = 0
    for j in range(0, 128, 2):
        vq.wait(("K", j + 1))
        for r in range(4 if not opt.get("nodot") else 0):
            for jj in (j, j+1):
                t = T + (jj & 15)
                c = "0" if r == 0 else f"v{t}"
                A(f"v_dot2_f32_bf16 v{t}, v{kslot(jj)+r}, v{Q+r}, {c}")
        for jj in (j, j+1):
            if jj + WK < 128: kload(jj + WK)
            else: vload(nv); nv += 1
        if (j + 1) % 16 == 15 and not opt.get("nodot"): reduce16(SC + (j >> 4))
        if FINE and (j + 2) % 32 == 0: stamp(1 + (j + 2) // 32)
    if not FINE: stamp(2)
    B = Asm(); _A = A
    sm = []
    class Cap:
        def __call__(self, s):
            for l in s.split("\n"):
                if l.strip(): sm.append(l.strip())
    A = Cap()
    A(f"""
    v_max3_f32 v44, v{SC}, v{SC+1}, v{SC+2}
    v_max3_f32 v44, v44, v{SC+3}, v{SC+4}
    v_max3_f32 v44, v44, v{SC+5}, v{SC+6}
    v_max_f32 v44, v44, v{SC+7}
    """)
    wavereduce("v_max_f32", 44)
    A("v_mul_f32 v46, s42, v44")
    for k in range(8): A(f"v_fma_f32 v{SC+k}, v{SC+k}, s42, -v46")
    for k in range(8): A(f"v_exp_f32 v{SC+k}, v{SC+k}")
    A(f"""
    v_add_f32 v47, v{SC}, v{SC+1}
    v_add_f32 v44, v{SC+2}, v{SC+3}
    v_add_f32 v45, v{SC+4}, v{SC+5}
    v_add_f32 v48, v{SC+6}, v{SC+7}
    v_add_f32 v47, v47, v44
    v_add_f32 v45, v45, v48
    v_add_f32 v47, v47, v45
    """)
    wavereduce("v_add_f32", 47)
    for k in range(8): A(f"v_cvt_pk_bf16_f32 v{SC+k}, v{SC+k}, v{SC+k}")
    A = _A
    extra = WV - nv
    step = max(1, len(sm) // (extra + 1)) if extra > 0 else 0
    for i, l in enumerate(sm):
        A(l)
        if extra > 0 and (i + 1) % step == 0 and nv < WV: vload(nv); nv += 1
    while nv < WV: vload(nv); nv += 1
    A(f"""
    s_lshl_b32 s8, s3, 3
    v_mov_b32 v44, s8
    v_mov_b32 v45, 1
    v_mov_b32 v48, 0
    s_mov_b64 exec, 1
    ds_write_b64 v44, v[46:47] offset:{ST}
    ds_add_u32 v48, v45 offset:{CNTK}
    s_mov_b64 exec, -1
    """)
    for r in range(4): A(f"v_mov_b32 v{4+r}, 0")
    def abuild(v, aset):
        p, jj = SC + (v >> 4), v & 15
        for q in range(4):
            A(f"v_and_b32_dpp v{aset+q}, v{p}, v{M+q} row_newbcast:{jj} row_mask:0xf bank_mask:0xf")
    abuild(0, 8)
    for v in range(128):
        if FINE and v in (32, 64, 96): stamp(5 + v // 32)
        if v == 96:
            lds_spin(SCRDY, "nz", 2)
            A(f"""
            s_lshl_b32 s8, s3, 2
            v_mov_b32 v44, s8
            ds_read_b32 v50, v44 offset:{SCALE}
            """)
        if v + 1 < 128 and not opt.get("nomfma"): abuild(v + 1, 8 + 4*((v+1) & 1))
        vq.wait(("V", v))
        if not opt.get("nomfma"): mfma(4, 8 + 4*(v & 1), vslot(v), "v[4:7]")
        if v + WV < 128: vload(v + WV)
    stamp(9 if FINE else 3)
    if stamps and opt.get("clk"):
        A("s_memtime s[76:77]"); A("s_waitcnt lgkmcnt(0)"); A("s_sub_u32 s76, s76, s100")
        A("s_lshl_b32 s8, s2, 10"); A("s_lshl_b32 s9, s3, 7"); A("s_add_u32 s8, s8, s9"); A("s_add_u32 s8, s8, 0x2000000")
        A("v_mov_b32 v44, s8"); A("v_mov_b32 v45, s76"); A("s_mov_b64 exec, 1"); A("global_store_dword v44, v45, s[40:41] offset:80"); A("s_mov_b64 exec, -1")
    A("s_waitcnt lgkmcnt(0)")
    for r in range(4): A(f"v_mul_f32 v{4+r}, v{4+r}, v50")
    A(f"""
    v_lshlrev_b32 v46, 5, v{vC}
    v_lshlrev_b32 v47, 4, v{vG}
    v_add_u32 v46, v46, v47
    s_lshl_b32 s8, s3, 9
    v_add_u32 v46, s8, v46
    s_mov_b32 exec_hi, 0
    ds_write_b128 v46, v[4:7] offset:{OP}
    s_mov_b32 exec_hi, -1
    s_waitcnt lgkmcnt(0)
    s_barrier
    s_cmp_eq_u32 s3, 0
    s_cbranch_scc0 L_sexit
    v_lshlrev_b32 v46, 4, v1
    s_mov_b32 exec_hi, 0
    """)
    for w in range(4): A(f"ds_read_b128 {v4(128+4*w)}, v46 offset:{OP+512*w}")
    settags(16, 20)
    A(f"""
    s_lshl_b32 s8, s7, 1
    s_add_u32 s8, s8, s6
    s_lshl_b32 s8, s8, 9
    s_add_u32 s8, s8, {OX}
    v_add_u32 v46, s8, v46
    s_waitcnt lgkmcnt(0)
    """)
    for k in (0, 2):
        pk(128+k, 128+k, 132+k); pk(136+k, 136+k, 140+k); pk(128+k, 128+k, 136+k)
    tag4(128, 20)
    A(f"""
    global_store_dwordx4 v46, v[128:131], s[40:41] sc1
    s_mov_b32 exec_hi, -1
    L_sexit:
    """)
    store_stamps(10 if FINE else 4)
    A("s_endpgm")

    A("L_H:")
    SELX = 24
    A(f"""
    s_setprio 3
    s_sub_u32 s71, s3, 4
    s_lshl_b32 s72, s5, 1
    s_add_u32 s72, s72, s6
    v_and_b32 v44, 1, v{vC}
    v_cmp_eq_u32 vcc, 1, v44
    v_mov_b32 v45, 0x0c0c0100
    v_mov_b32 v46, 0x01000c0c
    v_cndmask_b32 v47, v45, v46, vcc
    v_mov_b32 v45, 0x0c0c0302
    v_mov_b32 v46, 0x03020c0c
    v_cndmask_b32 v48, v45, v46, vcc
    v_bfe_u32 v44, v{vC}, 1, 2
    v_mov_b32 v45, 0x0c0c0c0c
    v_cmp_gt_u32 s[12:13], 8, v{vC}
    """)
    for r in range(4):
        A(f"v_cmp_eq_u32 vcc, {r}, v44")
        A(f"v_cndmask_b32 v{SELL+r}, v45, v47, vcc")
        A(f"v_cndmask_b32 v{SELH+r}, v45, v48, vcc")
        A(f"v_cndmask_b32 v{SELX+r}, v{SELH+r}, v{SELL+r}, s[12:13]")
    A(f"""
    s_lshr_b32 s8, s72, 1
    s_mul_i32 s8, s8, 160
    s_mul_i32 s9, s71, 40
    s_add_u32 s8, s8, s9
    v_mul_u32_u24 v44, 10, v{vG}
    v_add_u32 v44, s8, v44
    v_lshlrev_b32 v46, 1, v44
    v_lshrrev_b32 v45, 3, v{vC}
    v_add_u32 v45, v44, v45
    v_lshlrev_b32 v45, 13, v45
    v_and_b32 v47, 7, v{vC}
    v_lshlrev_b32 v47, 4, v47
    v_add_u32 v48, v45, v47
    s_waitcnt lgkmcnt(0)
    s_or_b32 s8, s2, s71
    s_cmp_eq_u32 s8, 0
    s_cbranch_scc0 L_nononce
    s_memrealtime s[8:9]
    s_waitcnt lgkmcnt(0)
    s_or_b32 s8, s8, 1
    s_mul_i32 s8, s8, 0x9e3779b1
    v_lshlrev_b32 v44, 6, v1
    v_mov_b32 v45, s8
    s_mov_b64 exec, 15
    global_store_dword v44, v45, s[38:39] sc1
    s_mov_b64 exec, -1
    L_nononce:
    s_mov_b32 s44, s16
    s_and_b32 s45, s17, 0xffff
    s_mov_b32 s46, 5120
    s_mov_b32 s47, 0x20000
    s_lshl_b32 s8, s4, 8
    s_and_b32 s9, s72, 1
    s_lshl_b32 s9, s9, 7
    s_add_u32 s8, s8, s9
    s_add_u32 s48, s22, s8
    s_addc_u32 s49, s23, 0
    s_and_b32 s49, s49, 0xffff
    s_sub_u32 s50, 5242880, s8
    s_mov_b32 s51, 0x20000
    """)
    XQ = 56; WQr = 80
    A(f"""
    s_mul_i32 s8, s71, 1280
    v_lshlrev_b32 v44, 4, v1
    v_add_u32 v45, s8, v44
    s_add_u32 s9, s8, {XL}
    s_mov_b32 m0, s9
    s_mov_b32 s60, s34
    s_and_b32 s61, s35, 0xffff
    s_mov_b32 s62, 1280
    s_mov_b32 s63, 0x20000
    buffer_load_dwordx4 v45, s[44:47], 0 offen lds
    s_add_u32 m0, s9, 1024
    s_mov_b32 s64, 1024
    s_mov_b64 exec, 0xffff
    buffer_load_dwordx4 v45, s[44:47], s64 offen lds
    s_mov_b64 exec, -1
    s_cmp_eq_u32 s71, 0
    s_cbranch_scc0 L_nogw
    s_mov_b32 m0, {GWL}
    s_nop 0
    buffer_load_dwordx4 v44, s[60:63], 0 offen lds
    s_mov_b32 m0, {GWL+1024}
    s_mov_b64 exec, 0xffff
    buffer_load_dwordx4 v44, s[60:63], s64 offen lds
    s_mov_b64 exec, -1
    L_nogw:
    """)
    for i in range(5):
        A(f"s_mov_b32 s64, {2*i*8192}")
        A(f"buffer_load_dwordx4 {v4(WQr+4*i)}, v48, s[48:51], s64 offen {WF}")
    A("s_waitcnt lgkmcnt(0)")
    A("s_barrier")
    A(f"""
    s_cmp_eq_u32 s71, 0
    s_cbranch_scc0 L_nopoll
    s_sleep {NSLEEP}
    """)
    for k in range(4):
        A(f"s_load_dword s74, s[38:39], {64*k}")
        A("s_waitcnt lgkmcnt(0)"); A("s_cmp_lg_u32 s74, 0"); A("s_cbranch_scc1 L_ngot")
        if k < 3: A("s_sleep 3")
    A(f"""
    v_mov_b32 v44, 0
    s_mov_b32 s73, {SPIN}
    L_npoll:
    global_load_dword v45, v44, s[38:39] sc1
    s_waitcnt vmcnt(0)
    v_readfirstlane_b32 s74, v45
    s_cmp_lg_u32 s74, 0
    s_cbranch_scc1 L_ngot
    s_sub_u32 s73, s73, 1
    s_cbranch_scc0 L_npoll
    L_ngot:
    v_mov_b32 v44, 0
    v_mov_b32 v45, s74
    s_mov_b64 exec, 1
    ds_write_b32 v44, v45 offset:{NONCE}
    s_mov_b64 exec, -1
    L_nopoll:
    s_waitcnt vmcnt(5)
    """)
    hbarrier(1)
    for b in range(4): A(f"v_add_u32 v{100+b}, {XL + 1280*b}, v46")
    for b in range(4):
        A(f"ds_read2_b32 v[{XQ+6*b}:{XQ+6*b+1}], v{100+b} offset0:0 offset1:1")
        A(f"ds_read2_b32 v[{XQ+6*b+2}:{XQ+6*b+3}], v{100+b} offset0:2 offset1:3")
        A(f"ds_read_b32 v{XQ+6*b+4}, v{100+b} offset:16")
    A("s_waitcnt vmcnt(0) lgkmcnt(0)")
    stamp(1)
    def xq(b, i): return XQ + 6*b + i
    DQ = [4, 48, 52, 104]
    n = 0
    for i in range(5):
        for b in range(4):
            aset = 8 + 4 * (n & 1)
            for r in range(4): A(f"v_perm_b32 v{aset+r}, v{xq(b,i)}, v{xq(b,i)}, v{SELX+r}")
            mfma(DQ[b], aset, WQr + 4*i, "0" if i == 0 else v4(DQ[b]))
            n += 1
    A(f"""
    s_lshl_b32 s8, s71, 11
    v_lshrrev_b32 v45, 1, v{vG}
    v_lshlrev_b32 v45, 8, v45
    v_and_b32 v46, 7, v{vC}
    v_lshlrev_b32 v46, 5, v46
    v_add_u32 v45, v45, v46
    v_and_b32 v46, 1, v{vG}
    v_lshlrev_b32 v46, 4, v46
    v_add_u32 v45, v45, v46
    v_add_u32 v45, s8, v45
    s_mov_b32 exec_lo, 0x00ff00ff
    s_mov_b32 exec_hi, 0xff00ff00
    """)
    for b in range(4): A(f"ds_write_b128 v45, {v4(DQ[b])} offset:{GP+512*b}")
    A("s_mov_b64 exec, -1")
    hbarrier(2)
    A(f"""
    v_mov_b32 v44, 0
    ds_read_b32 v32, v44 offset:{NONCE}
    s_lshl_b32 s8, s71, 9
    v_lshlrev_b32 v45, 4, v{vC}
    v_add_u32 v45, s8, v45
    """)
    for w in range(4):
        for rho in range(2): A(f"ds_read_b128 {v4(56+8*w+4*rho)}, v45 offset:{GP+w*2048+rho*256}")
    A(f"""
    s_lshl_b32 s10, s4, 3
    s_add_u32 s10, s10, s72
    s_lshl_b32 s10, s10, 2
    s_add_u32 s10, s10, s71
    s_lshl_b32 s10, s10, 8
    s_add_u32 s10, s10, {QX}
    v_lshlrev_b32 v46, 4, v{vC}
    v_add_u32 v46, s10, v46
    s_waitcnt lgkmcnt(0)
    v_readfirstlane_b32 s74, v32
    """)
    settags(32, TG)
    def sum_quads(regs):
        regs = list(regs)
        while len(regs) > 1:
            nx = []
            for a in range(0, len(regs) - 1, 2):
                for k in (0, 2): pk(regs[a]+k, regs[a]+k, regs[a+1]+k)
                nx.append(regs[a])
            if len(regs) % 2: nx.append(regs[-1])
            regs = nx
    sum_quads([56+4*k for k in range(8)])
    tag4(56)
    A(f"""
    s_mov_b64 exec, 0xffff
    global_store_dwordx4 v46, v[56:59], s[40:41] sc1
    s_mov_b64 exec, -1
    """)
    stamp(2)
    def rows_reduce(regs):
        for r in regs: A(f"v_mov_b32 v{r+32}, v{r}")
        for r in regs: A(f"v_permlane16_swap_b32 v{r}, v{r+32}")
        for r in regs: A(f"v_add_f32 v{r}, v{r}, v{r+32}")
        for r in regs: A(f"v_mov_b32 v{r+32}, v{r}")
        for r in regs: A(f"v_permlane32_swap_b32 v{r}, v{r+32}")
        for r in regs: A(f"v_add_f32 v{r}, v{r}, v{r+32}")
    A(f"""
    s_cmp_eq_u32 s71, 0
    s_cbranch_scc0 L_noq
    s_lshl_b32 s10, s4, 5
    s_add_u32 s10, s10, s5
    s_lshl_b32 s10, s10, 8
    s_add_u32 s10, s10, {QX}
    v_lshlrev_b32 v46, 11, v{vG}
    v_lshlrev_b32 v47, 4, v{vC}
    v_add_u32 v46, v46, v47
    v_add_u32 v46, s10, v46
    s_mov_b32 s73, {SPIN}
    s_sleep {QSLEEP}
    L_qpoll:
    global_load_dwordx4 v[56:59], v46, s[40:41] sc1
    global_load_dwordx4 v[60:63], v46, s[40:41] offset:1024 sc1
    s_waitcnt vmcnt(0)
    """)
    chk4([56, 60], "L_qok")
    A(f"""
    s_sub_u32 s73, s73, 1
    s_cbranch_scc0 L_qpoll
    L_qok:
    """)
    rows_reduce(range(56, 64))
    A(f"""
    v_cvt_pk_bf16_f32 v56, v56, v57
    v_cvt_pk_bf16_f32 v57, v58, v59
    v_cvt_pk_bf16_f32 v58, v60, v61
    v_cvt_pk_bf16_f32 v59, v62, v63
    v_lshlrev_b32 v45, 3, v{vC}
    v_mov_b32 v44, 0
    v_mov_b32 v47, 1
    s_mov_b64 exec, 0xffff
    ds_write_b64 v45, v[56:57] offset:{QB}
    ds_write_b64 v45, v[58:59] offset:{QB+128}
    s_mov_b64 exec, 1
    ds_write_b32 v44, v47 offset:{QRDY}
    s_mov_b64 exec, -1
    L_noq:
    """)
    stamp(3)
    def idle_end():
        A(f"""
        v_mov_b32 v44, 0
        v_mov_b32 v45, 1
        v_mov_b32 v46, 1.0
        ds_write_b32 v44, v46 offset:{SCALE}
        ds_write_b32 v44, v46 offset:{SCALE+4}
        ds_write_b32 v44, v46 offset:{SCALE+8}
        ds_write_b32 v44, v46 offset:{SCALE+12}
        ds_write_b32 v44, v45 offset:{SCRDY}
        s_waitcnt lgkmcnt(0)
        s_barrier
        s_branch L_hend
        """)
    HST = int(opt.get("hstop", 0))
    if opt.get("hidle"): idle_end()
    A(f"""
    s_setprio {BP}
    s_lshr_b32 s8, s2, 1
    s_sub_u32 s8, s8, {FFN0}
    s_lshr_b32 s76, s8, 2
    s_and_b32 s77, s8, 3
    s_cmp_lt_u32 s8, {NFFN}
    s_cselect_b32 s75, 1, 0
    s_and_b32 s9, s2, 1
    s_cmp_eq_u32 s9, 0
    s_cselect_b32 s75, s75, 0
    """)
    if opt.get("noffn"): A("s_mov_b32 s75, 0")
    A(f"""
    s_mul_i32 s8, s4, 163840
    s_mul_i32 s9, s72, 160
    s_add_u32 s8, s8, s9
    s_add_u32 s48, s24, s8
    s_addc_u32 s49, s25, 0
    s_and_b32 s49, s49, 0xffff
    s_sub_u32 s50, 5242880, s8
    s_mov_b32 s51, 0x20000
    v_mul_u32_u24 v46, 2560, v{vG}
    v_lshlrev_b32 v47, 4, v{vC}
    v_add_u32 v46, v46, v47
    s_mul_i32 s8, s71, {32*1280}
    v_add_u32 v46, s8, v46
    v_mov_b32 v47, 0x7ff00000
    v_cmp_gt_u32 vcc, 10, v{vC}
    v_cndmask_b32 v46, v47, v46, vcc
    s_lshl_b32 s9, s71, 13
    s_add_u32 s9, s9, {WOL}
    """)
    WOM = opt.get("wom", "dma")
    for i in range(8 if HST != 1 else 0):
        t, s_ = i >> 1, i & 1
        if WOM == "dma":
            A(f"s_add_u32 m0, s9, {i*1024}")
            A(f"s_mov_b32 s64, {(8*t+s_)*1280}")
            A(f"buffer_load_dwordx4 v46, s[48:51], s64 offen {WF} lds")
        elif WOM == "dmax":
            A("s_mov_b32 exec_lo, 0x03ff03ff"); A("s_mov_b32 exec_hi, 0x03ff03ff")
            A(f"s_add_u32 m0, s9, {i*1024}")
            A(f"s_mov_b32 s64, {(8*t+s_)*1280}")
            A(f"buffer_load_dwordx4 v46, s[48:51], s64 offen {WF} lds")
            A("s_mov_b64 exec, -1")
        else:
            A(f"s_mov_b32 s64, {(8*t+s_)*1280}")
            A(f"buffer_load_dwordx4 {v4(192+4*i)}, v46, s[48:51], s64 offen {WF}")
    X1 = 56; W1r = 96; W2r = 136
    A("s_cmp_eq_u32 s75, 1"); A("s_cbranch_scc0 L_nobulk")
    A(f"""
    v_cmp_gt_u32 vcc, 8, v{vC}
    v_mov_b32 v66, s30
    v_mov_b32 v67, s28
    v_cndmask_b32 v66, v66, v67, vcc
    v_mov_b32 v67, s31
    v_mov_b32 v68, s29
    v_cndmask_b32 v67, v67, v68, vcc
    s_mul_i32 s8, s77, {160*3456}
    s_mul_i32 s9, s71, {40*3456}
    s_add_u32 s8, s8, s9
    s_lshl_b32 s9, s76, 7
    s_add_u32 s8, s8, s9
    v_mul_u32_u24 v68, {2*3456}, v{vG}
    v_and_b32 v45, 7, v{vC}
    v_lshlrev_b32 v45, 4, v45
    v_add_u32 v68, v68, v45
    v_add_u32 v68, s8, v68
    v_add_co_u32 v66, vcc, v66, v68
    v_addc_co_u32 v67, vcc, 0, v67, vcc
    s_mov_b32 s12, {8*3456}
    s_mov_b32 s13, 0
    """)
    for i in range(10):
        A(f"global_load_dwordx4 {v4(W1r+4*i)}, v[66:67], off offset:{(i&1)*3456} {WF}")
        if i & 1 and i < 9: A("v_lshl_add_u64 v[66:67], v[66:67], 0, s[12:13]")
    A(f"""
    s_lshl_b32 s8, s76, 6
    s_lshl_b32 s9, s71, 4
    s_add_u32 s8, s8, s9
    s_mul_i32 s8, s8, 1280
    s_mul_i32 s9, s77, 320
    s_add_u32 s8, s8, s9
    s_add_u32 s60, s32, s8
    s_addc_u32 s61, s33, 0
    s_and_b32 s61, s61, 0xffff
    s_sub_u32 s62, {1728*1280}, s8
    s_mov_b32 s63, 0x20000
    v_mul_u32_u24 v46, 2560, v{vG}
    v_lshlrev_b32 v47, 4, v{vC}
    v_add_u32 v46, v46, v47
    v_add_u32 v47, 256, v46
    v_mov_b32 v68, 0x7ff00000
    v_cmp_gt_u32 vcc, 4, v{vC}
    v_cndmask_b32 v47, v68, v47, vcc
    """)
    for ts in range(4):
        A(f"s_mov_b32 s64, {(8*(ts>>1)+(ts&1))*1280}")
        A(f"buffer_load_dwordx4 {v4(W2r+8*ts)}, v46, s[60:63], s64 offen {WF}")
        A(f"buffer_load_dwordx4 {v4(W2r+8*ts+4)}, v47, s[60:63], s64 offen {WF}")
    A("L_nobulk:")
    A("s_waitcnt vmcnt(0)")
    if WOM == "reg" and HST != 1:
        A(f"""
        s_lshl_b32 s9, s71, 13
        s_add_u32 s9, s9, {WOL}
        v_lshlrev_b32 v45, 4, v1
        v_add_u32 v45, s9, v45
        """)
        for i in range(8): A(f"ds_write_b128 v45, {v4(192+4*i)} offset:{1024*i}")
    A(f"""
    v_mul_u32_u24 v44, 20, v1
    s_mul_i32 s8, s71, 1280
    s_add_u32 s8, s8, {XL}
    v_add_u32 v45, s8, v44
    v_add_u32 v44, {GWL}, v44
    ds_read2_b32 v[36:37], v45 offset0:0 offset1:1
    ds_read2_b32 v[38:39], v45 offset0:2 offset1:3
    ds_read_b32 v40, v45 offset:16
    ds_read2_b32 v[48:49], v44 offset0:0 offset1:1
    ds_read2_b32 v[50:51], v44 offset0:2 offset1:3
    ds_read_b32 v52, v44 offset:16
    s_waitcnt lgkmcnt(0)
    """)
    A("v_dot2_f32_bf16 v33, v36, v48, 0")
    for t in range(1, 5): A(f"v_dot2_f32_bf16 v33, v{36+t}, v{48+t}, v33")
    wavereduce("v_add_f32", 33)
    A(f"""
    v_mul_f32 v33, {f2u(-LOG2E):#x}, v33
    v_exp_f32 v33, v33
    v_add_f32 v33, 1.0, v33
    v_rcp_f32 v33, v33
    v_sub_f32 v32, 1.0, v33
    s_setprio 3
    """)
    hbarrier(3, 2)
    stamp(4)
    if HST in (1, 2): idle_end()
    D1 = [4, 52]
    A("s_cmp_eq_u32 s75, 1"); A("s_cbranch_scc0 L_noffn")
    A(f"""
    v_lshrrev_b32 v44, 3, v{vC}
    v_mul_u32_u24 v44, 1280, v44
    v_lshlrev_b32 v45, 2, v{vG}
    v_add_u32 v44, v44, v45
    s_mul_i32 s8, s77, 320
    s_mul_i32 s9, s71, 80
    s_add_u32 s8, s8, s9
    s_add_u32 s8, s8, {XL}
    v_add_u32 v44, s8, v44
    v_add_u32 v45, 2560, v44
    """)
    for t in range(5):
        A(f"ds_read_b32 v{X1+t}, v44 offset:{16*t}")
        A(f"ds_read_b32 v{X1+5+t}, v45 offset:{16*t}")
    A("s_waitcnt lgkmcnt(0)")
    n = 0
    for i in range(10):
        for p in range(2):
            aset = 8 + 4 * (n & 1)
            perms(X1 + 5*p + (i >> 1), i & 1, aset)
            mfma(D1[p], aset, W1r + 4*i, "0" if i == 0 else v4(D1[p]))
            n += 1
    A(f"""
    s_lshl_b32 s8, s71, 11
    v_lshlrev_b32 v45, 4, v1
    v_add_u32 v45, s8, v45
    ds_write_b128 v45, {v4(D1[0])} offset:{GP}
    ds_write_b128 v45, {v4(D1[1])} offset:{GP+1024}
    """)
    hbarrier(4)
    A(f"""
    s_lshr_b32 s8, s71, 1
    s_lshl_b32 s8, s8, 10
    s_and_b32 s9, s71, 1
    s_lshl_b32 s9, s9, 9
    s_add_u32 s8, s8, s9
    v_and_b32 v45, 1, v1
    v_lshlrev_b32 v45, 8, v45
    v_and_b32 v46, 1, v{vG}
    v_lshlrev_b32 v46, 7, v46
    v_add_u32 v45, v45, v46
    v_bfe_u32 v46, v1, 1, 3
    v_lshlrev_b32 v46, 4, v46
    v_add_u32 v45, v45, v46
    v_add_u32 v45, s8, v45
    """)
    for w in range(4): A(f"ds_read_b128 {v4(56+4*w)}, v45 offset:{GP+w*2048}")
    A(f"""
    s_lshl_b32 s10, s76, 2
    s_add_u32 s10, s10, s77
    s_lshl_b32 s10, s10, 2
    s_add_u32 s10, s10, s71
    s_lshl_b32 s10, s10, 9
    s_add_u32 s10, s10, {FX}
    v_lshlrev_b32 v46, 4, v1
    v_add_u32 v46, s10, v46
    s_waitcnt lgkmcnt(0)
    """)
    sum_quads([56, 60, 64, 68])
    tag4(56)
    A(f"""
    s_mov_b32 exec_hi, 0
    global_store_dwordx4 v46, v[56:59], s[40:41] sc1
    s_mov_b32 exec_hi, -1
    s_lshl_b32 s10, s76, 4
    s_add_u32 s10, s10, s71
    s_lshl_b32 s10, s10, 9
    s_add_u32 s10, s10, {FX}
    v_lshlrev_b32 v47, 11, v1
    v_add_u32 v47, s10, v47
    v_lshlrev_b32 v46, 11, v{vG}
    v_lshlrev_b32 v48, 4, v{vC}
    v_add_u32 v46, v46, v48
    v_add_u32 v46, s10, v46
    s_sleep {FSL}
    """)
    probe(47, 0xf, FSL)
    A(f"""
    s_mov_b32 s73, {SPIN}
    L_fpoll:
    global_load_dwordx4 v[56:59], v46, s[40:41] sc1
    global_load_dwordx4 v[60:63], v46, s[40:41] offset:256 sc1
    s_waitcnt vmcnt(0)
    """)
    chk4([56, 60], "L_fok")
    A(f"""
    s_sleep 8
    s_sub_u32 s73, s73, 1
    s_cbranch_scc0 L_fpoll
    L_fok:
    """)
    rows_reduce(range(56, 64))
    for k in range(4): A(f"v_mul_f32 v{64+k}, {f2u(-LOG2E):#x}, v{56+k}")
    for k in range(4): A(f"v_exp_f32 v{64+k}, v{64+k}")
    for k in range(4): A(f"v_add_f32 v{64+k}, 1.0, v{64+k}")
    for k in range(4): A(f"v_rcp_f32 v{64+k}, v{64+k}")
    for k in range(4): A(f"v_mul_f32 v{56+k}, v{56+k}, v{64+k}")
    for k in range(4): A(f"v_mul_f32 v{56+k}, v{56+k}, v{60+k}")
    A(f"""
    v_cvt_pk_bf16_f32 v56, v56, v57
    v_cvt_pk_bf16_f32 v57, v58, v59
    s_lshl_b32 s8, s71, 7
    v_lshlrev_b32 v45, 3, v{vC}
    v_add_u32 v45, s8, v45
    s_mov_b64 exec, 0xffff
    ds_write_b64 v45, v[56:57] offset:{HB}
    s_mov_b64 exec, -1
    """)
    hbarrier(5)
    A(f"""
    v_lshrrev_b32 v45, 3, v{vC}
    v_lshlrev_b32 v45, 7, v45
    v_lshlrev_b32 v46, 2, v{vG}
    v_add_u32 v45, v45, v46
    s_lshl_b32 s8, s71, 5
    v_add_u32 v45, s8, v45
    ds_read_b32 v56, v45 offset:{HB}
    ds_read_b32 v57, v45 offset:{HB+16}
    ds_read_b32 v58, v45 offset:{HB+256}
    ds_read_b32 v59, v45 offset:{HB+256+16}
    s_waitcnt lgkmcnt(0)
    """)
    D2 = 168
    n = 0
    for ts in range(4):
        for p in range(2):
            aset = 8 + 4 * (n & 1)
            perms(56 + 2*p + (ts >> 1), ts & 1, aset)
            for part in range(2):
                d = D2 + 8*p + 4*part
                mfma(d, aset, W2r + 8*ts + 4*part, "0" if ts == 0 else v4(d))
            n += 1
    A(f"""
    s_lshl_b32 s8, s71, 12
    s_add_u32 s8, s8, {YP2}
    v_lshlrev_b32 v45, 4, v1
    v_add_u32 v45, s8, v45
    """)
    for p in range(2):
        for part in range(2): A(f"ds_write_b128 v45, {v4(D2+8*p+4*part)} offset:{p*2048+part*1024}")
    hbarrier(6)
    A(f"""
    s_lshr_b32 s8, s71, 1
    s_lshl_b32 s8, s8, 11
    s_and_b32 s9, s71, 1
    s_lshl_b32 s9, s9, 9
    s_add_u32 s8, s8, s9
    s_add_u32 s8, s8, {YP2}
    v_and_b32 v45, 1, v1
    v_lshlrev_b32 v45, 8, v45
    v_bfe_u32 v46, v1, 1, 4
    v_lshlrev_b32 v46, 4, v46
    v_add_u32 v45, v45, v46
    v_lshrrev_b32 v46, 5, v1
    v_lshlrev_b32 v46, 10, v46
    v_add_u32 v45, v45, v46
    v_add_u32 v45, s8, v45
    """)
    for w in range(4): A(f"ds_read_b128 {v4(56+4*w)}, v45 offset:{w*4096}")
    A(f"""
    s_lshl_b32 s10, s76, 2
    s_add_u32 s10, s10, s77
    s_lshl_b32 s10, s10, 2
    s_add_u32 s10, s10, s71
    s_mul_i32 s10, s10, 640
    s_add_u32 s10, s10, {FY}
    v_lshlrev_b32 v46, 4, v1
    v_add_u32 v46, s10, v46
    s_waitcnt lgkmcnt(0)
    """)
    sum_quads([56, 60, 64, 68])
    for k in range(4): A(f"v_mul_f32 v{56+k}, v{56+k}, v32")
    tag4(56)
    A(f"""
    s_mov_b32 exec_hi, 0xff
    global_store_dwordx4 v46, v[56:59], s[40:41] sc1
    s_mov_b64 exec, -1
    """)
    A("L_noffn:")
    stamp(5)
    WOr = 128
    A(f"""
    v_lshlrev_b32 v45, 4, v1
    v_add_u32 v45, {WOL}, v45
    """)
    for i in range(32):
        A(f"ds_read_b128 {v4(WOr+4*i)}, v45 offset:{1024*i}")
        if i % 8 == 7: A("s_waitcnt lgkmcnt(0)")
    A(f"""
    s_bfe_u32 s8, s2, 0x20001
    s_bfe_u32 s9, s2, 0x20003
    s_cmp_eq_u32 s8, s9
    s_cselect_b32 s75, 1, 0
    s_and_b32 s8, s2, 1
    s_cmp_eq_u32 s8, 1
    s_cselect_b32 s75, s75, 0
    s_lshr_b32 s76, s2, 5
    s_bfe_u32 s77, s2, 0x20003
    """)
    lds_spin(CNTK, "ge", 8, 4)
    A("s_cmp_eq_u32 s71, 0"); A("s_cbranch_scc0 L_nostat")
    A(f"""
    v_and_b32 v44, 3, v1
    v_lshlrev_b32 v44, 3, v44
    ds_read_b64 v[46:47], v44 offset:{ST}
    s_waitcnt lgkmcnt(0)
    v_mov_b32 v48, v46
    v_max_f32_dpp v48, v48, v48 quad_perm:[2,3,0,1] row_mask:0xf bank_mask:0xf
    v_max_f32_dpp v48, v48, v48 quad_perm:[1,0,3,2] row_mask:0xf bank_mask:0xf
    v_sub_f32 v49, v46, v48
    v_exp_f32 v49, v49
    v_mul_f32 v49, v49, v47
    v_add_f32_dpp v49, v49, v49 quad_perm:[2,3,0,1] row_mask:0xf bank_mask:0xf
    v_add_f32_dpp v49, v49, v49 quad_perm:[1,0,3,2] row_mask:0xf bank_mask:0xf
    s_lshl_b32 s8, s2, 7
    s_add_u32 s8, s8, {SX}
    v_mov_b32 v44, s8
    v_mov_b32 v56, v48
    v_mov_b32 v57, s74
    v_mov_b32 v58, v49
    v_mov_b32 v59, s74
    s_mov_b64 exec, 1
    global_store_dwordx4 v44, v[56:59], s[40:41] sc1
    s_xor_b32 s8, s2, 3
    s_lshl_b32 s8, s8, 7
    s_add_u32 s8, s8, {SX}
    v_mov_b32 v44, s8
    s_mov_b32 s73, {SPIN}
    L_pspin:
    global_load_dwordx4 v[60:63], v44, s[40:41] sc1
    s_waitcnt vmcnt(0)
    """)
    check_tags([61, 63], "L_pok")
    A(f"""
    s_sleep 32
    s_sub_u32 s73, s73, 1
    s_cbranch_scc0 L_pspin
    L_pok:
    v_readfirstlane_b32 s8, v60
    v_readfirstlane_b32 s9, v62
    s_mov_b64 exec, -1
    v_mov_b32 v60, s8
    v_mov_b32 v62, s9
    v_max_f32 v52, v48, v60
    v_sub_f32 v53, v48, v52
    v_sub_f32 v54, v60, v52
    v_exp_f32 v53, v53
    v_exp_f32 v54, v54
    v_mul_f32 v53, v53, v49
    v_fma_f32 v53, v54, v62, v53
    v_rcp_f32 v53, v53
    v_sub_f32 v54, v46, v52
    v_exp_f32 v54, v54
    v_mul_f32 v54, v54, v53
    v_and_b32 v44, 3, v1
    v_lshlrev_b32 v44, 2, v44
    v_mov_b32 v45, 1
    v_mov_b32 v55, 0
    s_mov_b64 exec, 15
    ds_write_b32 v44, v54 offset:{SCALE}
    s_mov_b64 exec, 1
    ds_write_b32 v55, v45 offset:{SCRDY}
    s_mov_b64 exec, -1
    L_nostat:
    """)
    FSUM = 36
    M20 = 0x000fffff000fffff
    A("s_cmp_eq_u32 s75, 1"); A("s_cbranch_scc0 L_B2")
    if not opt.get("noffn"):
        A(f"""
        s_lshr_b32 s8, s76, 1
        s_lshl_b32 s8, s8, 2
        s_add_u32 s8, s8, s77
        s_mul_i32 s8, s8, 640
        s_and_b32 s9, s76, 1
        s_mul_i32 s9, s9, 320
        s_add_u32 s8, s8, s9
        s_mul_i32 s9, s71, {16*640}
        s_add_u32 s8, s8, s9
        s_add_u32 s8, s8, {FY}
        v_lshrrev_b32 v46, 5, v1
        v_mul_u32_u24 v46, {4*16*640}, v46
        v_and_b32 v47, 31, v1
        v_lshlrev_b32 v47, 4, v47
        v_add_u32 v46, v46, v47
        v_add_u32 v46, s8, v46
        s_mov_b32 s73, {SPIN}
        L_cpoll:
        v_mov_b32 v48, v46
        """)
        for k in range(4):
            if k < 3: A(f"s_mov_b32 exec_lo, 0x000fffff"); A("s_mov_b32 exec_hi, 0x000fffff")
            else:
                A("s_cmp_lt_u32 s71, 3"); A("s_cbranch_scc0 L_cskip"); A("s_mov_b32 exec_lo, 0x000fffff"); A("s_mov_b32 exec_hi, 0")
            A(f"global_load_dwordx4 {v4(56+4*k)}, v48, s[40:41] sc1")
            A("s_mov_b64 exec, -1")
            if k == 3: A("L_cskip:")
            if k < 3: A(f"v_add_u32 v48, {8*16*640}, v48")
        A("s_waitcnt vmcnt(0)")
        A(f"""
        v_and_b32 v44, 31, v1
        v_cmp_le_u32 vcc, 20, v44
        """)
        for k in range(4):
            for r in range(4): A(f"v_cndmask_b32 v{56+4*k+r}, v{56+4*k+r}, v{TG+r}, vcc")
        A(f"""
        s_cmp_lt_u32 s71, 3
        s_cselect_b32 s8, 0xffffffff, 0
        s_mov_b32 s9, 0
        s_not_b64 vcc, s[8:9]
        """)
        for r in range(4): A(f"v_cndmask_b32 v{68+r}, v{68+r}, v{TG+r}, vcc")
        chk4([56, 60, 64, 68], "L_cok")
        A(f"""
        s_sleep 64
        s_sub_u32 s73, s73, 1
        s_cbranch_scc0 L_cpoll
        L_cok:
        """)
        sum_quads([56, 60, 64, 68])
        for r in range(4): A(f"v_mov_b32 v{60+r}, v{56+r}")
        for r in range(4): A(f"v_permlane32_swap_b32 v{56+r}, v{60+r}")
        for r in range(4): A(f"v_add_f32 v{56+r}, v{56+r}, v{60+r}")
        A(f"""
        s_lshl_b32 s8, s71, 9
        v_lshlrev_b32 v45, 4, v1
        v_add_u32 v45, s8, v45
        s_mov_b32 exec_hi, 0
        ds_write_b128 v45, v[56:59] offset:{FS}
        s_mov_b32 exec_hi, -1
        """)
        hbarrier(4)
        A(f"v_lshlrev_b32 v45, 4, v1")
        A("s_mov_b32 exec_hi, 0")
        for w in range(4): A(f"ds_read_b128 {v4(56+4*w)}, v45 offset:{FS+512*w}")
        A("s_mov_b32 exec_hi, -1")
        A("s_waitcnt lgkmcnt(0)")
        sum_quads([56, 60, 64, 68])
        for r in range(4): A(f"v_mov_b32 v{FSUM+r}, v{56+r}")
    else:
        for r in range(4): A(f"v_mov_b32 v{FSUM+r}, 0")
    A("L_B2:")
    if HST == 3: A("s_waitcnt lgkmcnt(0)"); A("s_barrier"); A("s_branch L_hend")
    A(f"""
    s_lshl_b32 s10, s71, 6
    s_lshl_b32 s9, s4, 1
    s_add_u32 s10, s10, s9
    s_lshl_b32 s10, s10, 9
    s_add_u32 s10, s10, {OX}
    v_lshlrev_b32 v46, 4, v1
    v_add_u32 v46, s10, v46
    v_lshlrev_b32 v49, 9, v1
    v_add_u32 v49, s10, v49
    v_and_b32 v47, 1, v1
    v_lshlrev_b32 v47, 7, v47
    v_bfe_u32 v48, v1, 1, 4
    v_lshlrev_b32 v48, 2, v48
    v_add_u32 v47, v47, v48
    s_lshl_b32 s8, s71, 8
    v_add_u32 v47, s8, v47
    v_add_u32 v47, {OB}, v47
    v_lshlrev_b32 v48, 6, v{vG}
    v_add_u32 v48, s8, v48
    s_waitcnt lgkmcnt(0)
    s_barrier
    """)
    stamp(6)
    A(f"""
    s_mov_b32 s73, {SPIN}
    L_opoll:
    global_load_dwordx4 v[56:59], v46, s[40:41] sc1
    s_waitcnt vmcnt(0)
    """)
    chk4([56], "L_ook")
    A(f"""
    s_sleep {OSL}
    s_sub_u32 s73, s73, 1
    s_cbranch_scc0 L_opoll
    L_ook:
    """)
    for r in range(4): A(f"v_mov_b32 v{60+r}, v{56+r}")
    for r in range(4): A(f"v_permlane32_swap_b32 v{56+r}, v{60+r}")
    for r in range(4): A(f"v_add_f32 v{56+r}, v{56+r}, v{60+r}")
    A(f"""
    v_cvt_pk_bf16_f32 v56, v56, v57
    v_cvt_pk_bf16_f32 v57, v58, v59
    s_mov_b32 exec_hi, 0
    ds_write2_b32 v47, v56, v57 offset0:{0} offset1:{16}
    s_mov_b32 exec_hi, -1
    s_waitcnt lgkmcnt(0)
    """.replace("v47, v56, v57 offset0:0 offset1:16", "v47, v56, v57 offset0:0 offset1:16"))
    XO = 64
    for k in range(4): A(f"ds_read_b128 {v4(XO+4*k)}, v48 offset:{OB+16*k}")
    A("s_waitcnt lgkmcnt(0)")
    stamp(7)
    perms(XO, 0, 8)
    for i in range(32):
        if i + 1 < 32: perms(XO + (i+1)//2, (i+1) & 1, 8 + 4*((i+1) & 1))
        mfma(4, 8 + 4*(i & 1), WOr + 4*i, "0" if i == 0 else "v[4:7]")
    A(f"""
    v_lshlrev_b32 v45, 5, v{vC}
    v_lshlrev_b32 v46, 4, v{vG}
    v_add_u32 v45, v45, v46
    s_lshl_b32 s8, s71, 9
    v_add_u32 v45, s8, v45
    v_lshlrev_b32 v46, 4, v1
    v_add_u32 v46, s8, v46
    s_lshl_b32 s10, s72, 2
    s_add_u32 s10, s10, s71
    s_lshl_b32 s10, s10, 5
    s_add_u32 s10, s10, s4
    s_lshl_b32 s10, s10, 9
    s_add_u32 s10, s10, {YX}
    v_lshlrev_b32 v47, 4, v1
    v_add_u32 v47, s10, v47
    s_mov_b32 exec_hi, 0
    ds_write_b128 v45, v[4:7] offset:{YS}
    s_waitcnt lgkmcnt(0)
    ds_read_b128 v[56:59], v46 offset:{YS}
    s_waitcnt lgkmcnt(0)
    """)
    for k in range(4): A(f"v_mul_f32 v{56+k}, v{56+k}, v33")
    tag4(56)
    A(f"""
    s_mov_b64 exec, 0xfffff
    global_store_dwordx4 v47, v[56:59], s[40:41] sc1
    s_mov_b64 exec, -1
    {"s_branch L_hend" if HST == 4 else ""}
    s_cmp_eq_u32 s75, 1
    s_cbranch_scc0 L_hend
    s_lshl_b32 s10, s76, 2
    s_add_u32 s10, s10, s77
    s_lshl_b32 s10, s10, 5
    s_lshl_b32 s9, s71, 3
    s_add_u32 s10, s10, s9
    s_lshl_b32 s10, s10, 9
    s_add_u32 s10, s10, {YX}
    v_lshrrev_b32 v46, 5, v1
    v_lshlrev_b32 v46, 9, v46
    v_and_b32 v47, 31, v1
    v_lshlrev_b32 v47, 4, v47
    v_add_u32 v46, v46, v47
    v_add_u32 v46, s10, v46
    v_add_u32 v47, 2048, v46
    """)
    ya = [(46, 0), (46, 1024), (47, 0), (47, 1024)]
    A(f"""
    s_mov_b32 s73, {SPIN}
    s_mov_b32 s52, 0x000fffff
    s_mov_b32 s53, 0x000fffff
    s_mov_b64 s[54:55], s[52:53]
    s_mov_b64 s[56:57], s[52:53]
    s_mov_b64 s[58:59], s[52:53]
    s_mov_b32 s12, 0x0c0c0400
    s_mov_b32 s13, 0x04000c0c
    L_ypoll:
    """)
    for q, (ar, off) in enumerate(ya):
        A(f"s_mov_b64 exec, s[{52+2*q}:{53+2*q}]")
        A(f"s_cbranch_execz L_ysk{q}")
        A(f"global_load_dwordx4 {v4(56+4*q)}, v{ar}, s[40:41] offset:{off} sc1")
        A(f"L_ysk{q}:")
    A("s_mov_b32 exec_lo, 0x000fffff"); A("s_mov_b32 exec_hi, 0x000fffff")
    A("s_waitcnt vmcnt(0)")
    for q in range(4):
        d = 56 + 4*q
        A(f"v_perm_b32 v44, v{d+1}, v{d}, s12")
        A(f"v_perm_b32 v45, v{d+3}, v{d+2}, s13")
        A(f"v_or_b32 v44, v44, v45")
        A(f"v_cmp_ne_u32 s[{52+2*q}:{53+2*q}], s74, v44")
    A(f"""
    s_or_b64 s[8:9], s[52:53], s[54:55]
    s_or_b64 s[10:11], s[56:57], s[58:59]
    s_or_b64 s[8:9], s[8:9], s[10:11]
    s_cbranch_scc0 L_yok
    s_sleep {int(opt.get("ysl", 1))}
    s_sub_u32 s73, s73, 1
    s_cbranch_scc0 L_ypoll
    L_yok:
    s_mov_b64 exec, -1
    """)
    sum_quads([56, 60, 64, 68])
    for r in range(4): A(f"v_mov_b32 v{60+r}, v{56+r}")
    for r in range(4): A(f"v_permlane32_swap_b32 v{56+r}, v{60+r}")
    for r in range(4): A(f"v_add_f32 v{56+r}, v{56+r}, v{60+r}")
    A(f"""
    s_lshl_b32 s8, s71, 9
    v_lshlrev_b32 v45, 4, v1
    v_add_u32 v45, s8, v45
    s_mov_b32 exec_hi, 0
    ds_write_b128 v45, v[56:59] offset:{FS}
    s_mov_b32 exec_hi, -1
    s_waitcnt lgkmcnt(0)
    s_barrier
    s_cmp_eq_u32 s71, 0
    s_cbranch_scc0 L_hend
    v_lshlrev_b32 v45, 4, v1
    s_mov_b64 exec, 0xfffff
    """)
    for w in range(4): A(f"ds_read_b128 {v4(56+4*w)}, v45 offset:{FS+512*w}")
    A(f"""
    s_mul_i32 s8, s77, 1280
    s_mul_i32 s9, s76, 160
    s_add_u32 s8, s8, s9
    v_lshlrev_b32 v44, 3, v1
    v_add_u32 v44, s8, v44
    s_waitcnt lgkmcnt(0)
    """)
    sum_quads([56, 60, 64, 68])
    for k in (0, 2): pk(56+k, 56+k, FSUM+k)
    A(f"""
    v_cvt_pk_bf16_f32 v56, v56, v57
    v_cvt_pk_bf16_f32 v57, v58, v59
    global_store_dwordx2 v44, v[56:57], s[36:37]
    s_mov_b64 exec, -1
    """)
    A("L_hend:")
    stamp(8)
    store_stamps(9)
    A("L_end:")
    A("s_endpgm")
    body = A.finalize()
    body += f""".section .rodata,"a"
.p2align 6
.amdhsa_kernel {NAME}_kernel
  .amdhsa_next_free_vgpr 256
  .amdhsa_next_free_sgpr 102
  .amdhsa_accum_offset 256
  .amdhsa_group_segment_fixed_size 0
  .amdhsa_kernarg_size 104
  .amdhsa_user_sgpr_count 2
  .amdhsa_user_sgpr_kernarg_segment_ptr 1
  .amdhsa_system_sgpr_workgroup_id_x 1
.end_amdhsa_kernel
"""
    return body

if __name__ == "__main__":
    out = sys.argv[1] if len(sys.argv) > 1 else f"cdna_kernels/{NAME}.s"
    opt = {}
    for a in sys.argv[2:]:
        k, v = a.split("=")
        opt[k] = {"1": True, "0": False}.get(v, v) if k in ("stamps", "fine", "noffn") else v
    open(out, "w").write(gen(opt))
    print("wrote", out)
```

```python
import sys, struct
sys.path.insert(0, "gen")
from asmb import Asm
NAME = "gated_mix__mha_block_cached__swiglu_ffn__decode"
def f2u(x): return struct.unpack("<I", struct.pack("<f", x))[0]
LOG2E = 1.4426950408889634
CSC = LOG2E / (128 ** 0.5)
CNTK = 0; CNTH = 4; SCRDY = 8; QRDY = 12; CKC = 16; MODE = 20; NONCE = 32
ST = 40; SCALE = 72
QB = 128; HB = 512; OB = 1024; YS = 2048; OP = 4096; FS = 6144
GP = 8192; WOL = 16384; YP2 = 49152
XL = 49152 + 16384
GWL = XL + 5120
LDS_BYTES = GWL + 1280
SX = 0; QX = 0x10000; FX = 0x50000; OX = 0xE0000; YX = 0x100000; FY = 0x180000; PF = 0x8000
NFFN = 108; FFN0 = 20
SPIN = 200000
class VMQ:
    def __init__(self, A): self.q = []; self.A = A
    def issue(self, tag):
        self.q.append(tag); assert len(self.q) <= 63, len(self.q)
    def pace(self, depth):
        if depth and len(self.q) >= depth:
            self.A(f"s_waitcnt vmcnt({depth-1})"); self.q = self.q[len(self.q) - (depth - 1):] if depth > 1 else []
    def wait(self, tag):
        if tag not in self.q: return
        idx = self.q.index(tag); n = len(self.q) - 1 - idx
        self.A(f"s_waitcnt vmcnt({n})"); self.q = self.q[idx + 1:]

def gen(opt=None):
    opt = opt or {}
    KVF = opt.get("kvflags", "nt"); WF = opt.get("wflags", "nt")
    stamps = opt.get("stamps", False); FINE = opt.get("fine", False)
    NSLEEP = int(opt.get("nsleep", 10)); QSLEEP = int(opt.get("qsleep", 16))
    WK = int(opt.get("wk", 32)); WV = int(opt.get("wv", 48))
    BP = int(opt.get("bp", 2))
    FSTOP = int(opt.get("fstop", 0))
    OSL = int(opt.get("osl", 1)); FSL = int(opt.get("fsl", 48))
    A = Asm()
    A(f"; @launch grid=(256,1,1) block=(512,1,1) lds={LDS_BYTES}")
    A('.amdgcn_target "amdgcn-amd-amdhsa--gfx950"')
    A(".text"); A(f".globl {NAME}_kernel"); A(".p2align 8"); A(f".type {NAME}_kernel,@function"); A(f"{NAME}_kernel:")
    vG, vC = 34, 35
    SELL, SELH = 16, 20
    M = 36; Q = 40
    uid = [0]
    def U(): uid[0] += 1; return uid[0]
    def v4(r): return f"v[{r}:{r+3}]"
    def stamp(i):
        if stamps: A(f"s_memrealtime s[{80+2*i}:{81+2*i}]")
    def store_stamps(n):
        if not stamps: return
        A("""
        s_waitcnt lgkmcnt(0)
        s_lshl_b32 s8, s2, 10
        s_lshl_b32 s9, s3, 7
        s_add_u32 s8, s8, s9
        s_add_u32 s8, s8, 0x2000000
        v_mov_b32 v44, s8
        s_mov_b64 exec, 1
        """)
        for i in range(n):
            A(f"v_mov_b32 v45, s{80+2*i}"); A(f"global_store_dword v44, v45, s[40:41] offset:{4*i}"); A("s_nop 0")
        A("s_getreg_b32 s9, hwreg(HW_REG_XCC_ID)"); A("v_mov_b32 v45, s9"); A("global_store_dword v44, v45, s[40:41] offset:120")
        A("s_mov_b64 exec, -1")
    def lds_spin(off, cond, sleep, val=None):
        t = U()
        A(f"""
        v_mov_b32 v44, 0
        s_mov_b32 s73, {SPIN}
        L_sp{t}:
        ds_read_b32 v45, v44 offset:{off}
        s_waitcnt lgkmcnt(0)
        v_readfirstlane_b32 s8, v45
        """)
        if cond == "nz": A("s_cmp_lg_u32 s8, 0")
        else: A(f"s_cmp_ge_u32 s8, {val}")
        A(f"""
        s_cbranch_scc1 L_sp{t}_ok
        s_sleep {sleep}
        s_sub_u32 s73, s73, 1
        s_cbranch_scc0 L_sp{t}
        L_sp{t}_ok:
        """)
    def hbarrier(n, sleep=1):
        A(f"""
        s_waitcnt lgkmcnt(0)
        v_mov_b32 v44, 0
        v_mov_b32 v45, 1
        s_mov_b64 exec, 1
        ds_add_u32 v44, v45 offset:{CNTH}
        s_mov_b64 exec, -1
        """)
        lds_spin(CNTH, "ge", sleep, 4 * n)
    def perms(xreg, hi, aset):
        sel = SELH if hi else SELL
        for r in range(4): A(f"v_perm_b32 v{aset+r}, v{xreg}, v{xreg}, v{sel+r}")
    def pk(d, a, b): A(f"v_pk_add_f32 v[{d}:{d+1}], v[{a}:{a+1}], v[{b}:{b+1}]")
    def mfma(d, a, b, c): A(f"v_mfma_f32_16x16x32_bf16 {v4(d)}, {v4(a)}, {v4(b)}, {c}")
    def rowreduce(op, reg):
        A(f"{op}_dpp v{reg}, v{reg}, v{reg} row_ror:8 row_mask:0xf bank_mask:0xf")
        A(f"{op}_dpp v{reg}, v{reg}, v{reg} row_ror:4 row_mask:0xf bank_mask:0xf")
        A(f"{op}_dpp v{reg}, v{reg}, v{reg} quad_perm:[2,3,0,1] row_mask:0xf bank_mask:0xf")
        A(f"{op}_dpp v{reg}, v{reg}, v{reg} quad_perm:[1,0,3,2] row_mask:0xf bank_mask:0xf")
    def wavereduce(op, reg):
        rowreduce(op, reg)
        for k in range(4): A(f"v_readlane_b32 s{8+k}, v{reg}, {16*k}")
        A(f"v_mov_b32 v{reg}, s8")
        for k in range(1, 4): A(f"{op} v{reg}, s{8+k}, v{reg}")
    def check_tags(tags, okl):
        A(f"v_cmp_ne_u32 s[78:79], s74, v{tags[0]}")
        for t in tags[1:]:
            A(f"v_cmp_ne_u32 vcc, s74, v{t}")
            A("s_or_b64 s[78:79], s[78:79], vcc")
        A("s_cmp_eq_u64 s[78:79], 0")
        A(f"s_cbranch_scc1 {okl}")
    TG = 28
    def tag4(d, tg=TG):
        for k in range(4): A(f"v_and_or_b32 v{d+k}, v{d+k}, s75x, v{tg+k}".replace("s75x", "s14"))
    def settags(nonce_v, tg):
        A("s_mov_b32 s14, 0xffffff00")
        A(f"v_and_b32 v{tg}, 0xff, v{nonce_v}")
        for k in range(1, 4): A(f"v_bfe_u32 v{tg+k}, v{nonce_v}, {8*k}, 8")
    def chk4(quads, okl, tmp=44):
        A("s_mov_b32 s12, 0x0c0c0400"); A("s_mov_b32 s13, 0x04000c0c")
        for i, d in enumerate(quads):
            A(f"v_perm_b32 v{tmp}, v{d+1}, v{d}, s12")
            A(f"v_perm_b32 v{tmp+1}, v{d+3}, v{d+2}, s13")
            A(f"v_or_b32 v{tmp}, v{tmp}, v{tmp+1}")
            if i == 0: A(f"v_cmp_ne_u32 s[78:79], s74, v{tmp}")
            else:
                A(f"v_cmp_ne_u32 vcc, s74, v{tmp}"); A("s_or_b64 s[78:79], s[78:79], vcc")
        A("s_cmp_eq_u64 s[78:79], 0"); A(f"s_cbranch_scc1 {okl}")
    def probe(addr_v, mask, sleep):
        t = U()
        A(f"""
        s_mov_b32 s73, {SPIN}
        s_and_b32 s15, s74, 0xff
        s_mov_b64 exec, {mask:#x}
        L_pr{t}:
        global_load_dword v45, v{addr_v}, s[40:41] sc1
        s_waitcnt vmcnt(0)
        v_and_b32 v45, 0xff, v45
        v_cmp_ne_u32 vcc, s15, v45
        s_cmp_eq_u64 vcc, 0
        s_cbranch_scc1 L_pr{t}_ok
        s_sleep {sleep}
        s_sub_u32 s73, s73, 1
        s_cbranch_scc0 L_pr{t}
        L_pr{t}_ok:
        s_mov_b64 exec, -1
        """)

    A("""
    s_cmp_ge_u32 s2, 256
    s_cbranch_scc1 L_end
    s_load_dwordx16 s[16:31], s[0:1], 0
    s_load_dwordx8 s[32:39], s[0:1], 64
    s_load_dwordx2 s[40:41], s[0:1], 96
    """)
    stamp(0)
    if stamps and opt.get("clk"): A("s_memtime s[100:101]")
    A(f"""
    v_lshrrev_b32 v3, 6, v0
    v_and_b32 v1, 63, v0
    v_readfirstlane_b32 s3, v3
    v_mov_b32 v4, 0
    v_mov_b32 v5, 0
    v_mov_b32 v6, 0
    v_mov_b32 v7, 0
    s_cmp_eq_u32 s3, 4
    s_cbranch_scc0 L_noz
    s_mov_b64 exec, 1
    ds_write_b128 v4, v[4:7] offset:0
    ds_write_b128 v4, v[4:7] offset:16
    s_mov_b64 exec, -1
    L_noz:
    s_lshr_b32 s8, s2, 1
    s_xor_b32 s9, s8, s2
    s_and_b32 s9, s9, 1
    s_and_b32 s6, s8, 1
    s_lshr_b32 s8, s2, 2
    s_lshl_b32 s8, s8, 1
    s_add_u32 s7, s8, s9
    s_and_b32 s4, s7, 31
    s_lshr_b32 s5, s7, 5
    v_lshrrev_b32 v{vG}, 4, v1
    v_and_b32 v{vC}, 15, v1
    s_cmp_ge_u32 s3, 4
    s_cbranch_scc1 L_H
    """)
    A(f"""
    s_lshl_b32 s9, s3, 12
    v_lshlrev_b32 v2, 4, v1
    v_add_u32 v2, s9, v2
    s_lshl_b32 s8, s7, 20
    s_cmp_eq_u32 s6, 0
    s_cselect_b32 s64, 0, {63*16384}
    s_mov_b32 s9, 16384
    s_cselect_b32 s43, s9, {(-16384) & 0xffffffff:#x}
    s_waitcnt lgkmcnt(0)
    s_add_u32 s52, s18, s8
    s_addc_u32 s53, s19, 0
    s_and_b32 s53, s53, 0xffff
    s_mov_b32 s54, 0x100000
    s_mov_b32 s55, 0x20000
    s_add_u32 s56, s20, s8
    s_addc_u32 s57, s21, 0
    s_and_b32 s57, s57, 0xffff
    s_mov_b32 s58, 0x100000
    s_mov_b32 s59, 0x20000
    s_mov_b32 s65, s64
    s_barrier
    """)
    vq = VMQ(A)
    def slot(sl): return 128 + 4 * sl if sl < 32 else 64 + 4 * (sl - 32)
    def kslot(i): return slot(i % WK)
    DEPTH = int(opt.get("depth", 6))
    CTL = opt.get("ctl", "0") in ("1", True)
    DSH = int(opt.get("dsh", 5))
    CKS = [int(x) for x in opt.get("cks", "64,96,128,160,192,224").split(",")]
    ctl_on = [False]
    def pace():
        if not (CTL and ctl_on[0]):
            vq.pace(int(opt.get("d0", DEPTH))); return
        if len(vq.q) >= DSH:
            t = U()
            A("s_cmp_lg_u32 s76, 0"); A(f"s_cbranch_scc1 L_pc{t}"); A(f"s_waitcnt vmcnt({DSH-1})"); A(f"L_pc{t}:")
        vq.pace(DEPTH)
    def ctl_step(pos):
        if not CTL: return
        if pos in CKS:
            A("s_mov_b64 exec, 1"); A(f"ds_add_u32 v17, v19 offset:{CKC}"); A("s_mov_b64 exec, -1")
        if pos >= CKS[0] and pos % 8 == 0:
            A("s_waitcnt lgkmcnt(0)"); A("v_readfirstlane_b32 s76, v18"); A(f"ds_read_b32 v18, v17 offset:{MODE}")
            ctl_on[0] = True
    def kload(i):
        pace()
        if i % 4 == 0 and i > 0: A("s_add_u32 s65, s65, s43")
        A(f"buffer_load_dwordx4 {v4(kslot(i))}, v2, s[52:55], s65 offen offset:{(i%4)*1024} {KVF}")
        vq.issue(("K", i))
    def vslot(v): return slot(v % WV)
    def vload(v):
        pace()
        if v == 0: A("s_mov_b32 s65, s64")
        elif v % 4 == 0: A("s_add_u32 s65, s65, s43")
        A(f"buffer_load_dwordx4 {v4(vslot(v))}, v2, s[56:59], s65 offen offset:{(v%4)*1024} {KVF}")
        vq.issue(("V", v))
    for i in range(WK): kload(i)
    A(f"""
    v_and_b32 v44, 1, v{vC}
    v_cmp_eq_u32 vcc, 1, v44
    v_mov_b32 v45, 0x0000ffff
    v_mov_b32 v46, 0xffff0000
    v_cndmask_b32 v47, v45, v46, vcc
    v_bfe_u32 v44, v{vC}, 1, 2
    v_mov_b32 v46, 0
    """)
    for r in range(4):
        A(f"v_cmp_eq_u32 vcc, {r}, v44")
        A(f"v_cndmask_b32 v{M+r}, v46, v47, vcc")
    A(f"""
    s_mov_b32 s42, {f2u(CSC):#x}
    s_mov_b32 s66, 0xcccccccc
    s_mov_b32 s67, 0xcccccccc
    s_mov_b32 s68, 0xaaaaaaaa
    s_mov_b32 s69, 0xaaaaaaaa
    """)
    A("v_mov_b32 v17, 0"); A("v_mov_b32 v18, 0"); A("v_mov_b32 v19, 1"); A("s_mov_b32 s76, 0")
    lds_spin(QRDY, "nz", 2)
    A(f"""
    v_lshlrev_b32 v46, 4, v{vC}
    ds_read_b128 {v4(Q)}, v46 offset:{QB}
    ds_read_b32 v16, v44 offset:{NONCE}
    s_waitcnt lgkmcnt(0)
    """)
    stamp(1)
    T = 48
    def reduce16(dest):
        for a in range(8):
            A(f"v_add_f32_dpp v{T+a}, v{T+a}, v{T+a} row_ror:8 row_mask:0xf bank_mask:0x3")
            A(f"v_add_f32_dpp v{T+a}, v{T+a+8}, v{T+a+8} row_ror:8 row_mask:0xf bank_mask:0xc")
        for a in range(4):
            A(f"v_add_f32_dpp v{T+a}, v{T+a}, v{T+a} row_half_mirror row_mask:0xf bank_mask:0x5")
            A(f"v_add_f32_dpp v{T+a}, v{T+a+4}, v{T+a+4} row_half_mirror row_mask:0xf bank_mask:0xa")
        for a in range(2):
            A(f"v_cndmask_b32 v{44+2*a}, v{T+a}, v{T+a+2}, s[66:67]")
            A(f"v_cndmask_b32 v{45+2*a}, v{T+a+2}, v{T+a}, s[66:67]")
        for a in range(2):
            A(f"v_add_f32_dpp v{T+a}, v{45+2*a}, v{44+2*a} quad_perm:[2,3,0,1] row_mask:0xf bank_mask:0xf")
        A(f"v_cndmask_b32 v44, v{T}, v{T+1}, s[68:69]")
        A(f"v_cndmask_b32 v45, v{T+1}, v{T}, s[68:69]")
        A(f"v_add_f32_dpp v{dest}, v45, v44 quad_perm:[1,0,3,2] row_mask:0xf bank_mask:0xf")
    SC = 24
    nv = 0
    for j in range(0, 128, 2):
        vq.wait(("K", j + 1))
        for r in range(4 if not opt.get("nodot") else 0):
            for jj in (j, j+1):
                t = T + (jj & 15)
                c = "0" if r == 0 else f"v{t}"
                A(f"v_dot2_f32_bf16 v{t}, v{kslot(jj)+r}, v{Q+r}, {c}")
        for jj in (j, j+1):
            if jj + WK < 128: kload(jj + WK)
            else: vload(nv); nv += 1
        if (j + 1) % 16 == 15 and not opt.get("nodot"): reduce16(SC + (j >> 4))
        ctl_step(j + 2)
        if FINE and (j + 2) % 32 == 0: stamp(1 + (j + 2) // 32)
    if not FINE: stamp(2)
    B = Asm(); _A = A
    sm = []
    class Cap:
        def __call__(self, s):
            for l in s.split("\n"):
                if l.strip(): sm.append(l.strip())
    A = Cap()
    A(f"""
    v_max3_f32 v44, v{SC}, v{SC+1}, v{SC+2}
    v_max3_f32 v44, v44, v{SC+3}, v{SC+4}
    v_max3_f32 v44, v44, v{SC+5}, v{SC+6}
    v_max_f32 v44, v44, v{SC+7}
    """)
    wavereduce("v_max_f32", 44)
    A("v_mul_f32 v46, s42, v44")
    for k in range(8): A(f"v_fma_f32 v{SC+k}, v{SC+k}, s42, -v46")
    for k in range(8): A(f"v_exp_f32 v{SC+k}, v{SC+k}")
    A(f"""
    v_add_f32 v47, v{SC}, v{SC+1}
    v_add_f32 v44, v{SC+2}, v{SC+3}
    v_add_f32 v45, v{SC+4}, v{SC+5}
    v_add_f32 v48, v{SC+6}, v{SC+7}
    v_add_f32 v47, v47, v44
    v_add_f32 v45, v45, v48
    v_add_f32 v47, v47, v45
    """)
    wavereduce("v_add_f32", 47)
    for k in range(8): A(f"v_cvt_pk_bf16_f32 v{SC+k}, v{SC+k}, v{SC+k}")
    A = _A
    extra = WV - nv
    step = max(1, len(sm) // (extra + 1)) if extra > 0 else 0
    for i, l in enumerate(sm):
        A(l)
        if extra > 0 and (i + 1) % step == 0 and nv < WV: vload(nv); nv += 1
    while nv < WV: vload(nv); nv += 1
    A(f"""
    s_lshl_b32 s8, s3, 3
    v_mov_b32 v44, s8
    v_mov_b32 v45, 1
    v_mov_b32 v48, 0
    s_mov_b64 exec, 1
    ds_write_b64 v44, v[46:47] offset:{ST}
    ds_add_u32 v48, v45 offset:{CNTK}
    s_mov_b64 exec, -1
    """)
    for r in range(4): A(f"v_mov_b32 v{4+r}, 0")
    def abuild(v, aset):
        p, jj = SC + (v >> 4), v & 15
        for q in range(4):
            A(f"v_and_b32_dpp v{aset+q}, v{p}, v{M+q} row_newbcast:{jj} row_mask:0xf bank_mask:0xf")
    abuild(0, 8)
    for v in range(128):
        if FINE and v in (32, 64, 96): stamp(5 + v // 32)
        if v == 96:
            lds_spin(SCRDY, "nz", 2)
            A(f"""
            s_lshl_b32 s8, s3, 2
            v_mov_b32 v44, s8
            ds_read_b32 v50, v44 offset:{SCALE}
            """)
        if v + 1 < 128 and not opt.get("nomfma"): abuild(v + 1, 8 + 4*((v+1) & 1))
        vq.wait(("V", v))
        if not opt.get("nomfma"): mfma(4, 8 + 4*(v & 1), vslot(v), "v[4:7]")
        if v + WV < 128: vload(v + WV)
        ctl_step(128 + v + 1)
    stamp(9 if FINE else 3)
    if stamps and opt.get("clk"):
        A("s_memtime s[76:77]"); A("s_waitcnt lgkmcnt(0)"); A("s_sub_u32 s76, s76, s100")
        A("s_lshl_b32 s8, s2, 10"); A("s_lshl_b32 s9, s3, 7"); A("s_add_u32 s8, s8, s9"); A("s_add_u32 s8, s8, 0x2000000")
        A("v_mov_b32 v44, s8"); A("v_mov_b32 v45, s76"); A("s_mov_b64 exec, 1"); A("global_store_dword v44, v45, s[40:41] offset:80"); A("s_mov_b64 exec, -1")
    A("s_waitcnt lgkmcnt(0)")
    for r in range(4): A(f"v_mul_f32 v{4+r}, v{4+r}, v50")
    A(f"""
    v_lshlrev_b32 v46, 5, v{vC}
    v_lshlrev_b32 v47, 4, v{vG}
    v_add_u32 v46, v46, v47
    s_lshl_b32 s8, s3, 9
    v_add_u32 v46, s8, v46
    s_mov_b32 exec_hi, 0
    ds_write_b128 v46, v[4:7] offset:{OP}
    s_mov_b32 exec_hi, -1
    s_waitcnt lgkmcnt(0)
    s_barrier
    s_cmp_eq_u32 s3, 0
    s_cbranch_scc0 L_sexit
    v_lshlrev_b32 v46, 4, v1
    s_mov_b32 exec_hi, 0
    """)
    for w in range(4): A(f"ds_read_b128 {v4(128+4*w)}, v46 offset:{OP+512*w}")
    settags(16, 20)
    A(f"""
    s_lshl_b32 s8, s7, 1
    s_add_u32 s8, s8, s6
    s_lshl_b32 s8, s8, 9
    s_add_u32 s8, s8, {OX}
    v_add_u32 v46, s8, v46
    s_waitcnt lgkmcnt(0)
    """)
    for k in (0, 2):
        pk(128+k, 128+k, 132+k); pk(136+k, 136+k, 140+k); pk(128+k, 128+k, 136+k)
    tag4(128, 20)
    A(f"""
    global_store_dwordx4 v46, v[128:131], s[40:41] sc1
    s_mov_b32 exec_hi, -1
    L_sexit:
    """)
    store_stamps(10 if FINE else 4)
    A("s_endpgm")

    A("L_H:")
    SELX = 24
    A(f"""
    s_setprio 3
    s_sub_u32 s71, s3, 4
    s_lshl_b32 s72, s5, 1
    s_add_u32 s72, s72, s6
    v_and_b32 v44, 1, v{vC}
    v_cmp_eq_u32 vcc, 1, v44
    v_mov_b32 v45, 0x0c0c0100
    v_mov_b32 v46, 0x01000c0c
    v_cndmask_b32 v47, v45, v46, vcc
    v_mov_b32 v45, 0x0c0c0302
    v_mov_b32 v46, 0x03020c0c
    v_cndmask_b32 v48, v45, v46, vcc
    v_bfe_u32 v44, v{vC}, 1, 2
    v_mov_b32 v45, 0x0c0c0c0c
    v_cmp_gt_u32 s[12:13], 8, v{vC}
    """)
    for r in range(4):
        A(f"v_cmp_eq_u32 vcc, {r}, v44")
        A(f"v_cndmask_b32 v{SELL+r}, v45, v47, vcc")
        A(f"v_cndmask_b32 v{SELH+r}, v45, v48, vcc")
        A(f"v_cndmask_b32 v{SELX+r}, v{SELH+r}, v{SELL+r}, s[12:13]")
    A(f"""
    s_lshr_b32 s8, s72, 1
    s_mul_i32 s8, s8, 160
    s_mul_i32 s9, s71, 40
    s_add_u32 s8, s8, s9
    v_mul_u32_u24 v44, 10, v{vG}
    v_add_u32 v44, s8, v44
    v_lshlrev_b32 v46, 1, v44
    v_lshrrev_b32 v45, 3, v{vC}
    v_add_u32 v45, v44, v45
    v_lshlrev_b32 v45, 13, v45
    v_and_b32 v47, 7, v{vC}
    v_lshlrev_b32 v47, 4, v47
    v_add_u32 v48, v45, v47
    s_waitcnt lgkmcnt(0)
    s_or_b32 s8, s2, s71
    s_cmp_eq_u32 s8, 0
    s_cbranch_scc0 L_nononce
    s_memrealtime s[8:9]
    s_waitcnt lgkmcnt(0)
    s_or_b32 s8, s8, 1
    s_mul_i32 s8, s8, 0x9e3779b1
    v_lshlrev_b32 v44, 6, v1
    v_mov_b32 v45, s8
    s_mov_b64 exec, 15
    global_store_dword v44, v45, s[38:39] sc1
    s_mov_b64 exec, -1
    L_nononce:
    s_mov_b32 s44, s16
    s_and_b32 s45, s17, 0xffff
    s_mov_b32 s46, 5120
    s_mov_b32 s47, 0x20000
    s_lshl_b32 s8, s4, 8
    s_and_b32 s9, s72, 1
    s_lshl_b32 s9, s9, 7
    s_add_u32 s8, s8, s9
    s_add_u32 s48, s22, s8
    s_addc_u32 s49, s23, 0
    s_and_b32 s49, s49, 0xffff
    s_sub_u32 s50, 5242880, s8
    s_mov_b32 s51, 0x20000
    """)
    XQ = 56; WQr = 80
    A(f"""
    s_mul_i32 s8, s71, 1280
    v_lshlrev_b32 v44, 4, v1
    v_add_u32 v45, s8, v44
    s_add_u32 s9, s8, {XL}
    s_mov_b32 m0, s9
    s_mov_b32 s60, s34
    s_and_b32 s61, s35, 0xffff
    s_mov_b32 s62, 1280
    s_mov_b32 s63, 0x20000
    buffer_load_dwordx4 v45, s[44:47], 0 offen lds
    s_add_u32 m0, s9, 1024
    s_mov_b32 s64, 1024
    s_mov_b64 exec, 0xffff
    buffer_load_dwordx4 v45, s[44:47], s64 offen lds
    s_mov_b64 exec, -1
    s_cmp_eq_u32 s71, 0
    s_cbranch_scc0 L_nogw
    s_mov_b32 m0, {GWL}
    s_nop 0
    buffer_load_dwordx4 v44, s[60:63], 0 offen lds
    s_mov_b32 m0, {GWL+1024}
    s_mov_b64 exec, 0xffff
    buffer_load_dwordx4 v44, s[60:63], s64 offen lds
    s_mov_b64 exec, -1
    L_nogw:
    """)
    for i in range(5):
        A(f"s_mov_b32 s64, {2*i*8192}")
        A(f"buffer_load_dwordx4 {v4(WQr+4*i)}, v48, s[48:51], s64 offen {WF}")
    A("s_waitcnt lgkmcnt(0)")
    A("s_barrier")
    A(f"""
    s_cmp_eq_u32 s71, 0
    s_cbranch_scc0 L_nopoll
    s_sleep {NSLEEP}
    """)
    for k in range(4):
        A(f"s_load_dword s74, s[38:39], {64*k}")
        A("s_waitcnt lgkmcnt(0)"); A("s_cmp_lg_u32 s74, 0"); A("s_cbranch_scc1 L_ngot")
        if k < 3: A("s_sleep 3")
    A(f"""
    v_mov_b32 v44, 0
    s_mov_b32 s73, {SPIN}
    L_npoll:
    global_load_dword v45, v44, s[38:39] sc1
    s_waitcnt vmcnt(0)
    v_readfirstlane_b32 s74, v45
    s_cmp_lg_u32 s74, 0
    s_cbranch_scc1 L_ngot
    s_sub_u32 s73, s73, 1
    s_cbranch_scc0 L_npoll
    L_ngot:
    v_mov_b32 v44, 0
    v_mov_b32 v45, s74
    s_mov_b64 exec, 1
    ds_write_b32 v44, v45 offset:{NONCE}
    s_mov_b64 exec, -1
    L_nopoll:
    s_waitcnt vmcnt(5)
    """)
    hbarrier(1)
    for b in range(4): A(f"v_add_u32 v{100+b}, {XL + 1280*b}, v46")
    for b in range(4):
        A(f"ds_read2_b32 v[{XQ+6*b}:{XQ+6*b+1}], v{100+b} offset0:0 offset1:1")
        A(f"ds_read2_b32 v[{XQ+6*b+2}:{XQ+6*b+3}], v{100+b} offset0:2 offset1:3")
        A(f"ds_read_b32 v{XQ+6*b+4}, v{100+b} offset:16")
    A("s_waitcnt vmcnt(0) lgkmcnt(0)")
    stamp(1)
    def xq(b, i): return XQ + 6*b + i
    DQ = [4, 48, 52, 104]
    n = 0
    for i in range(5):
        for b in range(4):
            aset = 8 + 4 * (n & 1)
            for r in range(4): A(f"v_perm_b32 v{aset+r}, v{xq(b,i)}, v{xq(b,i)}, v{SELX+r}")
            mfma(DQ[b], aset, WQr + 4*i, "0" if i == 0 else v4(DQ[b]))
            n += 1
    A(f"""
    s_lshl_b32 s8, s71, 11
    v_lshrrev_b32 v45, 1, v{vG}
    v_lshlrev_b32 v45, 8, v45
    v_and_b32 v46, 7, v{vC}
    v_lshlrev_b32 v46, 5, v46
    v_add_u32 v45, v45, v46
    v_and_b32 v46, 1, v{vG}
    v_lshlrev_b32 v46, 4, v46
    v_add_u32 v45, v45, v46
    v_add_u32 v45, s8, v45
    s_mov_b32 exec_lo, 0x00ff00ff
    s_mov_b32 exec_hi, 0xff00ff00
    """)
    for b in range(4): A(f"ds_write_b128 v45, {v4(DQ[b])} offset:{GP+512*b}")
    A("s_mov_b64 exec, -1")
    hbarrier(2)
    A(f"""
    v_mov_b32 v44, 0
    ds_read_b32 v32, v44 offset:{NONCE}
    s_lshl_b32 s8, s71, 9
    v_lshlrev_b32 v45, 4, v{vC}
    v_add_u32 v45, s8, v45
    """)
    for w in range(4):
        for rho in range(2): A(f"ds_read_b128 {v4(56+8*w+4*rho)}, v45 offset:{GP+w*2048+rho*256}")
    A(f"""
    s_lshl_b32 s10, s4, 3
    s_add_u32 s10, s10, s72
    s_lshl_b32 s10, s10, 2
    s_add_u32 s10, s10, s71
    s_lshl_b32 s10, s10, 8
    s_add_u32 s10, s10, {QX}
    v_lshlrev_b32 v46, 4, v{vC}
    v_add_u32 v46, s10, v46
    s_waitcnt lgkmcnt(0)
    v_readfirstlane_b32 s74, v32
    """)
    settags(32, TG)
    def sum_quads(regs):
        regs = list(regs)
        while len(regs) > 1:
            nx = []
            for a in range(0, len(regs) - 1, 2):
                for k in (0, 2): pk(regs[a]+k, regs[a]+k, regs[a+1]+k)
                nx.append(regs[a])
            if len(regs) % 2: nx.append(regs[-1])
            regs = nx
    sum_quads([56+4*k for k in range(8)])
    tag4(56)
    A(f"""
    s_mov_b64 exec, 0xffff
    global_store_dwordx4 v46, v[56:59], s[40:41] sc1
    s_mov_b64 exec, -1
    """)
    stamp(2)
    def rows_reduce(regs):
        for r in regs: A(f"v_mov_b32 v{r+32}, v{r}")
        for r in regs: A(f"v_permlane16_swap_b32 v{r}, v{r+32}")
        for r in regs: A(f"v_add_f32 v{r}, v{r}, v{r+32}")
        for r in regs: A(f"v_mov_b32 v{r+32}, v{r}")
        for r in regs: A(f"v_permlane32_swap_b32 v{r}, v{r+32}")
        for r in regs: A(f"v_add_f32 v{r}, v{r}, v{r+32}")
    A(f"""
    s_cmp_eq_u32 s71, 0
    s_cbranch_scc0 L_noq
    s_lshl_b32 s10, s4, 5
    s_add_u32 s10, s10, s5
    s_lshl_b32 s10, s10, 8
    s_add_u32 s10, s10, {QX}
    v_lshlrev_b32 v46, 11, v{vG}
    v_lshlrev_b32 v47, 4, v{vC}
    v_add_u32 v46, v46, v47
    v_add_u32 v46, s10, v46
    s_mov_b32 s73, {SPIN}
    s_sleep {QSLEEP}
    L_qpoll:
    global_load_dwordx4 v[56:59], v46, s[40:41] sc1
    global_load_dwordx4 v[60:63], v46, s[40:41] offset:1024 sc1
    s_waitcnt vmcnt(0)
    """)
    chk4([56, 60], "L_qok")
    A(f"""
    s_sub_u32 s73, s73, 1
    s_cbranch_scc0 L_qpoll
    L_qok:
    """)
    rows_reduce(range(56, 64))
    A(f"""
    v_cvt_pk_bf16_f32 v56, v56, v57
    v_cvt_pk_bf16_f32 v57, v58, v59
    v_cvt_pk_bf16_f32 v58, v60, v61
    v_cvt_pk_bf16_f32 v59, v62, v63
    v_lshlrev_b32 v45, 3, v{vC}
    v_mov_b32 v44, 0
    v_mov_b32 v47, 1
    s_mov_b64 exec, 0xffff
    ds_write_b64 v45, v[56:57] offset:{QB}
    ds_write_b64 v45, v[58:59] offset:{QB+128}
    s_mov_b64 exec, 1
    ds_write_b32 v44, v47 offset:{QRDY}
    s_mov_b64 exec, -1
    L_noq:
    """)
    stamp(3)
    def idle_end():
        A(f"""
        v_mov_b32 v44, 0
        v_mov_b32 v45, 1
        v_mov_b32 v46, 1.0
        ds_write_b32 v44, v46 offset:{SCALE}
        ds_write_b32 v44, v46 offset:{SCALE+4}
        ds_write_b32 v44, v46 offset:{SCALE+8}
        ds_write_b32 v44, v46 offset:{SCALE+12}
        ds_write_b32 v44, v45 offset:{SCRDY}
        s_waitcnt lgkmcnt(0)
        s_barrier
        s_branch L_hend
        """)
    HST = int(opt.get("hstop", 0))
    if opt.get("hidle"): idle_end()
    A(f"""
    s_setprio {BP}
    s_lshr_b32 s8, s2, 3
    s_and_b32 s9, s8, 3
    s_lshl_b32 s9, s9, 1
    s_add_u32 s9, s9, 1
    s_and_b32 s10, s2, 7
    s_mul_i32 s8, s8, 7
    s_add_u32 s8, s8, s10
    s_cmp_gt_u32 s10, s9
    s_cselect_b32 s11, 1, 0
    s_sub_u32 s8, s8, s11
    s_lshr_b32 s76, s8, 3
    s_and_b32 s77, s8, 7
    s_cmp_lt_u32 s8, 216
    s_cselect_b32 s75, 1, 0
    s_cmp_eq_u32 s10, s9
    s_cselect_b32 s75, 0, s75
    """)
    if opt.get("noffn"): A("s_mov_b32 s75, 0")
    A(f"""
    s_mul_i32 s8, s4, 163840
    s_mul_i32 s9, s72, 160
    s_add_u32 s8, s8, s9
    s_add_u32 s48, s24, s8
    s_addc_u32 s49, s25, 0
    s_and_b32 s49, s49, 0xffff
    s_sub_u32 s50, 5242880, s8
    s_mov_b32 s51, 0x20000
    v_mul_u32_u24 v46, 2560, v{vG}
    v_lshlrev_b32 v47, 4, v{vC}
    v_add_u32 v46, v46, v47
    s_mul_i32 s8, s71, {32*1280}
    v_add_u32 v46, s8, v46
    v_mov_b32 v47, 0x7ff00000
    v_cmp_gt_u32 vcc, 10, v{vC}
    v_cndmask_b32 v46, v47, v46, vcc
    s_lshl_b32 s9, s71, 13
    s_add_u32 s9, s9, {WOL}
    """)
    WOM = opt.get("wom", "dma")
    for i in range(8 if HST != 1 else 0):
        t, s_ = i >> 1, i & 1
        if WOM == "dma":
            A(f"s_add_u32 m0, s9, {i*1024}")
            A(f"s_mov_b32 s64, {(8*t+s_)*1280}")
            A(f"buffer_load_dwordx4 v46, s[48:51], s64 offen {WF} lds")
        elif WOM == "dmax":
            A("s_mov_b32 exec_lo, 0x03ff03ff"); A("s_mov_b32 exec_hi, 0x03ff03ff")
            A(f"s_add_u32 m0, s9, {i*1024}")
            A(f"s_mov_b32 s64, {(8*t+s_)*1280}")
            A(f"buffer_load_dwordx4 v46, s[48:51], s64 offen {WF} lds")
            A("s_mov_b64 exec, -1")
        else:
            A(f"s_mov_b32 s64, {(8*t+s_)*1280}")
            A(f"buffer_load_dwordx4 {v4(192+4*i)}, v46, s[48:51], s64 offen {WF}")
    W1r = 96; W2r = 120
    A("s_cmp_eq_u32 s75, 1"); A("s_cbranch_scc0 L_nobulk")
    A(f"""
    s_and_b32 s8, s77, 1
    s_cmp_eq_u32 s8, 0
    s_cselect_b32 s60, s28, s30
    s_cselect_b32 s61, s29, s31
    s_lshl_b32 s8, s76, 7
    s_add_u32 s60, s60, s8
    s_addc_u32 s61, s61, 0
    s_and_b32 s61, s61, 0xffff
    s_sub_u32 s62, {640*3456}, s8
    s_mov_b32 s63, 0x20000
    s_lshr_b32 s8, s77, 1
    s_mul_i32 s8, s8, 160
    s_mul_i32 s9, s71, 40
    s_add_u32 s8, s8, s9
    v_mul_u32_u24 v44, 10, v{vG}
    v_add_u32 v44, s8, v44
    v_lshlrev_b32 v41, 1, v44
    v_lshrrev_b32 v45, 3, v{vC}
    v_add_u32 v45, v44, v45
    v_mul_u32_u24 v45, 3456, v45
    v_and_b32 v47, 7, v{vC}
    v_lshlrev_b32 v47, 4, v47
    v_add_u32 v45, v45, v47
    """)
    for i in range(5):
        A(f"s_mov_b32 s64, {2*i*3456}")
        A(f"buffer_load_dwordx4 {v4(W1r+4*i)}, v45, s[60:63], s64 offen {WF}")
    A(f"""
    s_lshl_b32 s8, s76, 6
    s_lshl_b32 s9, s71, 4
    s_add_u32 s8, s8, s9
    s_mul_i32 s8, s8, 1280
    s_mul_i32 s9, s77, 160
    s_add_u32 s8, s8, s9
    s_add_u32 s60, s32, s8
    s_addc_u32 s61, s33, 0
    s_and_b32 s61, s61, 0xffff
    s_sub_u32 s62, {1728*1280}, s8
    s_mov_b32 s63, 0x20000
    v_mul_u32_u24 v46, 2560, v{vG}
    v_lshlrev_b32 v47, 4, v{vC}
    v_add_u32 v46, v46, v47
    v_mov_b32 v47, 0x7ff00000
    v_cmp_gt_u32 vcc, 10, v{vC}
    v_cndmask_b32 v46, v47, v46, vcc
    """)
    for ts in range(4):
        A(f"s_mov_b32 s64, {(8*(ts>>1)+(ts&1))*1280}")
        A(f"buffer_load_dwordx4 {v4(W2r+4*ts)}, v46, s[60:63], s64 offen {WF}")
    A("L_nobulk:")
    A("s_waitcnt vmcnt(0)")
    if WOM == "reg" and HST != 1:
        A(f"""
        s_lshl_b32 s9, s71, 13
        s_add_u32 s9, s9, {WOL}
        v_lshlrev_b32 v45, 4, v1
        v_add_u32 v45, s9, v45
        """)
        for i in range(8): A(f"ds_write_b128 v45, {v4(192+4*i)} offset:{1024*i}")
    A(f"""
    v_mul_u32_u24 v44, 20, v1
    s_mul_i32 s8, s71, 1280
    s_add_u32 s8, s8, {XL}
    v_add_u32 v45, s8, v44
    v_add_u32 v44, {GWL}, v44
    ds_read2_b32 v[36:37], v45 offset0:0 offset1:1
    ds_read2_b32 v[38:39], v45 offset0:2 offset1:3
    ds_read_b32 v40, v45 offset:16
    ds_read2_b32 v[48:49], v44 offset0:0 offset1:1
    ds_read2_b32 v[50:51], v44 offset0:2 offset1:3
    ds_read_b32 v52, v44 offset:16
    s_waitcnt lgkmcnt(0)
    """)
    A("v_dot2_f32_bf16 v33, v36, v48, 0")
    for t in range(1, 5): A(f"v_dot2_f32_bf16 v33, v{36+t}, v{48+t}, v33")
    wavereduce("v_add_f32", 33)
    A(f"""
    v_mul_f32 v33, {f2u(-LOG2E):#x}, v33
    v_exp_f32 v33, v33
    v_add_f32 v33, 1.0, v33
    v_rcp_f32 v33, v33
    v_sub_f32 v32, 1.0, v33
    s_setprio 3
    """)
    hbarrier(3, 2)
    stamp(4)
    if HST in (1, 2): idle_end()
    A("s_cmp_eq_u32 s75, 1"); A("s_cbranch_scc0 L_noffn")
    for b in range(4): A(f"v_add_u32 v{100+16+b}, {XL + 1280*b}, v41")
    for b in range(4):
        A(f"ds_read2_b32 v[{XQ+6*b}:{XQ+6*b+1}], v{116+b} offset0:0 offset1:1")
        A(f"ds_read2_b32 v[{XQ+6*b+2}:{XQ+6*b+3}], v{116+b} offset0:2 offset1:3")
        A(f"ds_read_b32 v{XQ+6*b+4}, v{116+b} offset:16")
    A("s_waitcnt lgkmcnt(0)")
    DF = [4, 48, 52, 80]
    n = 0
    for i in range(5):
        for b in range(4):
            aset = 8 + 4 * (n & 1)
            for r in range(4): A(f"v_perm_b32 v{aset+r}, v{xq(b,i)}, v{xq(b,i)}, v{SELX+r}")
            mfma(DF[b], aset, W1r + 4*i, "0" if i == 0 else v4(DF[b]))
            n += 1
    A(f"""
    s_lshl_b32 s8, s71, 11
    v_lshrrev_b32 v45, 1, v{vG}
    v_lshlrev_b32 v45, 8, v45
    v_and_b32 v46, 7, v{vC}
    v_lshlrev_b32 v46, 5, v46
    v_add_u32 v45, v45, v46
    v_and_b32 v46, 1, v{vG}
    v_lshlrev_b32 v46, 4, v46
    v_add_u32 v45, v45, v46
    v_add_u32 v45, s8, v45
    s_mov_b32 exec_lo, 0x00ff00ff
    s_mov_b32 exec_hi, 0xff00ff00
    """)
    for b in range(4): A(f"ds_write_b128 v45, {v4(DF[b])} offset:{GP+512*b}")
    A("s_mov_b64 exec, -1")
    hbarrier(4)
    A(f"""
    s_lshl_b32 s8, s71, 9
    v_lshlrev_b32 v45, 4, v{vC}
    v_add_u32 v45, s8, v45
    """)
    for w in range(4):
        for rho in range(2): A(f"ds_read_b128 {v4(56+8*w+4*rho)}, v45 offset:{GP+w*2048+rho*256}")
    A(f"""
    s_lshl_b32 s10, s76, 3
    s_add_u32 s10, s10, s77
    s_lshl_b32 s10, s10, 2
    s_add_u32 s10, s10, s71
    s_lshl_b32 s10, s10, 8
    s_add_u32 s10, s10, {FX}
    v_lshlrev_b32 v46, 4, v{vC}
    v_add_u32 v46, s10, v46
    s_waitcnt lgkmcnt(0)
    """)
    sum_quads([56+4*k for k in range(8)])
    tag4(56)
    A(f"""
    s_mov_b64 exec, 0xffff
    global_store_dwordx4 v46, v[56:59], s[40:41] sc1
    s_mov_b64 exec, -1
    s_lshl_b32 s10, s76, 5
    s_add_u32 s10, s10, s71
    s_lshl_b32 s10, s10, 8
    s_add_u32 s10, s10, {FX}
    v_lshlrev_b32 v46, 11, v{vG}
    v_lshlrev_b32 v47, 4, v{vC}
    v_add_u32 v46, v46, v47
    v_add_u32 v46, s10, v46
    s_mov_b32 s73, {SPIN}
    s_sleep {FSL}
    L_fpoll:
    global_load_dwordx4 v[60:63], v46, s[40:41] offset:1024 sc1
    global_load_dwordx4 v[56:59], v46, s[40:41] sc1
    s_waitcnt vmcnt(0)
    """)
    chk4([56, 60], "L_fok")
    A(f"""
    s_sleep {FSL}
    s_sub_u32 s73, s73, 1
    s_cbranch_scc0 L_fpoll
    L_fok:
    """)
    rows_reduce(range(56, 64))
    for k in range(4): A(f"v_mul_f32 v{64+k}, {f2u(-LOG2E):#x}, v{56+k}")
    for k in range(4): A(f"v_exp_f32 v{64+k}, v{64+k}")
    for k in range(4): A(f"v_add_f32 v{64+k}, 1.0, v{64+k}")
    for k in range(4): A(f"v_rcp_f32 v{64+k}, v{64+k}")
    for k in range(4): A(f"v_mul_f32 v{56+k}, v{56+k}, v{64+k}")
    for k in range(4): A(f"v_mul_f32 v{56+k}, v{56+k}, v{60+k}")
    A(f"""
    v_cvt_pk_bf16_f32 v56, v56, v57
    v_cvt_pk_bf16_f32 v57, v58, v59
    s_lshl_b32 s8, s71, 7
    v_lshlrev_b32 v45, 3, v{vC}
    v_add_u32 v45, s8, v45
    s_mov_b64 exec, 0xffff
    ds_write_b64 v45, v[56:57] offset:{HB}
    s_mov_b64 exec, -1
    """)
    hbarrier(5)
    A(f"""
    v_lshrrev_b32 v45, 3, v{vC}
    v_lshlrev_b32 v45, 7, v45
    v_lshlrev_b32 v46, 2, v{vG}
    v_add_u32 v45, v45, v46
    s_lshl_b32 s8, s71, 5
    v_add_u32 v45, s8, v45
    ds_read_b32 v56, v45 offset:{HB}
    ds_read_b32 v57, v45 offset:{HB+16}
    ds_read_b32 v58, v45 offset:{HB+256}
    ds_read_b32 v59, v45 offset:{HB+256+16}
    s_waitcnt lgkmcnt(0)
    """)
    D2 = [4, 52]
    n = 0
    for ts in range(4):
        for p in range(2):
            aset = 8 + 4 * (n & 1)
            perms(56 + 2*p + (ts >> 1), ts & 1, aset)
            mfma(D2[p], aset, W2r + 4*ts, "0" if ts == 0 else v4(D2[p]))
            n += 1
    A(f"""
    s_lshl_b32 s8, s71, 11
    s_add_u32 s8, s8, {YP2}
    v_lshlrev_b32 v45, 4, v1
    v_add_u32 v45, s8, v45
    ds_write_b128 v45, {v4(D2[0])}
    ds_write_b128 v45, {v4(D2[1])} offset:1024
    """)
    hbarrier(6)
    A(f"""
    s_lshr_b32 s8, s71, 1
    s_lshl_b32 s8, s8, 10
    s_and_b32 s9, s71, 1
    s_lshl_b32 s9, s9, 9
    s_add_u32 s8, s8, s9
    s_add_u32 s8, s8, {YP2}
    v_and_b32 v45, 1, v1
    v_lshlrev_b32 v45, 8, v45
    v_bfe_u32 v46, v1, 1, 4
    v_lshlrev_b32 v46, 4, v46
    v_add_u32 v45, v45, v46
    v_add_u32 v45, s8, v45
    """)
    for w in range(4): A(f"ds_read_b128 {v4(56+4*w)}, v45 offset:{w*2048}")
    A(f"""
    s_lshl_b32 s10, s77, 2
    s_add_u32 s10, s10, s71
    s_mul_i32 s10, s10, 27
    s_add_u32 s10, s10, s76
    s_lshl_b32 s10, s10, 9
    s_add_u32 s10, s10, {FY}
    v_lshlrev_b32 v46, 4, v1
    v_add_u32 v46, s10, v46
    s_waitcnt lgkmcnt(0)
    """)
    sum_quads([56, 60, 64, 68])
    for k in range(4): A(f"v_mul_f32 v{56+k}, v{56+k}, v32")
    tag4(56)
    A(f"""
    s_mov_b64 exec, 0xfffff
    global_store_dwordx4 v46, v[56:59], s[40:41] sc1
    s_mov_b64 exec, -1
    """)
    A("L_noffn:")
    stamp(5)
    WOr = 128
    A(f"""
    v_lshlrev_b32 v45, 4, v1
    v_add_u32 v45, {WOL}, v45
    """)
    for i in range(32):
        A(f"ds_read_b128 {v4(WOr+4*i)}, v45 offset:{1024*i}")
        if i % 8 == 7: A("s_waitcnt lgkmcnt(0)")
    A(f"""
    s_bfe_u32 s9, s2, 0x20003
    s_lshl_b32 s9, s9, 1
    s_add_u32 s9, s9, 1
    s_and_b32 s8, s2, 7
    s_cmp_eq_u32 s8, s9
    s_cselect_b32 s75, 1, 0
    s_lshr_b32 s76, s2, 5
    s_bfe_u32 s77, s2, 0x20003
    """)
    FSUM = 36
    M20 = 0x000fffff000fffff
    A("s_cmp_eq_u32 s75, 1"); A("s_cbranch_scc0 L_nocol")
    if not opt.get("noffn") :
        A(f"""
        s_lshl_b32 s8, s76, 2
        s_add_u32 s8, s8, s77
        s_mul_i32 s8, s8, 27
        s_add_u32 s8, s8, s71
        s_lshl_b32 s8, s8, 9
        s_add_u32 s8, s8, {FY}
        v_lshrrev_b32 v46, 5, v1
        v_lshlrev_b32 v46, 11, v46
        v_and_b32 v47, 31, v1
        v_lshlrev_b32 v47, 4, v47
        v_add_u32 v46, v46, v47
        v_add_u32 v46, s8, v46
        s_mov_b32 s73, {SPIN}
        L_cpoll:
        v_mov_b32 v48, v46
        """)
        for k in range(4):
            if k < 3: A(f"s_mov_b32 exec_lo, 0x000fffff"); A("s_mov_b32 exec_hi, 0x000fffff")
            else:
                A("s_cmp_lt_u32 s71, 3"); A("s_cbranch_scc0 L_cskip"); A("s_mov_b32 exec_lo, 0x000fffff"); A("s_mov_b32 exec_hi, 0")
            A(f"global_load_dwordx4 {v4(56+4*k)}, v48, s[40:41] sc1")
            A("s_mov_b64 exec, -1")
            if k == 3: A("L_cskip:")
            if k < 3: A(f"v_add_u32 v48, {8*512}, v48")
        A("s_waitcnt vmcnt(0)")
        A(f"""
        v_and_b32 v44, 31, v1
        v_cmp_le_u32 vcc, 20, v44
        """)
        for k in range(4):
            for r in range(4): A(f"v_cndmask_b32 v{56+4*k+r}, v{56+4*k+r}, v{TG+r}, vcc")
        A(f"""
        s_cmp_lt_u32 s71, 3
        s_cselect_b32 s8, 0xffffffff, 0
        s_mov_b32 s9, 0
        s_not_b64 vcc, s[8:9]
        """)
        for r in range(4): A(f"v_cndmask_b32 v{68+r}, v{68+r}, v{TG+r}, vcc")
        chk4([56, 60, 64, 68], "L_cok")
        A(f"""
        s_sleep 64
        s_sub_u32 s73, s73, 1
        s_cbranch_scc0 L_cpoll
        L_cok:
        """)
        sum_quads([56, 60, 64, 68])
        for r in range(4): A(f"v_mov_b32 v{60+r}, v{56+r}")
        for r in range(4): A(f"v_permlane32_swap_b32 v{56+r}, v{60+r}")
        for r in range(4): A(f"v_add_f32 v{56+r}, v{56+r}, v{60+r}")
        A(f"""
        s_lshl_b32 s8, s71, 9
        v_lshlrev_b32 v45, 4, v1
        v_add_u32 v45, s8, v45
        s_mov_b32 exec_hi, 0
        ds_write_b128 v45, v[56:59] offset:{FS}
        s_mov_b32 exec_hi, -1
        """)
        hbarrier(4)
        A(f"v_lshlrev_b32 v45, 4, v1")
        A("s_mov_b32 exec_hi, 0")
        for w in range(4): A(f"ds_read_b128 {v4(56+4*w)}, v45 offset:{FS+512*w}")
        A("s_mov_b32 exec_hi, -1")
        A("s_waitcnt lgkmcnt(0)")
        sum_quads([56, 60, 64, 68])
        for r in range(4): A(f"v_mov_b32 v{FSUM+r}, v{56+r}")
    else:
        for r in range(4): A(f"v_mov_b32 v{FSUM+r}, 0")
    A("L_nocol:")
    if CTL:
        A("s_cmp_eq_u32 s71, 1"); A("s_cbranch_scc0 L_noctl")
        A(f"""
        s_lshl_b32 s8, s2, 7
        s_add_u32 s8, s8, {PF}
        v_mov_b32 v46, s8
        s_xor_b32 s8, s2, 3
        s_lshl_b32 s8, s8, 7
        s_add_u32 s8, s8, {PF}
        v_mov_b32 v47, s8
        v_mov_b32 v44, 0
        v_mov_b32 v48, s74
        s_mov_b32 s11, 0
        s_mov_b64 exec, 1
        L_ctl:
        s_add_u32 s11, s11, 1
        s_lshl_b32 s9, s11, 2
        s_sub_u32 s9, s9, {int(opt.get("ckq", 1))}
        s_mov_b32 s73, {SPIN}
        L_ctl_w:
        ds_read_b32 v45, v44 offset:{CKC}
        s_waitcnt lgkmcnt(0)
        v_readfirstlane_b32 s8, v45
        s_cmp_ge_u32 s8, s9
        s_cbranch_scc1 L_ctl_go
        s_sleep 4
        s_sub_u32 s73, s73, 1
        s_cbranch_scc0 L_ctl_w
        L_ctl_go:
        global_store_dword v46, v48, s[40:41] sc1
        global_load_dword v45, v47, s[40:41] sc1
        s_waitcnt vmcnt(0)
        v_readfirstlane_b32 s8, v45
        s_cmp_eq_u32 s8, s74
        s_cselect_b32 s8, 1, 0
        v_mov_b32 v45, s8
        ds_write_b32 v44, v45 offset:{MODE}
        v_add_u32 v46, 4, v46
        v_add_u32 v47, 4, v47
        s_cmp_lt_u32 s11, {len(CKS)}
        s_cbranch_scc1 L_ctl
        s_mov_b64 exec, -1
        s_branch L_B2
        L_noctl:
        """)
    lds_spin(CNTK, "ge", 8, 4)
    A("s_cmp_eq_u32 s71, 0"); A("s_cbranch_scc0 L_nostat")
    A(f"""
    v_and_b32 v44, 3, v1
    v_lshlrev_b32 v44, 3, v44
    ds_read_b64 v[46:47], v44 offset:{ST}
    s_waitcnt lgkmcnt(0)
    v_mov_b32 v48, v46
    v_max_f32_dpp v48, v48, v48 quad_perm:[2,3,0,1] row_mask:0xf bank_mask:0xf
    v_max_f32_dpp v48, v48, v48 quad_perm:[1,0,3,2] row_mask:0xf bank_mask:0xf
    v_sub_f32 v49, v46, v48
    v_exp_f32 v49, v49
    v_mul_f32 v49, v49, v47
    v_add_f32_dpp v49, v49, v49 quad_perm:[2,3,0,1] row_mask:0xf bank_mask:0xf
    v_add_f32_dpp v49, v49, v49 quad_perm:[1,0,3,2] row_mask:0xf bank_mask:0xf
    s_lshl_b32 s8, s2, 7
    s_add_u32 s8, s8, {SX}
    v_mov_b32 v44, s8
    v_mov_b32 v56, v48
    v_mov_b32 v57, s74
    v_mov_b32 v58, v49
    v_mov_b32 v59, s74
    s_mov_b64 exec, 1
    global_store_dwordx4 v44, v[56:59], s[40:41] sc1
    s_xor_b32 s8, s2, 3
    s_lshl_b32 s8, s8, 7
    s_add_u32 s8, s8, {SX}
    v_mov_b32 v44, s8
    s_mov_b32 s73, {SPIN}
    L_pspin:
    global_load_dwordx4 v[60:63], v44, s[40:41] sc1
    s_waitcnt vmcnt(0)
    """)
    check_tags([61, 63], "L_pok")
    A(f"""
    s_sleep 32
    s_sub_u32 s73, s73, 1
    s_cbranch_scc0 L_pspin
    L_pok:
    v_readfirstlane_b32 s8, v60
    v_readfirstlane_b32 s9, v62
    s_mov_b64 exec, -1
    v_mov_b32 v60, s8
    v_mov_b32 v62, s9
    v_max_f32 v52, v48, v60
    v_sub_f32 v53, v48, v52
    v_sub_f32 v54, v60, v52
    v_exp_f32 v53, v53
    v_exp_f32 v54, v54
    v_mul_f32 v53, v53, v49
    v_fma_f32 v53, v54, v62, v53
    v_rcp_f32 v53, v53
    v_sub_f32 v54, v46, v52
    v_exp_f32 v54, v54
    v_mul_f32 v54, v54, v53
    v_and_b32 v44, 3, v1
    v_lshlrev_b32 v44, 2, v44
    v_mov_b32 v45, 1
    v_mov_b32 v55, 0
    s_mov_b64 exec, 15
    ds_write_b32 v44, v54 offset:{SCALE}
    s_mov_b64 exec, 1
    ds_write_b32 v55, v45 offset:{SCRDY}
    s_mov_b64 exec, -1
    L_nostat:
    """)
    A("L_B2:")
    if HST == 3: A("s_waitcnt lgkmcnt(0)"); A("s_barrier"); A("s_branch L_hend")
    A(f"""
    s_lshl_b32 s10, s71, 6
    s_lshl_b32 s9, s4, 1
    s_add_u32 s10, s10, s9
    s_lshl_b32 s10, s10, 9
    s_add_u32 s10, s10, {OX}
    v_lshlrev_b32 v46, 4, v1
    v_add_u32 v46, s10, v46
    v_lshlrev_b32 v49, 9, v1
    v_add_u32 v49, s10, v49
    v_and_b32 v47, 1, v1
    v_lshlrev_b32 v47, 7, v47
    v_bfe_u32 v48, v1, 1, 4
    v_lshlrev_b32 v48, 2, v48
    v_add_u32 v47, v47, v48
    s_lshl_b32 s8, s71, 8
    v_add_u32 v47, s8, v47
    v_add_u32 v47, {OB}, v47
    v_lshlrev_b32 v48, 6, v{vG}
    v_add_u32 v48, s8, v48
    s_waitcnt lgkmcnt(0)
    s_barrier
    """)
    stamp(6)
    A(f"""
    s_mov_b32 s73, {SPIN}
    L_opoll:
    global_load_dwordx4 v[56:59], v46, s[40:41] sc1
    s_waitcnt vmcnt(0)
    """)
    chk4([56], "L_ook")
    A(f"""
    s_sleep {OSL}
    s_sub_u32 s73, s73, 1
    s_cbranch_scc0 L_opoll
    L_ook:
    """)
    for r in range(4): A(f"v_mov_b32 v{60+r}, v{56+r}")
    for r in range(4): A(f"v_permlane32_swap_b32 v{56+r}, v{60+r}")
    for r in range(4): A(f"v_add_f32 v{56+r}, v{56+r}, v{60+r}")
    A(f"""
    v_cvt_pk_bf16_f32 v56, v56, v57
    v_cvt_pk_bf16_f32 v57, v58, v59
    s_mov_b32 exec_hi, 0
    ds_write2_b32 v47, v56, v57 offset0:{0} offset1:{16}
    s_mov_b32 exec_hi, -1
    s_waitcnt lgkmcnt(0)
    """.replace("v47, v56, v57 offset0:0 offset1:16", "v47, v56, v57 offset0:0 offset1:16"))
    XO = 64
    for k in range(4): A(f"ds_read_b128 {v4(XO+4*k)}, v48 offset:{OB+16*k}")
    A("s_waitcnt lgkmcnt(0)")
    stamp(7)
    perms(XO, 0, 8)
    for i in range(32):
        if i + 1 < 32: perms(XO + (i+1)//2, (i+1) & 1, 8 + 4*((i+1) & 1))
        mfma(4, 8 + 4*(i & 1), WOr + 4*i, "0" if i == 0 else "v[4:7]")
    A(f"""
    v_lshlrev_b32 v45, 5, v{vC}
    v_lshlrev_b32 v46, 4, v{vG}
    v_add_u32 v45, v45, v46
    s_lshl_b32 s8, s71, 9
    v_add_u32 v45, s8, v45
    v_lshlrev_b32 v46, 4, v1
    v_add_u32 v46, s8, v46
    s_lshl_b32 s10, s72, 2
    s_add_u32 s10, s10, s71
    s_lshl_b32 s10, s10, 5
    s_add_u32 s10, s10, s4
    s_lshl_b32 s10, s10, 9
    s_add_u32 s10, s10, {YX}
    v_lshlrev_b32 v47, 4, v1
    v_add_u32 v47, s10, v47
    s_mov_b32 exec_hi, 0
    ds_write_b128 v45, v[4:7] offset:{YS}
    s_waitcnt lgkmcnt(0)
    ds_read_b128 v[56:59], v46 offset:{YS}
    s_waitcnt lgkmcnt(0)
    """)
    for k in range(4): A(f"v_mul_f32 v{56+k}, v{56+k}, v33")
    tag4(56)
    A(f"""
    s_mov_b64 exec, 0xfffff
    global_store_dwordx4 v47, v[56:59], s[40:41] sc1
    s_mov_b64 exec, -1
    {"s_branch L_hend" if HST == 4 else ""}
    s_cmp_eq_u32 s75, 1
    s_cbranch_scc0 L_hend
    s_lshl_b32 s10, s76, 2
    s_add_u32 s10, s10, s77
    s_lshl_b32 s10, s10, 5
    s_lshl_b32 s9, s71, 3
    s_add_u32 s10, s10, s9
    s_lshl_b32 s10, s10, 9
    s_add_u32 s10, s10, {YX}
    v_lshrrev_b32 v46, 5, v1
    v_lshlrev_b32 v46, 9, v46
    v_and_b32 v47, 31, v1
    v_lshlrev_b32 v47, 4, v47
    v_add_u32 v46, v46, v47
    v_add_u32 v46, s10, v46
    v_add_u32 v47, 2048, v46
    """)
    ya = [(46, 0), (46, 1024), (47, 0), (47, 1024)]
    A(f"""
    s_mov_b32 s73, {SPIN}
    s_mov_b32 s52, 0x000fffff
    s_mov_b32 s53, 0x000fffff
    s_mov_b64 s[54:55], s[52:53]
    s_mov_b64 s[56:57], s[52:53]
    s_mov_b64 s[58:59], s[52:53]
    s_mov_b32 s12, 0x0c0c0400
    s_mov_b32 s13, 0x04000c0c
    L_ypoll:
    """)
    for q, (ar, off) in enumerate(ya):
        A(f"s_mov_b64 exec, s[{52+2*q}:{53+2*q}]")
        A(f"s_cbranch_execz L_ysk{q}")
        A(f"global_load_dwordx4 {v4(56+4*q)}, v{ar}, s[40:41] offset:{off} sc1")
        A(f"L_ysk{q}:")
    A("s_mov_b32 exec_lo, 0x000fffff"); A("s_mov_b32 exec_hi, 0x000fffff")
    A("s_waitcnt vmcnt(0)")
    for q in range(4):
        d = 56 + 4*q
        A(f"v_perm_b32 v44, v{d+1}, v{d}, s12")
        A(f"v_perm_b32 v45, v{d+3}, v{d+2}, s13")
        A(f"v_or_b32 v44, v44, v45")
        A(f"v_cmp_ne_u32 s[{52+2*q}:{53+2*q}], s74, v44")
    A(f"""
    s_or_b64 s[8:9], s[52:53], s[54:55]
    s_or_b64 s[10:11], s[56:57], s[58:59]
    s_or_b64 s[8:9], s[8:9], s[10:11]
    s_cbranch_scc0 L_yok
    s_sleep {int(opt.get("ysl", 1))}
    s_sub_u32 s73, s73, 1
    s_cbranch_scc0 L_ypoll
    L_yok:
    s_mov_b64 exec, -1
    """)
    sum_quads([56, 60, 64, 68])
    for r in range(4): A(f"v_mov_b32 v{60+r}, v{56+r}")
    for r in range(4): A(f"v_permlane32_swap_b32 v{56+r}, v{60+r}")
    for r in range(4): A(f"v_add_f32 v{56+r}, v{56+r}, v{60+r}")
    A(f"""
    s_lshl_b32 s8, s71, 9
    v_lshlrev_b32 v45, 4, v1
    v_add_u32 v45, s8, v45
    s_mov_b32 exec_hi, 0
    ds_write_b128 v45, v[56:59] offset:{FS}
    s_mov_b32 exec_hi, -1
    s_waitcnt lgkmcnt(0)
    s_barrier
    s_cmp_eq_u32 s71, 0
    s_cbranch_scc0 L_hend
    v_lshlrev_b32 v45, 4, v1
    s_mov_b64 exec, 0xfffff
    """)
    for w in range(4): A(f"ds_read_b128 {v4(56+4*w)}, v45 offset:{FS+512*w}")
    A(f"""
    s_mul_i32 s8, s77, 1280
    s_mul_i32 s9, s76, 160
    s_add_u32 s8, s8, s9
    v_lshlrev_b32 v44, 3, v1
    v_add_u32 v44, s8, v44
    s_waitcnt lgkmcnt(0)
    """)
    sum_quads([56, 60, 64, 68])
    for k in (0, 2): pk(56+k, 56+k, FSUM+k)
    A(f"""
    v_cvt_pk_bf16_f32 v56, v56, v57
    v_cvt_pk_bf16_f32 v57, v58, v59
    global_store_dwordx2 v44, v[56:57], s[36:37]
    s_mov_b64 exec, -1
    """)
    A("L_hend:")
    stamp(8)
    store_stamps(9)
    A("L_end:")
    A("s_endpgm")
    body = A.finalize()
    body += f""".section .rodata,"a"
.p2align 6
.amdhsa_kernel {NAME}_kernel
  .amdhsa_next_free_vgpr 256
  .amdhsa_next_free_sgpr 102
  .amdhsa_accum_offset 256
  .amdhsa_group_segment_fixed_size 0
  .amdhsa_kernarg_size 104
  .amdhsa_user_sgpr_count 2
  .amdhsa_user_sgpr_kernarg_segment_ptr 1
  .amdhsa_system_sgpr_workgroup_id_x 1
.end_amdhsa_kernel
"""
    return body

if __name__ == "__main__":
    out = sys.argv[1] if len(sys.argv) > 1 else f"cdna_kernels/{NAME}.s"
    opt = {}
    for a in sys.argv[2:]:
        k, v = a.split("=")
        opt[k] = {"1": True, "0": False}.get(v, v) if k in ("stamps", "fine", "noffn") else v
    open(out, "w").write(gen(opt))
    print("wrote", out)
```

```python
import sys, struct
sys.path.insert(0, "gen")
from asmb import Asm
NAME = "gated_mix__mha_block_cached__swiglu_ffn__decode"
def f2u(x): return struct.unpack("<I", struct.pack("<f", x))[0]
LOG2E = 1.4426950408889634
CSC = LOG2E / (128 ** 0.5)
CNTK = 0; CNTH = 4; SCRDY = 8; QRDY = 12; CKC = 16; MODE = 20; NONCE = 32
ST = 40; SCALE = 72
QB = 128; HB = 512; OB = 1024; YS = 2048; OP = 4096; FS = 6144
GP = 8192; WOL = 16384; YP2 = 49152
XL = 49152 + 16384
GWL = XL + 5120
LDS_BYTES = GWL + 1280
SX = 0; QX = 0x10000; FX = 0x50000; OX = 0xE0000; YX = 0x100000; OXA = 0xA0000; FY = 0x180000; PF = 0x8000
NFFN = 108; FFN0 = 20
SPIN = 200000
class VMQ:
    def __init__(self, A): self.q = []; self.A = A
    def issue(self, tag):
        self.q.append(tag); assert len(self.q) <= 63, len(self.q)
    def pace(self, depth):
        if depth and len(self.q) >= depth:
            self.A(f"s_waitcnt vmcnt({depth-1})"); self.q = self.q[len(self.q) - (depth - 1):] if depth > 1 else []
    def wait(self, tag):
        if tag not in self.q: return
        idx = self.q.index(tag); n = len(self.q) - 1 - idx
        self.A(f"s_waitcnt vmcnt({n})"); self.q = self.q[idx + 1:]

def gen(opt=None):
    opt = opt or {}
    KVF = opt.get("kvflags", "nt"); WF = opt.get("wflags", "nt")
    stamps = opt.get("stamps", False); FINE = opt.get("fine", False)
    NSLEEP = int(opt.get("nsleep", 10)); QSLEEP = int(opt.get("qsleep", 16))
    WK = int(opt.get("wk", 32)); WV = int(opt.get("wv", 48))
    BP = int(opt.get("bp", 2))
    FSTOP = int(opt.get("fstop", 0))
    OSL = int(opt.get("osl", 1)); FSL = int(opt.get("fsl", 48))
    A = Asm()
    A(f"; @launch grid=(256,1,1) block=(512,1,1) lds={LDS_BYTES}")
    A('.amdgcn_target "amdgcn-amd-amdhsa--gfx950"')
    A(".text"); A(f".globl {NAME}_kernel"); A(".p2align 8"); A(f".type {NAME}_kernel,@function"); A(f"{NAME}_kernel:")
    vG, vC = 34, 35
    SELL, SELH = 16, 20
    M = 36; Q = 40
    uid = [0]
    def U(): uid[0] += 1; return uid[0]
    def v4(r): return f"v[{r}:{r+3}]"
    def stamp(i):
        if stamps: A(f"s_memrealtime s[{80+2*i}:{81+2*i}]")
    def store_stamps(n):
        if not stamps: return
        A("""
        s_waitcnt lgkmcnt(0)
        s_lshl_b32 s8, s2, 10
        s_lshl_b32 s9, s3, 7
        s_add_u32 s8, s8, s9
        s_add_u32 s8, s8, 0x2000000
        v_mov_b32 v44, s8
        s_mov_b64 exec, 1
        """)
        for i in range(n):
            A(f"v_mov_b32 v45, s{80+2*i}"); A(f"global_store_dword v44, v45, s[40:41] offset:{4*i}"); A("s_nop 0")
        A("s_getreg_b32 s9, hwreg(HW_REG_XCC_ID)"); A("v_mov_b32 v45, s9"); A("global_store_dword v44, v45, s[40:41] offset:120")
        A("s_mov_b64 exec, -1")
    def lds_spin(off, cond, sleep, val=None):
        t = U()
        A(f"""
        v_mov_b32 v44, 0
        s_mov_b32 s73, {SPIN}
        L_sp{t}:
        ds_read_b32 v45, v44 offset:{off}
        s_waitcnt lgkmcnt(0)
        v_readfirstlane_b32 s8, v45
        """)
        if cond == "nz": A("s_cmp_lg_u32 s8, 0")
        else: A(f"s_cmp_ge_u32 s8, {val}")
        A(f"""
        s_cbranch_scc1 L_sp{t}_ok
        s_sleep {sleep}
        s_sub_u32 s73, s73, 1
        s_cbranch_scc0 L_sp{t}
        L_sp{t}_ok:
        """)
    def hbarrier(n, sleep=1):
        A(f"""
        s_waitcnt lgkmcnt(0)
        v_mov_b32 v44, 0
        v_mov_b32 v45, 1
        s_mov_b64 exec, 1
        ds_add_u32 v44, v45 offset:{CNTH}
        s_mov_b64 exec, -1
        """)
        lds_spin(CNTH, "ge", sleep, 4 * n)
    def perms(xreg, hi, aset):
        sel = SELH if hi else SELL
        for r in range(4): A(f"v_perm_b32 v{aset+r}, v{xreg}, v{xreg}, v{sel+r}")
    def pk(d, a, b): A(f"v_pk_add_f32 v[{d}:{d+1}], v[{a}:{a+1}], v[{b}:{b+1}]")
    def mfma(d, a, b, c): A(f"v_mfma_f32_16x16x32_bf16 {v4(d)}, {v4(a)}, {v4(b)}, {c}")
    def rowreduce(op, reg):
        A(f"{op}_dpp v{reg}, v{reg}, v{reg} row_ror:8 row_mask:0xf bank_mask:0xf")
        A(f"{op}_dpp v{reg}, v{reg}, v{reg} row_ror:4 row_mask:0xf bank_mask:0xf")
        A(f"{op}_dpp v{reg}, v{reg}, v{reg} quad_perm:[2,3,0,1] row_mask:0xf bank_mask:0xf")
        A(f"{op}_dpp v{reg}, v{reg}, v{reg} quad_perm:[1,0,3,2] row_mask:0xf bank_mask:0xf")
    def wavereduce(op, reg):
        rowreduce(op, reg)
        for k in range(4): A(f"v_readlane_b32 s{8+k}, v{reg}, {16*k}")
        A(f"v_mov_b32 v{reg}, s8")
        for k in range(1, 4): A(f"{op} v{reg}, s{8+k}, v{reg}")
    def check_tags(tags, okl):
        A(f"v_cmp_ne_u32 s[78:79], s74, v{tags[0]}")
        for t in tags[1:]:
            A(f"v_cmp_ne_u32 vcc, s74, v{t}")
            A("s_or_b64 s[78:79], s[78:79], vcc")
        A("s_cmp_eq_u64 s[78:79], 0")
        A(f"s_cbranch_scc1 {okl}")
    def blk(sj, soff, snch, smask):
        A(f"""
        s_cmp_ge_u32 {sj}, 1
        s_cselect_b32 {soff}, 1, 0
        s_add_u32 {soff}, {soff}, {sj}
        s_cmp_ge_u32 {sj}, 5
        s_addc_u32 {soff}, {soff}, 0
        s_lshl_b32 {soff}, {soff}, 7
        s_and_b32 {snch}, {sj}, 3
        s_cmp_eq_u32 {snch}, 0
        s_cselect_b32 {snch}, 16, 8
        s_cselect_b32 {smask}, -1, 0xffff
        """)
    TG = 28
    def tag4(d, tg=TG):
        for k in range(4): A(f"v_and_or_b32 v{d+k}, v{d+k}, s75x, v{tg+k}".replace("s75x", "s14"))
    def settags(nonce_v, tg):
        A("s_mov_b32 s14, 0xffffff00")
        A(f"v_and_b32 v{tg}, 0xff, v{nonce_v}")
        for k in range(1, 4): A(f"v_bfe_u32 v{tg+k}, v{nonce_v}, {8*k}, 8")
    def chk4(quads, okl, tmp=44):
        A("s_mov_b32 s12, 0x0c0c0400"); A("s_mov_b32 s13, 0x04000c0c")
        for i, d in enumerate(quads):
            A(f"v_perm_b32 v{tmp}, v{d+1}, v{d}, s12")
            A(f"v_perm_b32 v{tmp+1}, v{d+3}, v{d+2}, s13")
            A(f"v_or_b32 v{tmp}, v{tmp}, v{tmp+1}")
            if i == 0: A(f"v_cmp_ne_u32 s[78:79], s74, v{tmp}")
            else:
                A(f"v_cmp_ne_u32 vcc, s74, v{tmp}"); A("s_or_b64 s[78:79], s[78:79], vcc")
        A("s_cmp_eq_u64 s[78:79], 0"); A(f"s_cbranch_scc1 {okl}")
    def probe(addr_v, mask, sleep):
        t = U()
        A(f"""
        s_mov_b32 s73, {SPIN}
        s_and_b32 s15, s74, 0xff
        s_mov_b64 exec, {mask:#x}
        L_pr{t}:
        global_load_dword v45, v{addr_v}, s[40:41] sc1
        s_waitcnt vmcnt(0)
        v_and_b32 v45, 0xff, v45
        v_cmp_ne_u32 vcc, s15, v45
        s_cmp_eq_u64 vcc, 0
        s_cbranch_scc1 L_pr{t}_ok
        s_sleep {sleep}
        s_sub_u32 s73, s73, 1
        s_cbranch_scc0 L_pr{t}
        L_pr{t}_ok:
        s_mov_b64 exec, -1
        """)

    A("""
    s_cmp_ge_u32 s2, 256
    s_cbranch_scc1 L_end
    s_load_dwordx16 s[16:31], s[0:1], 0
    s_load_dwordx8 s[32:39], s[0:1], 64
    s_load_dwordx2 s[40:41], s[0:1], 96
    """)
    stamp(0)
    EB = opt.get("eb", "0") in ("1", True)
    EB_A = "s_barrier" if EB else ""
    DUAL = opt.get("dual", "1") in ("1", True)
    MAP = opt.get("map", "loc")
    if MAP == "loc":
        MAPCODE = """s_and_b32 s4, s2, 31
    s_lshr_b32 s5, s2, 6
    s_bfe_u32 s6, s2, 0x10005
    s_lshl_b32 s7, s5, 5
    s_add_u32 s7, s7, s4"""; PX_ = 32
    else:
        MAPCODE = """s_lshr_b32 s8, s2, 1
    s_xor_b32 s9, s8, s2
    s_and_b32 s9, s9, 1
    s_and_b32 s6, s8, 1
    s_lshr_b32 s8, s2, 2
    s_lshl_b32 s8, s8, 1
    s_add_u32 s7, s8, s9
    s_and_b32 s4, s7, 31
    s_lshr_b32 s5, s7, 5"""; PX_ = 3
    if stamps and opt.get("clk"): A("s_memtime s[100:101]")
    A(f"""
    v_lshrrev_b32 v3, 6, v0
    v_and_b32 v1, 63, v0
    v_readfirstlane_b32 s3, v3
    v_mov_b32 v4, 0
    v_mov_b32 v5, 0
    v_mov_b32 v6, 0
    v_mov_b32 v7, 0
    s_cmp_eq_u32 s3, 4
    s_cbranch_scc0 L_noz
    s_mov_b64 exec, 1
    ds_write_b128 v4, v[4:7] offset:0
    ds_write_b128 v4, v[4:7] offset:16
    s_mov_b64 exec, -1
    {"s_waitcnt lgkmcnt(0)" if EB else ""}
    L_noz:
    {"s_waitcnt lgkmcnt(0)" if False else ""}
    {EB_A}
    {MAPCODE}
    v_lshrrev_b32 v{vG}, 4, v1
    v_and_b32 v{vC}, 15, v1
    s_cmp_ge_u32 s3, 4
    s_cbranch_scc1 L_H
    """)
    A(f"""
    s_lshl_b32 s9, s3, 12
    v_lshlrev_b32 v2, 4, v1
    v_add_u32 v2, s9, v2
    s_lshl_b32 s8, s7, 20
    s_cmp_eq_u32 s6, 0
    s_cselect_b32 s64, 0, {63*16384}
    s_mov_b32 s9, 16384
    s_cselect_b32 s43, s9, {(-16384) & 0xffffffff:#x}
    s_waitcnt lgkmcnt(0)
    s_add_u32 s52, s18, s8
    s_addc_u32 s53, s19, 0
    s_and_b32 s53, s53, 0xffff
    s_mov_b32 s54, 0x100000
    s_mov_b32 s55, 0x20000
    s_add_u32 s56, s20, s8
    s_addc_u32 s57, s21, 0
    s_and_b32 s57, s57, 0xffff
    s_mov_b32 s58, 0x100000
    s_mov_b32 s59, 0x20000
    s_mov_b32 s65, s64
    {"" if EB else "s_barrier"}
    """)
    vq = VMQ(A)
    def slot(sl): return 128 + 4 * sl if sl < 32 else 64 + 4 * (sl - 32)
    def kslot(i): return slot(i % WK)
    DEPTH = int(opt.get("depth", 6))
    CTL = opt.get("ctl", "0") in ("1", True)
    DSH = int(opt.get("dsh", 5))
    CMASK = int(opt.get("cmask", "0x7f"), 0); CTHR = int(opt.get("cthr", 4))
    L3 = opt.get("l3", "0") in ("1", True); DMID = int(opt.get("dmid", 6)); CT2 = int(opt.get("ct2", 5))
    CKS = [int(x) for x in opt.get("cks", "64,96,128,160,192,224").split(",")]
    ctl_on = [False]
    def pace():
        if not (CTL and ctl_on[0]):
            vq.pace(int(opt.get("d0", DEPTH))); return
        if L3:
            t = U()
            if len(vq.q) >= DSH:
                A("s_cmp_ge_u32 s76, 2"); A(f"s_cbranch_scc1 L_pc{t}")
                if len(vq.q) >= DMID: A(f"s_waitcnt vmcnt({DMID-1})")
                A("s_cmp_ge_u32 s76, 1"); A(f"s_cbranch_scc1 L_pc{t}"); A(f"s_waitcnt vmcnt({DSH-1})"); A(f"L_pc{t}:")
        elif len(vq.q) >= DSH:
            t = U()
            A("s_cmp_lg_u32 s76, 0"); A(f"s_cbranch_scc1 L_pc{t}"); A(f"s_waitcnt vmcnt({DSH-1})"); A(f"L_pc{t}:")
        vq.pace(DEPTH)
    def ctl_step(pos):
        if not CTL: return
        if pos in CKS:
            A("s_mov_b64 exec, 1"); A(f"ds_add_u32 v17, v19 offset:{CKC}"); A("s_mov_b64 exec, -1")
        if pos >= CKS[0] and pos % 8 == 0:
            A("s_waitcnt lgkmcnt(0)"); A("v_readfirstlane_b32 s76, v18"); A(f"ds_read_b32 v18, v17 offset:{MODE}")
            ctl_on[0] = True
    def kload(i):
        pace()
        if i % 4 == 0 and i > 0: A("s_add_u32 s65, s65, s43")
        A(f"buffer_load_dwordx4 {v4(kslot(i))}, v2, s[52:55], s65 offen offset:{(i%4)*1024} {KVF}")
        vq.issue(("K", i))
    def vslot(v): return slot(v % WV)
    def vload(v):
        pace()
        if v == 0: A("s_mov_b32 s65, s64")
        elif v % 4 == 0: A("s_add_u32 s65, s65, s43")
        A(f"buffer_load_dwordx4 {v4(vslot(v))}, v2, s[56:59], s65 offen offset:{(v%4)*1024} {KVF}")
        vq.issue(("V", v))
    for i in range(WK): kload(i)
    A(f"""
    v_and_b32 v44, 1, v{vC}
    v_cmp_eq_u32 vcc, 1, v44
    v_mov_b32 v45, 0x0000ffff
    v_mov_b32 v46, 0xffff0000
    v_cndmask_b32 v47, v45, v46, vcc
    v_bfe_u32 v44, v{vC}, 1, 2
    v_mov_b32 v46, 0
    """)
    for r in range(4):
        A(f"v_cmp_eq_u32 vcc, {r}, v44")
        A(f"v_cndmask_b32 v{M+r}, v46, v47, vcc")
    A(f"""
    s_mov_b32 s42, {f2u(CSC):#x}
    s_mov_b32 s66, 0xcccccccc
    s_mov_b32 s67, 0xcccccccc
    s_mov_b32 s68, 0xaaaaaaaa
    s_mov_b32 s69, 0xaaaaaaaa
    """)
    A("v_mov_b32 v17, 0"); A("v_mov_b32 v18, 0"); A("v_mov_b32 v19, 1"); A("s_mov_b32 s76, 0")
    lds_spin(QRDY, "nz", 2)
    A(f"""
    v_lshlrev_b32 v46, 4, v{vC}
    ds_read_b128 {v4(Q)}, v46 offset:{QB}
    ds_read_b32 v16, v44 offset:{NONCE}
    s_waitcnt lgkmcnt(0)
    """)
    stamp(1)
    T = 48
    def reduce16(dest):
        for a in range(8):
            A(f"v_add_f32_dpp v{T+a}, v{T+a}, v{T+a} row_ror:8 row_mask:0xf bank_mask:0x3")
            A(f"v_add_f32_dpp v{T+a}, v{T+a+8}, v{T+a+8} row_ror:8 row_mask:0xf bank_mask:0xc")
        for a in range(4):
            A(f"v_add_f32_dpp v{T+a}, v{T+a}, v{T+a} row_half_mirror row_mask:0xf bank_mask:0x5")
            A(f"v_add_f32_dpp v{T+a}, v{T+a+4}, v{T+a+4} row_half_mirror row_mask:0xf bank_mask:0xa")
        for a in range(2):
            A(f"v_cndmask_b32 v{44+2*a}, v{T+a}, v{T+a+2}, s[66:67]")
            A(f"v_cndmask_b32 v{45+2*a}, v{T+a+2}, v{T+a}, s[66:67]")
        for a in range(2):
            A(f"v_add_f32_dpp v{T+a}, v{45+2*a}, v{44+2*a} quad_perm:[2,3,0,1] row_mask:0xf bank_mask:0xf")
        A(f"v_cndmask_b32 v44, v{T}, v{T+1}, s[68:69]")
        A(f"v_cndmask_b32 v45, v{T+1}, v{T}, s[68:69]")
        A(f"v_add_f32_dpp v{dest}, v45, v44 quad_perm:[1,0,3,2] row_mask:0xf bank_mask:0xf")
    SC = 24
    nv = 0
    for j in range(0, 128, 2):
        vq.wait(("K", j + 1))
        for r in range(4 if not opt.get("nodot") else 0):
            for jj in (j, j+1):
                t = T + (jj & 15)
                c = "0" if r == 0 else f"v{t}"
                A(f"v_dot2_f32_bf16 v{t}, v{kslot(jj)+r}, v{Q+r}, {c}")
        for jj in (j, j+1):
            if jj + WK < 128: kload(jj + WK)
            else: vload(nv); nv += 1
        if (j + 1) % 16 == 15 and not opt.get("nodot"): reduce16(SC + (j >> 4))
        ctl_step(j + 2)
        if FINE and (j + 2) % 32 == 0: stamp(1 + (j + 2) // 32)
    if not FINE: stamp(2)
    B = Asm(); _A = A
    sm = []
    class Cap:
        def __call__(self, s):
            for l in s.split("\n"):
                if l.strip(): sm.append(l.strip())
    A = Cap()
    A(f"""
    v_max3_f32 v44, v{SC}, v{SC+1}, v{SC+2}
    v_max3_f32 v44, v44, v{SC+3}, v{SC+4}
    v_max3_f32 v44, v44, v{SC+5}, v{SC+6}
    v_max_f32 v44, v44, v{SC+7}
    """)
    wavereduce("v_max_f32", 44)
    A("v_mul_f32 v46, s42, v44")
    for k in range(8): A(f"v_fma_f32 v{SC+k}, v{SC+k}, s42, -v46")
    for k in range(8): A(f"v_exp_f32 v{SC+k}, v{SC+k}")
    A(f"""
    v_add_f32 v47, v{SC}, v{SC+1}
    v_add_f32 v44, v{SC+2}, v{SC+3}
    v_add_f32 v45, v{SC+4}, v{SC+5}
    v_add_f32 v48, v{SC+6}, v{SC+7}
    v_add_f32 v47, v47, v44
    v_add_f32 v45, v45, v48
    v_add_f32 v47, v47, v45
    """)
    wavereduce("v_add_f32", 47)
    for k in range(8): A(f"v_cvt_pk_bf16_f32 v{SC+k}, v{SC+k}, v{SC+k}")
    A = _A
    extra = WV - nv
    step = max(1, len(sm) // (extra + 1)) if extra > 0 else 0
    for i, l in enumerate(sm):
        A(l)
        if extra > 0 and (i + 1) % step == 0 and nv < WV: vload(nv); nv += 1
    while nv < WV: vload(nv); nv += 1
    A(f"""
    s_lshl_b32 s8, s3, 3
    v_mov_b32 v44, s8
    v_mov_b32 v45, 1
    v_mov_b32 v48, 0
    s_mov_b64 exec, 1
    ds_write_b64 v44, v[46:47] offset:{ST}
    ds_add_u32 v48, v45 offset:{CNTK}
    s_mov_b64 exec, -1
    """)
    for r in range(4): A(f"v_mov_b32 v{4+r}, 0")
    def abuild(v, aset):
        p, jj = SC + (v >> 4), v & 15
        for q in range(4):
            A(f"v_and_b32_dpp v{aset+q}, v{p}, v{M+q} row_newbcast:{jj} row_mask:0xf bank_mask:0xf")
    abuild(0, 8)
    for v in range(128):
        if FINE and v in (32, 64, 96): stamp(5 + v // 32)
        if v == 96:
            lds_spin(SCRDY, "nz", 2)
            A(f"""
            s_lshl_b32 s8, s3, 2
            v_mov_b32 v44, s8
            ds_read_b32 v50, v44 offset:{SCALE}
            v_lshlrev_b32 v60, 5, v{vC}
            v_lshlrev_b32 v61, 4, v{vG}
            v_add_u32 v60, v60, v61
            s_lshl_b32 s8, s3, 9
            v_add_u32 v60, s8, v60
            v_lshlrev_b32 v61, 4, v1
            s_lshl_b32 s8, s7, 1
            s_add_u32 s8, s8, s6
            s_lshl_b32 s8, s8, 9
            s_add_u32 s8, s8, {OX}
            v_add_u32 v62, s8, v61
            v_add_u32 v63, {(OXA - OX) & 0xffffffff:#x}, v62
            """)
            settags(16, 20)
        if v + 1 < 128 and not opt.get("nomfma"): abuild(v + 1, 8 + 4*((v+1) & 1))
        vq.wait(("V", v))
        if not opt.get("nomfma"): mfma(4, 8 + 4*(v & 1), vslot(v), "v[4:7]")
        if v + WV < 128: vload(v + WV)
        ctl_step(128 + v + 1)
    stamp(9 if FINE else 3)
    if stamps and opt.get("clk"):
        A("s_memtime s[76:77]"); A("s_waitcnt lgkmcnt(0)"); A("s_sub_u32 s76, s76, s100")
        A("s_lshl_b32 s8, s2, 10"); A("s_lshl_b32 s9, s3, 7"); A("s_add_u32 s8, s8, s9"); A("s_add_u32 s8, s8, 0x2000000")
        A("v_mov_b32 v44, s8"); A("v_mov_b32 v45, s76"); A("s_mov_b64 exec, 1"); A("global_store_dword v44, v45, s[40:41] offset:80"); A("s_mov_b64 exec, -1")
    A("s_waitcnt lgkmcnt(0)")
    for r in range(4): A(f"v_mul_f32 v{4+r}, v{4+r}, v50")
    A(f"""
    s_mov_b32 exec_hi, 0
    ds_write_b128 v60, v[4:7] offset:{OP}
    s_waitcnt lgkmcnt(0)
    s_barrier
    s_cmp_eq_u32 s3, 0
    s_cbranch_scc0 L_sexit
    """)
    for w in range(4): A(f"ds_read_b128 {v4(128+4*w)}, v61 offset:{OP+512*w}")
    A("s_waitcnt lgkmcnt(0)")
    for k in (0, 2):
        pk(128+k, 128+k, 132+k); pk(136+k, 136+k, 140+k); pk(128+k, 128+k, 136+k)
    tag4(128, 20)
    if DUAL: A("global_store_dwordx4 v63, v[128:131], s[40:41]")
    A(f"""
    global_store_dwordx4 v62, v[128:131], s[40:41] sc1
    L_sexit:
    s_mov_b32 exec_hi, -1
    """)
    store_stamps(10 if FINE else 4)
    A("s_endpgm")

    A("L_H:")
    SELX = 24
    A(f"""
    s_setprio 3
    s_sub_u32 s71, s3, 4
    s_lshl_b32 s72, s5, 1
    s_add_u32 s72, s72, s6
    v_and_b32 v44, 1, v{vC}
    v_cmp_eq_u32 vcc, 1, v44
    v_mov_b32 v45, 0x0c0c0100
    v_mov_b32 v46, 0x01000c0c
    v_cndmask_b32 v47, v45, v46, vcc
    v_mov_b32 v45, 0x0c0c0302
    v_mov_b32 v46, 0x03020c0c
    v_cndmask_b32 v48, v45, v46, vcc
    v_bfe_u32 v44, v{vC}, 1, 2
    v_mov_b32 v45, 0x0c0c0c0c
    v_cmp_gt_u32 s[12:13], 8, v{vC}
    """)
    for r in range(4):
        A(f"v_cmp_eq_u32 vcc, {r}, v44")
        A(f"v_cndmask_b32 v{SELL+r}, v45, v47, vcc")
        A(f"v_cndmask_b32 v{SELH+r}, v45, v48, vcc")
        A(f"v_cndmask_b32 v{SELX+r}, v{SELH+r}, v{SELL+r}, s[12:13]")
    A(f"""
    s_lshr_b32 s8, s72, 1
    s_mul_i32 s8, s8, 160
    s_mul_i32 s9, s71, 40
    s_add_u32 s8, s8, s9
    v_mul_u32_u24 v44, 10, v{vG}
    v_add_u32 v44, s8, v44
    v_lshlrev_b32 v46, 1, v44
    v_lshrrev_b32 v45, 3, v{vC}
    v_add_u32 v45, v44, v45
    v_lshlrev_b32 v45, 13, v45
    v_and_b32 v47, 7, v{vC}
    v_lshlrev_b32 v47, 4, v47
    v_add_u32 v48, v45, v47
    s_waitcnt lgkmcnt(0)
    s_or_b32 s8, s2, s71
    s_cmp_eq_u32 s8, 0
    s_cbranch_scc0 L_nononce
    s_memrealtime s[8:9]
    s_waitcnt lgkmcnt(0)
    s_or_b32 s8, s8, 1
    s_mul_i32 s8, s8, 0x9e3779b1
    v_lshlrev_b32 v44, 6, v1
    v_mov_b32 v45, s8
    s_mov_b64 exec, 15
    global_store_dword v44, v45, s[38:39] sc1
    s_mov_b64 exec, -1
    L_nononce:
    s_mov_b32 s44, s16
    s_and_b32 s45, s17, 0xffff
    s_mov_b32 s46, 5120
    s_mov_b32 s47, 0x20000
    s_lshl_b32 s8, s4, 8
    s_and_b32 s9, s72, 1
    s_lshl_b32 s9, s9, 7
    s_add_u32 s8, s8, s9
    s_add_u32 s48, s22, s8
    s_addc_u32 s49, s23, 0
    s_and_b32 s49, s49, 0xffff
    s_sub_u32 s50, 5242880, s8
    s_mov_b32 s51, 0x20000
    """)
    XQ = 56; WQr = 80
    A(f"""
    s_mul_i32 s8, s71, 1280
    v_lshlrev_b32 v44, 4, v1
    v_add_u32 v45, s8, v44
    s_add_u32 s9, s8, {XL}
    s_mov_b32 m0, s9
    s_mov_b32 s60, s34
    s_and_b32 s61, s35, 0xffff
    s_mov_b32 s62, 1280
    s_mov_b32 s63, 0x20000
    buffer_load_dwordx4 v45, s[44:47], 0 offen lds
    s_add_u32 m0, s9, 1024
    s_mov_b32 s64, 1024
    s_mov_b64 exec, 0xffff
    buffer_load_dwordx4 v45, s[44:47], s64 offen lds
    s_mov_b64 exec, -1
    s_cmp_eq_u32 s71, 0
    s_cbranch_scc0 L_nogw
    s_mov_b32 m0, {GWL}
    s_nop 0
    buffer_load_dwordx4 v44, s[60:63], 0 offen lds
    s_mov_b32 m0, {GWL+1024}
    s_mov_b64 exec, 0xffff
    buffer_load_dwordx4 v44, s[60:63], s64 offen lds
    s_mov_b64 exec, -1
    L_nogw:
    """)
    for i in range(5):
        A(f"s_mov_b32 s64, {2*i*8192}")
        A(f"buffer_load_dwordx4 {v4(WQr+4*i)}, v48, s[48:51], s64 offen {WF}")
    A("s_waitcnt lgkmcnt(0)")
    if not EB: A("s_barrier")
    A(f"""
    s_cmp_eq_u32 s71, 0
    s_cbranch_scc0 L_nopoll
    s_sleep {NSLEEP}
    """)
    for k in range(4):
        A(f"s_load_dword s74, s[38:39], {64*k}")
        A("s_waitcnt lgkmcnt(0)"); A("s_cmp_lg_u32 s74, 0"); A("s_cbranch_scc1 L_ngot")
        if k < 3: A("s_sleep 3")
    A(f"""
    v_mov_b32 v44, 0
    s_mov_b32 s73, {SPIN}
    L_npoll:
    global_load_dword v45, v44, s[38:39] sc1
    s_waitcnt vmcnt(0)
    v_readfirstlane_b32 s74, v45
    s_cmp_lg_u32 s74, 0
    s_cbranch_scc1 L_ngot
    s_sub_u32 s73, s73, 1
    s_cbranch_scc0 L_npoll
    L_ngot:
    v_mov_b32 v44, 0
    v_mov_b32 v45, s74
    s_mov_b64 exec, 1
    ds_write_b32 v44, v45 offset:{NONCE}
    s_mov_b64 exec, -1
    L_nopoll:
    s_waitcnt vmcnt(5)
    """)
    hbarrier(1)
    for b in range(4): A(f"v_add_u32 v{100+b}, {XL + 1280*b}, v46")
    for b in range(4):
        A(f"ds_read2_b32 v[{XQ+6*b}:{XQ+6*b+1}], v{100+b} offset0:0 offset1:1")
        A(f"ds_read2_b32 v[{XQ+6*b+2}:{XQ+6*b+3}], v{100+b} offset0:2 offset1:3")
        A(f"ds_read_b32 v{XQ+6*b+4}, v{100+b} offset:16")
    A("s_waitcnt vmcnt(0) lgkmcnt(0)")
    stamp(1)
    def xq(b, i): return XQ + 6*b + i
    DQ = [4, 48, 52, 104]
    n = 0
    for i in range(5):
        for b in range(4):
            aset = 8 + 4 * (n & 1)
            for r in range(4): A(f"v_perm_b32 v{aset+r}, v{xq(b,i)}, v{xq(b,i)}, v{SELX+r}")
            mfma(DQ[b], aset, WQr + 4*i, "0" if i == 0 else v4(DQ[b]))
            n += 1
    A(f"""
    s_lshl_b32 s8, s71, 11
    v_lshrrev_b32 v45, 1, v{vG}
    v_lshlrev_b32 v45, 8, v45
    v_and_b32 v46, 7, v{vC}
    v_lshlrev_b32 v46, 5, v46
    v_add_u32 v45, v45, v46
    v_and_b32 v46, 1, v{vG}
    v_lshlrev_b32 v46, 4, v46
    v_add_u32 v45, v45, v46
    v_add_u32 v45, s8, v45
    s_mov_b32 exec_lo, 0x00ff00ff
    s_mov_b32 exec_hi, 0xff00ff00
    """)
    for b in range(4): A(f"ds_write_b128 v45, {v4(DQ[b])} offset:{GP+512*b}")
    A("s_mov_b64 exec, -1")
    hbarrier(2)
    A(f"""
    v_mov_b32 v44, 0
    ds_read_b32 v32, v44 offset:{NONCE}
    s_lshl_b32 s8, s71, 9
    v_lshlrev_b32 v45, 4, v{vC}
    v_add_u32 v45, s8, v45
    """)
    for w in range(4):
        for rho in range(2): A(f"ds_read_b128 {v4(56+8*w+4*rho)}, v45 offset:{GP+w*2048+rho*256}")
    A(f"""
    s_lshl_b32 s10, s4, 3
    s_add_u32 s10, s10, s72
    s_lshl_b32 s10, s10, 2
    s_add_u32 s10, s10, s71
    s_lshl_b32 s10, s10, 8
    s_add_u32 s10, s10, {QX}
    v_lshlrev_b32 v46, 4, v{vC}
    v_add_u32 v46, s10, v46
    s_waitcnt lgkmcnt(0)
    v_readfirstlane_b32 s74, v32
    """)
    settags(32, TG)
    def sum_quads(regs):
        regs = list(regs)
        while len(regs) > 1:
            nx = []
            for a in range(0, len(regs) - 1, 2):
                for k in (0, 2): pk(regs[a]+k, regs[a]+k, regs[a+1]+k)
                nx.append(regs[a])
            if len(regs) % 2: nx.append(regs[-1])
            regs = nx
    sum_quads([56+4*k for k in range(8)])
    tag4(56)
    A(f"""
    s_mov_b64 exec, 0xffff
    global_store_dwordx4 v46, v[56:59], s[40:41] sc1
    s_mov_b64 exec, -1
    """)
    stamp(2)
    def rows_reduce(regs):
        for r in regs: A(f"v_mov_b32 v{r+32}, v{r}")
        for r in regs: A(f"v_permlane16_swap_b32 v{r}, v{r+32}")
        for r in regs: A(f"v_add_f32 v{r}, v{r}, v{r+32}")
        for r in regs: A(f"v_mov_b32 v{r+32}, v{r}")
        for r in regs: A(f"v_permlane32_swap_b32 v{r}, v{r+32}")
        for r in regs: A(f"v_add_f32 v{r}, v{r}, v{r+32}")
    A(f"""
    s_cmp_eq_u32 s71, 0
    s_cbranch_scc0 L_noq
    s_lshl_b32 s10, s4, 5
    s_add_u32 s10, s10, s5
    s_lshl_b32 s10, s10, 8
    s_add_u32 s10, s10, {QX}
    v_lshlrev_b32 v46, 11, v{vG}
    v_lshlrev_b32 v47, 4, v{vC}
    v_add_u32 v46, v46, v47
    v_add_u32 v46, s10, v46
    s_mov_b32 s73, {SPIN}
    s_sleep {QSLEEP}
    L_qpoll:
    global_load_dwordx4 v[56:59], v46, s[40:41] sc1
    global_load_dwordx4 v[60:63], v46, s[40:41] offset:1024 sc1
    s_waitcnt vmcnt(0)
    """)
    chk4([56, 60], "L_qok")
    A(f"""
    s_sub_u32 s73, s73, 1
    s_cbranch_scc0 L_qpoll
    L_qok:
    """)
    rows_reduce(range(56, 64))
    A(f"""
    v_cvt_pk_bf16_f32 v56, v56, v57
    v_cvt_pk_bf16_f32 v57, v58, v59
    v_cvt_pk_bf16_f32 v58, v60, v61
    v_cvt_pk_bf16_f32 v59, v62, v63
    v_lshlrev_b32 v45, 3, v{vC}
    v_mov_b32 v44, 0
    v_mov_b32 v47, 1
    s_mov_b64 exec, 0xffff
    ds_write_b64 v45, v[56:57] offset:{QB}
    ds_write_b64 v45, v[58:59] offset:{QB+128}
    s_mov_b64 exec, 1
    ds_write_b32 v44, v47 offset:{QRDY}
    s_mov_b64 exec, -1
    L_noq:
    """)
    stamp(3)
    def idle_end():
        A(f"""
        v_mov_b32 v44, 0
        v_mov_b32 v45, 1
        v_mov_b32 v46, 1.0
        ds_write_b32 v44, v46 offset:{SCALE}
        ds_write_b32 v44, v46 offset:{SCALE+4}
        ds_write_b32 v44, v46 offset:{SCALE+8}
        ds_write_b32 v44, v46 offset:{SCALE+12}
        ds_write_b32 v44, v45 offset:{SCRDY}
        s_waitcnt lgkmcnt(0)
        s_barrier
        s_branch L_hend
        """)
    HST = int(opt.get("hstop", 0))
    if opt.get("hidle"): idle_end()
    A(f"""
    s_setprio {BP}
    s_lshr_b32 s8, s2, 3
    s_and_b32 s9, s8, 3
    s_lshl_b32 s9, s9, 1
    s_add_u32 s9, s9, 1
    s_and_b32 s10, s2, 7
    s_mul_i32 s8, s8, 7
    s_add_u32 s8, s8, s10
    s_cmp_gt_u32 s10, s9
    s_cselect_b32 s11, 1, 0
    s_sub_u32 s8, s8, s11
    s_lshr_b32 s76, s8, 3
    s_and_b32 s77, s8, 7
    s_cmp_lt_u32 s8, 216
    s_cselect_b32 s75, 1, 0
    s_cmp_eq_u32 s10, s9
    s_cselect_b32 s75, 0, s75
    """)
    if opt.get("noffn"): A("s_mov_b32 s75, 0")
    blk("s72", "s66", "s67", "s68")
    blk("s77", "s65", "s69", "s70")
    A(f"""
    s_mul_i32 s8, s4, 163840
    s_add_u32 s8, s8, s66
    s_add_u32 s48, s24, s8
    s_addc_u32 s49, s25, 0
    s_and_b32 s49, s49, 0xffff
    s_sub_u32 s50, 5242880, s8
    s_mov_b32 s51, 0x20000
    v_mul_u32_u24 v46, 2560, v{vG}
    v_lshlrev_b32 v47, 4, v{vC}
    v_add_u32 v46, v46, v47
    s_mul_i32 s8, s71, {32*1280}
    v_add_u32 v46, s8, v46
    v_mov_b32 v47, 0x7ff00000
    v_cmp_gt_u32 vcc, s67, v{vC}
    v_cndmask_b32 v46, v47, v46, vcc
    s_lshl_b32 s9, s71, 13
    s_add_u32 s9, s9, {WOL}
    """)
    WOM = opt.get("wom", "dma"); HP = int(opt.get("hp", 0))
    for i in range(8 if HST != 1 else 0):
        t, s_ = i >> 1, i & 1
        if WOM == "dma":
            A(f"s_add_u32 m0, s9, {i*1024}")
            A(f"s_mov_b32 s64, {(8*t+s_)*1280}")
            if HP and i >= HP: A(f"s_waitcnt vmcnt({HP-1})")
            A(f"buffer_load_dwordx4 v46, s[48:51], s64 offen {WF} lds")
        elif WOM == "dmax":
            A("s_mov_b32 exec_lo, 0x03ff03ff"); A("s_mov_b32 exec_hi, 0x03ff03ff")
            A(f"s_add_u32 m0, s9, {i*1024}")
            A(f"s_mov_b32 s64, {(8*t+s_)*1280}")
            A(f"buffer_load_dwordx4 v46, s[48:51], s64 offen {WF} lds")
            A("s_mov_b64 exec, -1")
        else:
            A(f"s_mov_b32 s64, {(8*t+s_)*1280}")
            A(f"buffer_load_dwordx4 {v4(192+4*i)}, v46, s[48:51], s64 offen {WF}")
    W1r = 96; W2r = 120
    A("s_cmp_eq_u32 s75, 1"); A("s_cbranch_scc0 L_nobulk")
    A(f"""
    s_and_b32 s8, s77, 1
    s_cmp_eq_u32 s8, 0
    s_cselect_b32 s60, s28, s30
    s_cselect_b32 s61, s29, s31
    s_lshl_b32 s8, s76, 7
    s_add_u32 s60, s60, s8
    s_addc_u32 s61, s61, 0
    s_and_b32 s61, s61, 0xffff
    s_sub_u32 s62, {640*3456}, s8
    s_mov_b32 s63, 0x20000
    s_lshr_b32 s8, s77, 1
    s_mul_i32 s8, s8, 160
    s_mul_i32 s9, s71, 40
    s_add_u32 s8, s8, s9
    v_mul_u32_u24 v44, 10, v{vG}
    v_add_u32 v44, s8, v44
    v_lshlrev_b32 v41, 1, v44
    v_lshrrev_b32 v45, 3, v{vC}
    v_add_u32 v45, v44, v45
    v_mul_u32_u24 v45, 3456, v45
    v_and_b32 v47, 7, v{vC}
    v_lshlrev_b32 v47, 4, v47
    v_add_u32 v45, v45, v47
    """)
    for i in range(5):
        A(f"s_mov_b32 s64, {2*i*3456}")
        if HP: A(f"s_waitcnt vmcnt({HP-1})")
        A(f"buffer_load_dwordx4 {v4(W1r+4*i)}, v45, s[60:63], s64 offen {WF}")
    A(f"""
    s_lshl_b32 s8, s76, 6
    s_lshl_b32 s9, s71, 4
    s_add_u32 s8, s8, s9
    s_mul_i32 s8, s8, 1280
    s_add_u32 s8, s8, s65
    s_add_u32 s60, s32, s8
    s_addc_u32 s61, s33, 0
    s_and_b32 s61, s61, 0xffff
    s_sub_u32 s62, {1728*1280}, s8
    s_mov_b32 s63, 0x20000
    v_mul_u32_u24 v46, 2560, v{vG}
    v_lshlrev_b32 v47, 4, v{vC}
    v_add_u32 v46, v46, v47
    v_mov_b32 v47, 0x7ff00000
    v_cmp_gt_u32 vcc, s69, v{vC}
    v_cndmask_b32 v46, v47, v46, vcc
    """)
    for ts in range(4):
        A(f"s_mov_b32 s64, {(8*(ts>>1)+(ts&1))*1280}")
        if HP: A(f"s_waitcnt vmcnt({HP-1})")
        A(f"buffer_load_dwordx4 {v4(W2r+4*ts)}, v46, s[60:63], s64 offen {WF}")
    A("L_nobulk:")
    A("s_waitcnt vmcnt(0)")
    if WOM == "reg" and HST != 1:
        A(f"""
        s_lshl_b32 s9, s71, 13
        s_add_u32 s9, s9, {WOL}
        v_lshlrev_b32 v45, 4, v1
        v_add_u32 v45, s9, v45
        """)
        for i in range(8): A(f"ds_write_b128 v45, {v4(192+4*i)} offset:{1024*i}")
    A(f"""
    v_mul_u32_u24 v44, 20, v1
    s_mul_i32 s8, s71, 1280
    s_add_u32 s8, s8, {XL}
    v_add_u32 v45, s8, v44
    v_add_u32 v44, {GWL}, v44
    ds_read2_b32 v[36:37], v45 offset0:0 offset1:1
    ds_read2_b32 v[38:39], v45 offset0:2 offset1:3
    ds_read_b32 v40, v45 offset:16
    ds_read2_b32 v[48:49], v44 offset0:0 offset1:1
    ds_read2_b32 v[50:51], v44 offset0:2 offset1:3
    ds_read_b32 v52, v44 offset:16
    s_waitcnt lgkmcnt(0)
    """)
    A("v_dot2_f32_bf16 v33, v36, v48, 0")
    for t in range(1, 5): A(f"v_dot2_f32_bf16 v33, v{36+t}, v{48+t}, v33")
    wavereduce("v_add_f32", 33)
    A(f"""
    v_mul_f32 v33, {f2u(-LOG2E):#x}, v33
    v_exp_f32 v33, v33
    v_add_f32 v33, 1.0, v33
    v_rcp_f32 v33, v33
    v_sub_f32 v32, 1.0, v33
    s_setprio 3
    """)
    hbarrier(3, 2)
    stamp(4)
    if HST in (1, 2): idle_end()
    A("s_cmp_eq_u32 s75, 1"); A("s_cbranch_scc0 L_noffn")
    for b in range(4): A(f"v_add_u32 v{100+16+b}, {XL + 1280*b}, v41")
    for b in range(4):
        A(f"ds_read2_b32 v[{XQ+6*b}:{XQ+6*b+1}], v{116+b} offset0:0 offset1:1")
        A(f"ds_read2_b32 v[{XQ+6*b+2}:{XQ+6*b+3}], v{116+b} offset0:2 offset1:3")
        A(f"ds_read_b32 v{XQ+6*b+4}, v{116+b} offset:16")
    A("s_waitcnt lgkmcnt(0)")
    DF = [4, 48, 52, 80]
    n = 0
    for i in range(5):
        for b in range(4):
            aset = 8 + 4 * (n & 1)
            for r in range(4): A(f"v_perm_b32 v{aset+r}, v{xq(b,i)}, v{xq(b,i)}, v{SELX+r}")
            mfma(DF[b], aset, W1r + 4*i, "0" if i == 0 else v4(DF[b]))
            n += 1
    A(f"""
    s_lshl_b32 s8, s71, 11
    v_lshrrev_b32 v45, 1, v{vG}
    v_lshlrev_b32 v45, 8, v45
    v_and_b32 v46, 7, v{vC}
    v_lshlrev_b32 v46, 5, v46
    v_add_u32 v45, v45, v46
    v_and_b32 v46, 1, v{vG}
    v_lshlrev_b32 v46, 4, v46
    v_add_u32 v45, v45, v46
    v_add_u32 v45, s8, v45
    s_mov_b32 exec_lo, 0x00ff00ff
    s_mov_b32 exec_hi, 0xff00ff00
    """)
    for b in range(4): A(f"ds_write_b128 v45, {v4(DF[b])} offset:{GP+512*b}")
    A("s_mov_b64 exec, -1")
    hbarrier(4)
    A(f"""
    s_lshl_b32 s8, s71, 9
    v_lshlrev_b32 v45, 4, v{vC}
    v_add_u32 v45, s8, v45
    """)
    for w in range(4):
        for rho in range(2): A(f"ds_read_b128 {v4(56+8*w+4*rho)}, v45 offset:{GP+w*2048+rho*256}")
    A(f"""
    s_lshl_b32 s10, s76, 3
    s_add_u32 s10, s10, s77
    s_lshl_b32 s10, s10, 2
    s_add_u32 s10, s10, s71
    s_lshl_b32 s10, s10, 8
    s_add_u32 s10, s10, {FX}
    v_lshlrev_b32 v46, 4, v{vC}
    v_add_u32 v46, s10, v46
    s_waitcnt lgkmcnt(0)
    """)
    sum_quads([56+4*k for k in range(8)])
    tag4(56)
    A(f"""
    s_mov_b64 exec, 0xffff
    global_store_dwordx4 v46, v[56:59], s[40:41] sc1
    s_mov_b64 exec, -1
    s_lshl_b32 s10, s76, 5
    s_add_u32 s10, s10, s71
    s_lshl_b32 s10, s10, 8
    s_add_u32 s10, s10, {FX}
    v_lshlrev_b32 v46, 11, v{vG}
    v_lshlrev_b32 v47, 4, v{vC}
    v_add_u32 v46, v46, v47
    v_add_u32 v46, s10, v46
    s_mov_b32 s73, {SPIN}
    s_sleep {FSL}
    L_fpoll:
    global_load_dwordx4 v[60:63], v46, s[40:41] offset:1024 sc1
    global_load_dwordx4 v[56:59], v46, s[40:41] sc1
    s_waitcnt vmcnt(0)
    """)
    chk4([56, 60], "L_fok")
    A(f"""
    s_sleep {FSL}
    s_sub_u32 s73, s73, 1
    s_cbranch_scc0 L_fpoll
    L_fok:
    """)
    rows_reduce(range(56, 64))
    for k in range(4): A(f"v_mul_f32 v{64+k}, {f2u(-LOG2E):#x}, v{56+k}")
    for k in range(4): A(f"v_exp_f32 v{64+k}, v{64+k}")
    for k in range(4): A(f"v_add_f32 v{64+k}, 1.0, v{64+k}")
    for k in range(4): A(f"v_rcp_f32 v{64+k}, v{64+k}")
    for k in range(4): A(f"v_mul_f32 v{56+k}, v{56+k}, v{64+k}")
    for k in range(4): A(f"v_mul_f32 v{56+k}, v{56+k}, v{60+k}")
    A(f"""
    v_cvt_pk_bf16_f32 v56, v56, v57
    v_cvt_pk_bf16_f32 v57, v58, v59
    s_lshl_b32 s8, s71, 7
    v_lshlrev_b32 v45, 3, v{vC}
    v_add_u32 v45, s8, v45
    s_mov_b64 exec, 0xffff
    ds_write_b64 v45, v[56:57] offset:{HB}
    s_mov_b64 exec, -1
    """)
    hbarrier(5)
    A(f"""
    v_lshrrev_b32 v45, 3, v{vC}
    v_lshlrev_b32 v45, 7, v45
    v_lshlrev_b32 v46, 2, v{vG}
    v_add_u32 v45, v45, v46
    s_lshl_b32 s8, s71, 5
    v_add_u32 v45, s8, v45
    ds_read_b32 v56, v45 offset:{HB}
    ds_read_b32 v57, v45 offset:{HB+16}
    ds_read_b32 v58, v45 offset:{HB+256}
    ds_read_b32 v59, v45 offset:{HB+256+16}
    s_waitcnt lgkmcnt(0)
    """)
    D2 = [4, 52]
    n = 0
    for ts in range(4):
        for p in range(2):
            aset = 8 + 4 * (n & 1)
            perms(56 + 2*p + (ts >> 1), ts & 1, aset)
            mfma(D2[p], aset, W2r + 4*ts, "0" if ts == 0 else v4(D2[p]))
            n += 1
    A(f"""
    s_lshl_b32 s8, s71, 11
    s_add_u32 s8, s8, {YP2}
    v_lshlrev_b32 v45, 4, v1
    v_add_u32 v45, s8, v45
    ds_write_b128 v45, {v4(D2[0])}
    ds_write_b128 v45, {v4(D2[1])} offset:1024
    """)
    hbarrier(6)
    A(f"""
    s_lshr_b32 s8, s71, 1
    s_lshl_b32 s8, s8, 10
    s_and_b32 s9, s71, 1
    s_lshl_b32 s9, s9, 9
    s_add_u32 s8, s8, s9
    s_add_u32 s8, s8, {YP2}
    v_and_b32 v45, 1, v1
    v_lshlrev_b32 v45, 8, v45
    v_bfe_u32 v46, v1, 1, 4
    v_lshlrev_b32 v46, 4, v46
    v_add_u32 v45, v45, v46
    v_add_u32 v45, s8, v45
    """)
    for w in range(4): A(f"ds_read_b128 {v4(56+4*w)}, v45 offset:{w*2048}")
    A(f"""
    s_lshl_b32 s10, s77, 2
    s_add_u32 s10, s10, s71
    s_mul_i32 s10, s10, 27
    s_add_u32 s10, s10, s76
    s_lshl_b32 s10, s10, 9
    s_add_u32 s10, s10, {FY}
    v_lshlrev_b32 v46, 4, v1
    v_add_u32 v46, s10, v46
    s_waitcnt lgkmcnt(0)
    """)
    sum_quads([56, 60, 64, 68])
    for k in range(4): A(f"v_mul_f32 v{56+k}, v{56+k}, v32")
    tag4(56)
    A(f"""
    s_mov_b32 exec_lo, s70
    s_mov_b32 exec_hi, 0
    global_store_dwordx4 v46, v[56:59], s[40:41] sc1
    s_mov_b64 exec, -1
    """)
    A("L_noffn:")
    stamp(5)
    WOr = 128
    A(f"""
    v_lshlrev_b32 v45, 4, v1
    v_add_u32 v45, {WOL}, v45
    """)
    for i in range(32):
        A(f"ds_read_b128 {v4(WOr+4*i)}, v45 offset:{1024*i}")
        if i % 8 == 7: A("s_waitcnt lgkmcnt(0)")
    A(f"""
    s_bfe_u32 s9, s2, 0x20003
    s_lshl_b32 s9, s9, 1
    s_add_u32 s9, s9, 1
    s_and_b32 s8, s2, 7
    s_cmp_eq_u32 s8, s9
    s_cselect_b32 s75, 1, 0
    s_lshr_b32 s76, s2, 5
    s_bfe_u32 s77, s2, 0x20003
    """)
    blk("s76", "s65", "s69", "s70")
    FSUM = 36
    M20 = 0x000fffff000fffff
    A("s_cmp_eq_u32 s75, 1"); A("s_cbranch_scc0 L_nocol")
    if not opt.get("noffn") :
        A(f"""
        s_lshl_b32 s8, s76, 2
        s_add_u32 s8, s8, s77
        s_mul_i32 s8, s8, 27
        s_add_u32 s8, s8, s71
        s_lshl_b32 s8, s8, 9
        s_add_u32 s8, s8, {FY}
        v_lshrrev_b32 v46, 5, v1
        v_lshlrev_b32 v46, 11, v46
        v_and_b32 v47, 31, v1
        v_lshlrev_b32 v47, 4, v47
        v_add_u32 v46, v46, v47
        v_add_u32 v46, s8, v46
        s_mov_b32 s73, {SPIN}
        L_cpoll:
        v_mov_b32 v48, v46
        """)
        for k in range(4):
            if k < 3: A(f"s_mov_b32 exec_lo, s70"); A("s_mov_b32 exec_hi, s70")
            else:
                A("s_cmp_lt_u32 s71, 3"); A("s_cbranch_scc0 L_cskip"); A("s_mov_b32 exec_lo, s70"); A("s_mov_b32 exec_hi, 0")
            A(f"global_load_dwordx4 {v4(56+4*k)}, v48, s[40:41] sc1")
            A("s_mov_b64 exec, -1")
            if k == 3: A("L_cskip:")
            if k < 3: A(f"v_add_u32 v48, {8*512}, v48")
        A("s_waitcnt vmcnt(0)")
        A(f"""
        v_and_b32 v44, 31, v1
        s_lshl_b32 s8, s69, 1
        v_cmp_le_u32 vcc, s8, v44
        """)
        for k in range(4):
            for r in range(4): A(f"v_cndmask_b32 v{56+4*k+r}, v{56+4*k+r}, v{TG+r}, vcc")
        A(f"""
        s_cmp_lt_u32 s71, 3
        s_cselect_b32 s8, 0xffffffff, 0
        s_mov_b32 s9, 0
        s_not_b64 vcc, s[8:9]
        """)
        for r in range(4): A(f"v_cndmask_b32 v{68+r}, v{68+r}, v{TG+r}, vcc")
        chk4([56, 60, 64, 68], "L_cok")
        A(f"""
        s_sleep 64
        s_sub_u32 s73, s73, 1
        s_cbranch_scc0 L_cpoll
        L_cok:
        """)
        sum_quads([56, 60, 64, 68])
        for r in range(4): A(f"v_mov_b32 v{60+r}, v{56+r}")
        for r in range(4): A(f"v_permlane32_swap_b32 v{56+r}, v{60+r}")
        for r in range(4): A(f"v_add_f32 v{56+r}, v{56+r}, v{60+r}")
        A(f"""
        s_lshl_b32 s8, s71, 9
        v_lshlrev_b32 v45, 4, v1
        v_add_u32 v45, s8, v45
        s_mov_b32 exec_hi, 0
        ds_write_b128 v45, v[56:59] offset:{FS}
        s_mov_b32 exec_hi, -1
        """)
        hbarrier(4)
        A(f"v_lshlrev_b32 v45, 4, v1")
        A("s_mov_b32 exec_hi, 0")
        for w in range(4): A(f"ds_read_b128 {v4(56+4*w)}, v45 offset:{FS+512*w}")
        A("s_mov_b32 exec_hi, -1")
        A("s_waitcnt lgkmcnt(0)")
        sum_quads([56, 60, 64, 68])
        for r in range(4): A(f"v_mov_b32 v{FSUM+r}, v{56+r}")
    else:
        for r in range(4): A(f"v_mov_b32 v{FSUM+r}, 0")
    A("L_nocol:")
    if CTL:
        A("s_cmp_eq_u32 s71, 1"); A("s_cbranch_scc0 L_noctl")
        A(f"""
        s_lshl_b32 s8, s2, 7
        s_add_u32 s8, s8, {PF}
        v_mov_b32 v46, s8
        v_add_u32 v47, 1, v1
        v_xor_b32 v47, s2, v47
        v_lshlrev_b32 v47, 7, v47
        v_add_u32 v47, {PF}, v47
        v_mov_b32 v44, 0
        v_mov_b32 v48, s74
        s_mov_b32 s11, 0
        L_ctl:
        s_mov_b64 exec, 1
        s_add_u32 s11, s11, 1
        s_lshl_b32 s9, s11, 2
        s_sub_u32 s9, s9, {int(opt.get("ckq", 1))}
        s_mov_b32 s73, {SPIN}
        L_ctl_w:
        ds_read_b32 v45, v44 offset:{CKC}
        s_waitcnt lgkmcnt(0)
        v_readfirstlane_b32 s8, v45
        s_cmp_ge_u32 s8, s9
        s_cbranch_scc1 L_ctl_go
        s_sleep 4
        s_sub_u32 s73, s73, 1
        s_cbranch_scc0 L_ctl_w
        L_ctl_go:
        global_store_dword v46, v48, s[40:41] sc1
        s_mov_b64 exec, {CMASK:#x}
        global_load_dword v45, v47, s[40:41] sc1
        s_waitcnt vmcnt(0)
        v_cmp_eq_u32 vcc, s74, v45
        s_bcnt1_i32_b64 s8, vcc
        s_cmp_ge_u32 s8, {CT2 if L3 else 99}
        s_cselect_b32 s9, 1, 0
        s_cmp_ge_u32 s8, {CTHR}
        s_cselect_b32 s8, 1, 0
        s_add_u32 s8, s8, s9
        s_mov_b64 exec, -1
        v_mov_b32 v45, s8
        ds_write_b32 v44, v45 offset:{MODE}
        v_add_u32 v46, 4, v46
        v_add_u32 v47, 4, v47
        s_cmp_lt_u32 s11, {len(CKS)}
        s_cbranch_scc1 L_ctl
        s_mov_b64 exec, -1
        s_branch L_B2
        L_noctl:
        """)
    lds_spin(CNTK, "ge", 8, 4)
    A("s_cmp_eq_u32 s71, 0"); A("s_cbranch_scc0 L_nostat")
    A(f"""
    v_and_b32 v44, 3, v1
    v_lshlrev_b32 v44, 3, v44
    ds_read_b64 v[46:47], v44 offset:{ST}
    s_waitcnt lgkmcnt(0)
    v_mov_b32 v48, v46
    v_max_f32_dpp v48, v48, v48 quad_perm:[2,3,0,1] row_mask:0xf bank_mask:0xf
    v_max_f32_dpp v48, v48, v48 quad_perm:[1,0,3,2] row_mask:0xf bank_mask:0xf
    v_sub_f32 v49, v46, v48
    v_exp_f32 v49, v49
    v_mul_f32 v49, v49, v47
    v_add_f32_dpp v49, v49, v49 quad_perm:[2,3,0,1] row_mask:0xf bank_mask:0xf
    v_add_f32_dpp v49, v49, v49 quad_perm:[1,0,3,2] row_mask:0xf bank_mask:0xf
    s_lshl_b32 s8, s2, 7
    s_add_u32 s8, s8, {SX}
    v_mov_b32 v44, s8
    v_mov_b32 v56, v48
    v_mov_b32 v57, s74
    v_mov_b32 v58, v49
    v_mov_b32 v59, s74
    s_mov_b64 exec, 1
    global_store_dwordx4 v44, v[56:59], s[40:41] sc1
    s_xor_b32 s8, s2, {PX_}
    s_lshl_b32 s8, s8, 7
    s_add_u32 s8, s8, {SX}
    v_mov_b32 v44, s8
    s_mov_b32 s73, {SPIN}
    L_pspin:
    global_load_dwordx4 v[60:63], v44, s[40:41] sc1
    s_waitcnt vmcnt(0)
    """)
    check_tags([61, 63], "L_pok")
    A(f"""
    s_sleep 32
    s_sub_u32 s73, s73, 1
    s_cbranch_scc0 L_pspin
    L_pok:
    v_readfirstlane_b32 s8, v60
    v_readfirstlane_b32 s9, v62
    s_mov_b64 exec, -1
    v_mov_b32 v60, s8
    v_mov_b32 v62, s9
    v_max_f32 v52, v48, v60
    v_sub_f32 v53, v48, v52
    v_sub_f32 v54, v60, v52
    v_exp_f32 v53, v53
    v_exp_f32 v54, v54
    v_mul_f32 v53, v53, v49
    v_fma_f32 v53, v54, v62, v53
    v_rcp_f32 v53, v53
    v_sub_f32 v54, v46, v52
    v_exp_f32 v54, v54
    v_mul_f32 v54, v54, v53
    v_and_b32 v44, 3, v1
    v_lshlrev_b32 v44, 2, v44
    v_mov_b32 v45, 1
    v_mov_b32 v55, 0
    s_mov_b64 exec, 15
    ds_write_b32 v44, v54 offset:{SCALE}
    s_mov_b64 exec, 1
    ds_write_b32 v55, v45 offset:{SCRDY}
    s_mov_b64 exec, -1
    L_nostat:
    """)
    A("L_B2:")
    if HST == 3: A("s_waitcnt lgkmcnt(0)"); A("s_barrier"); A("s_branch L_hend")
    A(f"""
    s_lshl_b32 s10, s71, 6
    s_lshl_b32 s9, s4, 1
    s_add_u32 s10, s10, s9
    s_lshl_b32 s10, s10, 9
    s_add_u32 s10, s10, {OX}
    v_lshlrev_b32 v46, 4, v1
    v_add_u32 v46, s10, v46
    v_lshlrev_b32 v49, 9, v1
    v_add_u32 v49, s10, v49
    v_and_b32 v47, 1, v1
    v_lshlrev_b32 v47, 7, v47
    v_bfe_u32 v48, v1, 1, 4
    v_lshlrev_b32 v48, 2, v48
    v_add_u32 v47, v47, v48
    s_lshl_b32 s8, s71, 8
    v_add_u32 v47, s8, v47
    v_add_u32 v47, {OB}, v47
    v_lshlrev_b32 v48, 6, v{vG}
    v_add_u32 v48, s8, v48
    v_lshlrev_b32 v41, 5, v{vC}
    v_lshlrev_b32 v42, 4, v{vG}
    v_add_u32 v41, v41, v42
    s_lshl_b32 s8, s71, 9
    v_add_u32 v41, s8, v41
    v_lshlrev_b32 v42, 4, v1
    v_add_u32 v42, s8, v42
    s_lshl_b32 s10, s72, 2
    s_add_u32 s10, s10, s71
    s_lshl_b32 s10, s10, 5
    s_add_u32 s10, s10, s4
    s_lshl_b32 s10, s10, 9
    s_add_u32 s10, s10, {YX}
    v_lshlrev_b32 v43, 4, v1
    v_add_u32 v43, s10, v43
    s_waitcnt lgkmcnt(0)
    s_barrier
    """)
    stamp(6)
    if DUAL:
        A(f"""
        v_add_u32 v49, {(OXA - OX) & 0xffffffff:#x}, v46
        s_mov_b32 s73, {SPIN}
        L_opoll:
        global_load_dwordx4 v[56:59], v49, s[40:41] sc1
        s_waitcnt vmcnt(0)
        """)
        chk4([56], "L_ook")
        A(f"""
        s_and_b32 s8, s73, 3
        s_cmp_eq_u32 s8, 0
        s_cbranch_scc0 L_onext
        global_load_dwordx4 v[56:59], v46, s[40:41] sc1
        s_waitcnt vmcnt(0)
        """)
        chk4([56], "L_ook")
        A(f"""
        L_onext:
        s_sub_u32 s73, s73, 1
        s_cbranch_scc0 L_opoll
        L_ook:
        """)
    else:
        A(f"""
        s_mov_b32 s73, {SPIN}
        L_opoll:
        global_load_dwordx4 v[56:59], v46, s[40:41] sc1
        s_waitcnt vmcnt(0)
        """)
        chk4([56], "L_ook")
        A(f"""
        s_sleep {OSL}
        s_sub_u32 s73, s73, 1
        s_cbranch_scc0 L_opoll
        L_ook:
        """)
    for r in range(4): A(f"v_mov_b32 v{60+r}, v{56+r}")
    for r in range(4): A(f"v_permlane32_swap_b32 v{56+r}, v{60+r}")
    for r in range(4): A(f"v_add_f32 v{56+r}, v{56+r}, v{60+r}")
    A(f"""
    v_cvt_pk_bf16_f32 v56, v56, v57
    v_cvt_pk_bf16_f32 v57, v58, v59
    s_mov_b32 exec_hi, 0
    ds_write2_b32 v47, v56, v57 offset0:{0} offset1:{16}
    s_mov_b32 exec_hi, -1
    s_waitcnt lgkmcnt(0)
    """.replace("v47, v56, v57 offset0:0 offset1:16", "v47, v56, v57 offset0:0 offset1:16"))
    XO = 64
    for k in range(4): A(f"ds_read_b128 {v4(XO+4*k)}, v48 offset:{OB+16*k}")
    A("s_waitcnt lgkmcnt(0)")
    stamp(7)
    perms(XO, 0, 8)
    for i in range(32):
        if i + 1 < 32: perms(XO + (i+1)//2, (i+1) & 1, 8 + 4*((i+1) & 1))
        mfma(4, 8 + 4*(i & 1), WOr + 4*i, "0" if i == 0 else "v[4:7]")
    A(f"""
    s_mov_b32 exec_hi, 0
    ds_write_b128 v41, v[4:7] offset:{YS}
    s_waitcnt lgkmcnt(0)
    ds_read_b128 v[56:59], v42 offset:{YS}
    s_waitcnt lgkmcnt(0)
    """)
    for k in range(4): A(f"v_mul_f32 v{56+k}, v{56+k}, v33")
    tag4(56)
    A(f"""
    s_mov_b32 exec_lo, s68
    s_mov_b32 exec_hi, 0
    global_store_dwordx4 v43, v[56:59], s[40:41] sc1
    s_mov_b64 exec, -1
    {"s_branch L_hend" if HST == 4 else ""}
    s_cmp_eq_u32 s75, 1
    s_cbranch_scc0 L_hend
    s_lshl_b32 s10, s76, 2
    s_add_u32 s10, s10, s77
    s_lshl_b32 s10, s10, 5
    s_lshl_b32 s9, s71, 3
    s_add_u32 s10, s10, s9
    s_lshl_b32 s10, s10, 9
    s_add_u32 s10, s10, {YX}
    v_lshrrev_b32 v46, 5, v1
    v_lshlrev_b32 v46, 9, v46
    v_and_b32 v47, 31, v1
    v_lshlrev_b32 v47, 4, v47
    v_add_u32 v46, v46, v47
    v_add_u32 v46, s10, v46
    v_add_u32 v47, 2048, v46
    """)
    ya = [(46, 0), (46, 1024), (47, 0), (47, 1024)]
    A(f"""
    s_mov_b32 s73, {SPIN}
    s_mov_b32 s52, s70
    s_mov_b32 s53, s70
    s_mov_b64 s[54:55], s[52:53]
    s_mov_b64 s[56:57], s[52:53]
    s_mov_b64 s[58:59], s[52:53]
    s_mov_b32 s12, 0x0c0c0400
    s_mov_b32 s13, 0x04000c0c
    L_ypoll:
    """)
    for q, (ar, off) in enumerate(ya):
        A(f"s_mov_b64 exec, s[{52+2*q}:{53+2*q}]")
        A(f"s_cbranch_execz L_ysk{q}")
        A(f"global_load_dwordx4 {v4(56+4*q)}, v{ar}, s[40:41] offset:{off} sc1")
        A(f"L_ysk{q}:")
    A("s_mov_b32 exec_lo, s70"); A("s_mov_b32 exec_hi, s70")
    A("s_waitcnt vmcnt(0)")
    for q in range(4):
        d = 56 + 4*q
        A(f"v_perm_b32 v44, v{d+1}, v{d}, s12")
        A(f"v_perm_b32 v45, v{d+3}, v{d+2}, s13")
        A(f"v_or_b32 v44, v44, v45")
        A(f"v_cmp_ne_u32 s[{52+2*q}:{53+2*q}], s74, v44")
    A(f"""
    s_or_b64 s[8:9], s[52:53], s[54:55]
    s_or_b64 s[10:11], s[56:57], s[58:59]
    s_or_b64 s[8:9], s[8:9], s[10:11]
    s_cbranch_scc0 L_yok
    s_sleep {int(opt.get("ysl", 1))}
    s_sub_u32 s73, s73, 1
    s_cbranch_scc0 L_ypoll
    L_yok:
    s_mov_b64 exec, -1
    """)
    sum_quads([56, 60, 64, 68])
    for r in range(4): A(f"v_mov_b32 v{60+r}, v{56+r}")
    for r in range(4): A(f"v_permlane32_swap_b32 v{56+r}, v{60+r}")
    for r in range(4): A(f"v_add_f32 v{56+r}, v{56+r}, v{60+r}")
    A(f"""
    s_lshl_b32 s8, s71, 9
    v_lshlrev_b32 v45, 4, v1
    v_add_u32 v45, s8, v45
    s_mov_b32 exec_hi, 0
    ds_write_b128 v45, v[56:59] offset:{FS}
    s_mov_b32 exec_hi, -1
    s_waitcnt lgkmcnt(0)
    s_barrier
    s_cmp_eq_u32 s71, 0
    s_cbranch_scc0 L_hend
    v_lshlrev_b32 v45, 4, v1
    s_mov_b32 exec_lo, s70
    s_mov_b32 exec_hi, 0
    """)
    for w in range(4): A(f"ds_read_b128 {v4(56+4*w)}, v45 offset:{FS+512*w}")
    A(f"""
    s_mul_i32 s8, s77, 1280
    s_add_u32 s8, s8, s65
    v_lshlrev_b32 v44, 3, v1
    v_add_u32 v44, s8, v44
    s_waitcnt lgkmcnt(0)
    """)
    sum_quads([56, 60, 64, 68])
    for k in (0, 2): pk(56+k, 56+k, FSUM+k)
    A(f"""
    v_cvt_pk_bf16_f32 v56, v56, v57
    v_cvt_pk_bf16_f32 v57, v58, v59
    global_store_dwordx2 v44, v[56:57], s[36:37]
    s_mov_b64 exec, -1
    """)
    A("L_hend:")
    stamp(8)
    store_stamps(9)
    A("L_end:")
    A("s_endpgm")
    body = A.finalize()
    body += f""".section .rodata,"a"
.p2align 6
.amdhsa_kernel {NAME}_kernel
  .amdhsa_next_free_vgpr 256
  .amdhsa_next_free_sgpr 102
  .amdhsa_accum_offset 256
  .amdhsa_group_segment_fixed_size 0
  .amdhsa_kernarg_size 104
  .amdhsa_user_sgpr_count 2
  .amdhsa_user_sgpr_kernarg_segment_ptr 1
  .amdhsa_system_sgpr_workgroup_id_x 1
.end_amdhsa_kernel
"""
    return body

if __name__ == "__main__":
    out = sys.argv[1] if len(sys.argv) > 1 else f"cdna_kernels/{NAME}.s"
    opt = {}
    for a in sys.argv[2:]:
        k, v = a.split("=")
        opt[k] = {"1": True, "0": False}.get(v, v) if k in ("stamps", "fine", "noffn") else v
    open(out, "w").write(gen(opt))
    print("wrote", out)
```

```python
import sys, struct
sys.path.insert(0, "gen")
from asmb import Asm
NAME = "gated_mix__mha_block_cached__swiglu_ffn__decode"
def f2u(x): return struct.unpack("<I", struct.pack("<f", x))[0]
LOG2E = 1.4426950408889634
CSC = LOG2E / (128 ** 0.5)
CNTK = 0; CNTH = 4; SCRDY = 8; QRDY = 12; CKC = 16; MODE = 20; NONCE = 32
ST = 40; SCALE = 72
QB = 128; HB = 512; OB = 1024; YS = 2048; OP = 4096; FS = 6144
GP = 8192; WOL = 16384; YP2 = 49152
XL = 49152 + 16384
GWL = XL + 5120
LDS_BYTES = GWL + 1280
SX = 0; QX = 0x10000; FX = 0x50000; OX = 0xE0000; YX = 0x100000; OXA = 0xA0000; FY = 0x180000; PF = 0x8000
NFFN = 108; FFN0 = 20
SPIN = 200000
class VMQ:
    def __init__(self, A): self.q = []; self.A = A
    def issue(self, tag):
        self.q.append(tag); assert len(self.q) <= 63, len(self.q)
    def pace(self, depth):
        if depth and len(self.q) >= depth:
            self.A(f"s_waitcnt vmcnt({depth-1})"); self.q = self.q[len(self.q) - (depth - 1):] if depth > 1 else []
    def wait(self, tag):
        if tag not in self.q: return
        idx = self.q.index(tag); n = len(self.q) - 1 - idx
        self.A(f"s_waitcnt vmcnt({n})"); self.q = self.q[idx + 1:]

def gen(opt=None):
    opt = opt or {}
    KVF = opt.get("kvflags", "nt"); WF = opt.get("wflags", "nt")
    stamps = opt.get("stamps", False); FINE = opt.get("fine", False)
    NSLEEP = int(opt.get("nsleep", 10)); QSLEEP = int(opt.get("qsleep", 16))
    WK = int(opt.get("wk", 32)); WV = int(opt.get("wv", 48))
    BP = int(opt.get("bp", 2))
    FSTOP = int(opt.get("fstop", 0))
    OSL = int(opt.get("osl", 1)); FSL = int(opt.get("fsl", 48))
    A = Asm()
    A(f"; @launch grid=(256,1,1) block=(512,1,1) lds={LDS_BYTES}")
    A('.amdgcn_target "amdgcn-amd-amdhsa--gfx950"')
    A(".text"); A(f".globl {NAME}_kernel"); A(".p2align 8"); A(f".type {NAME}_kernel,@function"); A(f"{NAME}_kernel:")
    vG, vC = 34, 35
    SELL, SELH = 16, 20
    M = 36; Q = 40
    uid = [0]
    def U(): uid[0] += 1; return uid[0]
    def v4(r): return f"v[{r}:{r+3}]"
    def stamp(i):
        if stamps: A(f"s_memrealtime s[{80+2*i}:{81+2*i}]")
    def store_stamps(n):
        if not stamps: return
        A("""
        s_waitcnt lgkmcnt(0)
        s_lshl_b32 s8, s2, 10
        s_lshl_b32 s9, s3, 7
        s_add_u32 s8, s8, s9
        s_add_u32 s8, s8, 0x2000000
        v_mov_b32 v44, s8
        s_mov_b64 exec, 1
        """)
        for i in range(n):
            A(f"v_mov_b32 v45, s{80+2*i}"); A(f"global_store_dword v44, v45, s[40:41] offset:{4*i}"); A("s_nop 0")
        A("s_getreg_b32 s9, hwreg(HW_REG_XCC_ID)"); A("v_mov_b32 v45, s9"); A("global_store_dword v44, v45, s[40:41] offset:120")
        A("s_mov_b64 exec, -1")
    def lds_spin(off, cond, sleep, val=None):
        t = U()
        A(f"""
        v_mov_b32 v44, 0
        s_mov_b32 s73, {SPIN}
        L_sp{t}:
        ds_read_b32 v45, v44 offset:{off}
        s_waitcnt lgkmcnt(0)
        v_readfirstlane_b32 s8, v45
        """)
        if cond == "nz": A("s_cmp_lg_u32 s8, 0")
        else: A(f"s_cmp_ge_u32 s8, {val}")
        A(f"""
        s_cbranch_scc1 L_sp{t}_ok
        s_sleep {sleep}
        s_sub_u32 s73, s73, 1
        s_cbranch_scc0 L_sp{t}
        L_sp{t}_ok:
        """)
    def hbarrier(n, sleep=1):
        A(f"""
        s_waitcnt lgkmcnt(0)
        v_mov_b32 v44, 0
        v_mov_b32 v45, 1
        s_mov_b64 exec, 1
        ds_add_u32 v44, v45 offset:{CNTH}
        s_mov_b64 exec, -1
        """)
        lds_spin(CNTH, "ge", sleep, 4 * n)
    def perms(xreg, hi, aset):
        sel = SELH if hi else SELL
        for r in range(4): A(f"v_perm_b32 v{aset+r}, v{xreg}, v{xreg}, v{sel+r}")
    def pk(d, a, b): A(f"v_pk_add_f32 v[{d}:{d+1}], v[{a}:{a+1}], v[{b}:{b+1}]")
    def mfma(d, a, b, c): A(f"v_mfma_f32_16x16x32_bf16 {v4(d)}, {v4(a)}, {v4(b)}, {c}")
    def rowreduce(op, reg):
        A(f"{op}_dpp v{reg}, v{reg}, v{reg} row_ror:8 row_mask:0xf bank_mask:0xf")
        A(f"{op}_dpp v{reg}, v{reg}, v{reg} row_ror:4 row_mask:0xf bank_mask:0xf")
        A(f"{op}_dpp v{reg}, v{reg}, v{reg} quad_perm:[2,3,0,1] row_mask:0xf bank_mask:0xf")
        A(f"{op}_dpp v{reg}, v{reg}, v{reg} quad_perm:[1,0,3,2] row_mask:0xf bank_mask:0xf")
    def wavereduce(op, reg):
        rowreduce(op, reg)
        for k in range(4): A(f"v_readlane_b32 s{8+k}, v{reg}, {16*k}")
        A(f"v_mov_b32 v{reg}, s8")
        for k in range(1, 4): A(f"{op} v{reg}, s{8+k}, v{reg}")
    def check_tags(tags, okl):
        A(f"v_cmp_ne_u32 s[78:79], s74, v{tags[0]}")
        for t in tags[1:]:
            A(f"v_cmp_ne_u32 vcc, s74, v{t}")
            A("s_or_b64 s[78:79], s[78:79], vcc")
        A("s_cmp_eq_u64 s[78:79], 0")
        A(f"s_cbranch_scc1 {okl}")
    def blk(sj, soff, snch, smask):
        A(f"""
        s_cmp_ge_u32 {sj}, 1
        s_cselect_b32 {soff}, 1, 0
        s_add_u32 {soff}, {soff}, {sj}
        s_cmp_ge_u32 {sj}, 5
        s_addc_u32 {soff}, {soff}, 0
        s_lshl_b32 {soff}, {soff}, 7
        s_and_b32 {snch}, {sj}, 3
        s_cmp_eq_u32 {snch}, 0
        s_cselect_b32 {snch}, 16, 8
        s_cselect_b32 {smask}, -1, 0xffff
        """)
    TG = 28
    def tag4(d, tg=TG):
        for k in range(4): A(f"v_and_or_b32 v{d+k}, v{d+k}, s75x, v{tg+k}".replace("s75x", "s14"))
    def settags(nonce_v, tg):
        A("s_mov_b32 s14, 0xffffff00")
        A(f"v_and_b32 v{tg}, 0xff, v{nonce_v}")
        for k in range(1, 4): A(f"v_bfe_u32 v{tg+k}, v{nonce_v}, {8*k}, 8")
    def chk4(quads, okl, tmp=44):
        A("s_mov_b32 s12, 0x0c0c0400"); A("s_mov_b32 s13, 0x04000c0c")
        for i, d in enumerate(quads):
            A(f"v_perm_b32 v{tmp}, v{d+1}, v{d}, s12")
            A(f"v_perm_b32 v{tmp+1}, v{d+3}, v{d+2}, s13")
            A(f"v_or_b32 v{tmp}, v{tmp}, v{tmp+1}")
            if i == 0: A(f"v_cmp_ne_u32 s[78:79], s74, v{tmp}")
            else:
                A(f"v_cmp_ne_u32 vcc, s74, v{tmp}"); A("s_or_b64 s[78:79], s[78:79], vcc")
        A("s_cmp_eq_u64 s[78:79], 0"); A(f"s_cbranch_scc1 {okl}")
    def probe(addr_v, mask, sleep):
        t = U()
        A(f"""
        s_mov_b32 s73, {SPIN}
        s_and_b32 s15, s74, 0xff
        s_mov_b64 exec, {mask:#x}
        L_pr{t}:
        global_load_dword v45, v{addr_v}, s[40:41] sc1
        s_waitcnt vmcnt(0)
        v_and_b32 v45, 0xff, v45
        v_cmp_ne_u32 vcc, s15, v45
        s_cmp_eq_u64 vcc, 0
        s_cbranch_scc1 L_pr{t}_ok
        s_sleep {sleep}
        s_sub_u32 s73, s73, 1
        s_cbranch_scc0 L_pr{t}
        L_pr{t}_ok:
        s_mov_b64 exec, -1
        """)

    A("""
    s_cmp_ge_u32 s2, 256
    s_cbranch_scc1 L_end
    s_load_dwordx16 s[16:31], s[0:1], 0
    s_load_dwordx8 s[32:39], s[0:1], 64
    s_load_dwordx2 s[40:41], s[0:1], 96
    """)
    stamp(0)
    EB = opt.get("eb", "0") in ("1", True)
    EB_A = "s_barrier" if EB else ""
    DUAL = opt.get("dual", "1") in ("1", True)
    MAP = opt.get("map", "loc")
    if MAP == "loc":
        MAPCODE = """s_and_b32 s4, s2, 31
    s_lshr_b32 s5, s2, 6
    s_bfe_u32 s6, s2, 0x10005
    s_lshl_b32 s7, s5, 5
    s_add_u32 s7, s7, s4"""; PX_ = 32
    else:
        MAPCODE = """s_lshr_b32 s8, s2, 1
    s_xor_b32 s9, s8, s2
    s_and_b32 s9, s9, 1
    s_and_b32 s6, s8, 1
    s_lshr_b32 s8, s2, 2
    s_lshl_b32 s8, s8, 1
    s_add_u32 s7, s8, s9
    s_and_b32 s4, s7, 31
    s_lshr_b32 s5, s7, 5"""; PX_ = 3
    if stamps and opt.get("clk"): A("s_memtime s[100:101]")
    A(f"""
    v_lshrrev_b32 v3, 6, v0
    v_and_b32 v1, 63, v0
    v_readfirstlane_b32 s3, v3
    v_mov_b32 v4, 0
    v_mov_b32 v5, 0
    v_mov_b32 v6, 0
    v_mov_b32 v7, 0
    s_cmp_eq_u32 s3, 4
    s_cbranch_scc0 L_noz
    s_mov_b64 exec, 1
    ds_write_b128 v4, v[4:7] offset:0
    ds_write_b128 v4, v[4:7] offset:16
    s_mov_b64 exec, -1
    {"s_waitcnt lgkmcnt(0)" if EB else ""}
    L_noz:
    {"s_waitcnt lgkmcnt(0)" if False else ""}
    {EB_A}
    {MAPCODE}
    v_lshrrev_b32 v{vG}, 4, v1
    v_and_b32 v{vC}, 15, v1
    s_cmp_ge_u32 s3, 4
    s_cbranch_scc1 L_H
    """)
    A(f"""
    s_lshl_b32 s9, s3, 12
    v_lshlrev_b32 v2, 4, v1
    v_add_u32 v2, s9, v2
    s_lshl_b32 s8, s7, 20
    s_cmp_eq_u32 s6, 0
    s_cselect_b32 s64, 0, {63*16384}
    s_mov_b32 s9, 16384
    s_cselect_b32 s43, s9, {(-16384) & 0xffffffff:#x}
    s_waitcnt lgkmcnt(0)
    s_add_u32 s52, s18, s8
    s_addc_u32 s53, s19, 0
    s_and_b32 s53, s53, 0xffff
    s_mov_b32 s54, 0x100000
    s_mov_b32 s55, 0x20000
    s_add_u32 s56, s20, s8
    s_addc_u32 s57, s21, 0
    s_and_b32 s57, s57, 0xffff
    s_mov_b32 s58, 0x100000
    s_mov_b32 s59, 0x20000
    s_mov_b32 s65, s64
    {"" if EB else "s_barrier"}
    """)
    vq = VMQ(A)
    def slot(sl): return 128 + 4 * sl if sl < 32 else 64 + 4 * (sl - 32)
    def kslot(i): return slot(i % WK)
    DEPTH = int(opt.get("depth", 6))
    CTL = opt.get("ctl", "0") in ("1", True)
    DSH = int(opt.get("dsh", 5))
    CMASK = int(opt.get("cmask", "0x7f"), 0); CTHR = int(opt.get("cthr", 4))
    L3 = opt.get("l3", "0") in ("1", True); DMID = int(opt.get("dmid", 6)); CT2 = int(opt.get("ct2", 5))
    CKS = [int(x) for x in opt.get("cks", "64,96,128,160,192,224").split(",")]
    ctl_on = [False]
    cur_pos = [0]
    POS2 = int(opt.get("pos2", 999)); DSH2 = int(opt.get("dsh2", 4)); DEPTH2 = int(opt.get("depth2", 0))
    DSH_0, DEPTH_0 = DSH, DEPTH
    def pace():
        nonlocal DSH, DEPTH
        if cur_pos[0] >= POS2: DSH, DEPTH = DSH2, DEPTH2
        else: DSH, DEPTH = DSH_0, DEPTH_0
        if not (CTL and ctl_on[0]):
            vq.pace(int(opt.get("d0", DEPTH))); return
        if L3:
            t = U()
            if len(vq.q) >= DSH:
                A("s_cmp_ge_u32 s76, 2"); A(f"s_cbranch_scc1 L_pc{t}")
                if len(vq.q) >= DMID: A(f"s_waitcnt vmcnt({DMID-1})")
                A("s_cmp_ge_u32 s76, 1"); A(f"s_cbranch_scc1 L_pc{t}"); A(f"s_waitcnt vmcnt({DSH-1})"); A(f"L_pc{t}:")
        elif len(vq.q) >= DSH:
            t = U()
            A("s_cmp_lg_u32 s76, 0"); A(f"s_cbranch_scc1 L_pc{t}"); A(f"s_waitcnt vmcnt({DSH-1})"); A(f"L_pc{t}:")
        vq.pace(DEPTH)
    def ctl_step(pos):
        cur_pos[0] = pos
        if not CTL: return
        if pos in CKS:
            A("s_mov_b64 exec, 1"); A(f"ds_add_u32 v17, v19 offset:{CKC}"); A("s_mov_b64 exec, -1")
        if pos >= CKS[0] and pos % 8 == 0:
            A("s_waitcnt lgkmcnt(0)"); A("v_readfirstlane_b32 s76, v18"); A(f"ds_read_b32 v18, v17 offset:{MODE}")
            ctl_on[0] = True
    def kload(i):
        pace()
        if i % 4 == 0 and i > 0: A("s_add_u32 s65, s65, s43")
        A(f"buffer_load_dwordx4 {v4(kslot(i))}, v2, s[52:55], s65 offen offset:{(i%4)*1024} {KVF}")
        vq.issue(("K", i))
    def vslot(v): return slot(v % WV)
    def vload(v):
        pace()
        if v == 0: A("s_mov_b32 s65, s64")
        elif v % 4 == 0: A("s_add_u32 s65, s65, s43")
        A(f"buffer_load_dwordx4 {v4(vslot(v))}, v2, s[56:59], s65 offen offset:{(v%4)*1024} {KVF}")
        vq.issue(("V", v))
    for i in range(WK): kload(i)
    A(f"""
    v_and_b32 v44, 1, v{vC}
    v_cmp_eq_u32 vcc, 1, v44
    v_mov_b32 v45, 0x0000ffff
    v_mov_b32 v46, 0xffff0000
    v_cndmask_b32 v47, v45, v46, vcc
    v_bfe_u32 v44, v{vC}, 1, 2
    v_mov_b32 v46, 0
    """)
    for r in range(4):
        A(f"v_cmp_eq_u32 vcc, {r}, v44")
        A(f"v_cndmask_b32 v{M+r}, v46, v47, vcc")
    A(f"""
    s_mov_b32 s42, {f2u(CSC):#x}
    s_mov_b32 s66, 0xcccccccc
    s_mov_b32 s67, 0xcccccccc
    s_mov_b32 s68, 0xaaaaaaaa
    s_mov_b32 s69, 0xaaaaaaaa
    """)
    A("v_mov_b32 v17, 0"); A("v_mov_b32 v18, 0"); A("v_mov_b32 v19, 1"); A("s_mov_b32 s76, 0")
    lds_spin(QRDY, "nz", 2)
    A(f"""
    v_lshlrev_b32 v46, 4, v{vC}
    ds_read_b128 {v4(Q)}, v46 offset:{QB}
    ds_read_b32 v16, v44 offset:{NONCE}
    s_waitcnt lgkmcnt(0)
    """)
    stamp(1)
    T = 48
    def reduce16(dest):
        for a in range(8):
            A(f"v_add_f32_dpp v{T+a}, v{T+a}, v{T+a} row_ror:8 row_mask:0xf bank_mask:0x3")
            A(f"v_add_f32_dpp v{T+a}, v{T+a+8}, v{T+a+8} row_ror:8 row_mask:0xf bank_mask:0xc")
        for a in range(4):
            A(f"v_add_f32_dpp v{T+a}, v{T+a}, v{T+a} row_half_mirror row_mask:0xf bank_mask:0x5")
            A(f"v_add_f32_dpp v{T+a}, v{T+a+4}, v{T+a+4} row_half_mirror row_mask:0xf bank_mask:0xa")
        for a in range(2):
            A(f"v_cndmask_b32 v{44+2*a}, v{T+a}, v{T+a+2}, s[66:67]")
            A(f"v_cndmask_b32 v{45+2*a}, v{T+a+2}, v{T+a}, s[66:67]")
        for a in range(2):
            A(f"v_add_f32_dpp v{T+a}, v{45+2*a}, v{44+2*a} quad_perm:[2,3,0,1] row_mask:0xf bank_mask:0xf")
        A(f"v_cndmask_b32 v44, v{T}, v{T+1}, s[68:69]")
        A(f"v_cndmask_b32 v45, v{T+1}, v{T}, s[68:69]")
        A(f"v_add_f32_dpp v{dest}, v45, v44 quad_perm:[1,0,3,2] row_mask:0xf bank_mask:0xf")
    SC = 24
    nv = 0
    for j in range(0, 128, 2):
        vq.wait(("K", j + 1))
        for r in range(4 if not opt.get("nodot") else 0):
            for jj in (j, j+1):
                t = T + (jj & 15)
                c = "0" if r == 0 else f"v{t}"
                A(f"v_dot2_f32_bf16 v{t}, v{kslot(jj)+r}, v{Q+r}, {c}")
        for jj in (j, j+1):
            if jj + WK < 128: kload(jj + WK)
            else: vload(nv); nv += 1
        if (j + 1) % 16 == 15 and not opt.get("nodot"): reduce16(SC + (j >> 4))
        ctl_step(j + 2)
        if FINE and (j + 2) % 32 == 0: stamp(1 + (j + 2) // 32)
    if not FINE: stamp(2)
    B = Asm(); _A = A
    sm = []
    class Cap:
        def __call__(self, s):
            for l in s.split("\n"):
                if l.strip(): sm.append(l.strip())
    A = Cap()
    A(f"""
    v_max3_f32 v44, v{SC}, v{SC+1}, v{SC+2}
    v_max3_f32 v44, v44, v{SC+3}, v{SC+4}
    v_max3_f32 v44, v44, v{SC+5}, v{SC+6}
    v_max_f32 v44, v44, v{SC+7}
    """)
    wavereduce("v_max_f32", 44)
    A("v_mul_f32 v46, s42, v44")
    for k in range(8): A(f"v_fma_f32 v{SC+k}, v{SC+k}, s42, -v46")
    for k in range(8): A(f"v_exp_f32 v{SC+k}, v{SC+k}")
    A(f"""
    v_add_f32 v47, v{SC}, v{SC+1}
    v_add_f32 v44, v{SC+2}, v{SC+3}
    v_add_f32 v45, v{SC+4}, v{SC+5}
    v_add_f32 v48, v{SC+6}, v{SC+7}
    v_add_f32 v47, v47, v44
    v_add_f32 v45, v45, v48
    v_add_f32 v47, v47, v45
    """)
    wavereduce("v_add_f32", 47)
    for k in range(8): A(f"v_cvt_pk_bf16_f32 v{SC+k}, v{SC+k}, v{SC+k}")
    A = _A
    extra = WV - nv
    step = max(1, len(sm) // (extra + 1)) if extra > 0 else 0
    for i, l in enumerate(sm):
        A(l)
        if extra > 0 and (i + 1) % step == 0 and nv < WV: vload(nv); nv += 1
    while nv < WV: vload(nv); nv += 1
    A(f"""
    s_lshl_b32 s8, s3, 3
    v_mov_b32 v44, s8
    v_mov_b32 v45, 1
    v_mov_b32 v48, 0
    s_mov_b64 exec, 1
    ds_write_b64 v44, v[46:47] offset:{ST}
    ds_add_u32 v48, v45 offset:{CNTK}
    s_mov_b64 exec, -1
    """)
    for r in range(4): A(f"v_mov_b32 v{4+r}, 0")
    def abuild(v, aset):
        p, jj = SC + (v >> 4), v & 15
        for q in range(4):
            A(f"v_and_b32_dpp v{aset+q}, v{p}, v{M+q} row_newbcast:{jj} row_mask:0xf bank_mask:0xf")
    abuild(0, 8)
    for v in range(128):
        if FINE and v in (32, 64, 96): stamp(5 + v // 32)
        if v == 96:
            lds_spin(SCRDY, "nz", 2)
            A(f"""
            s_lshl_b32 s8, s3, 2
            v_mov_b32 v44, s8
            ds_read_b32 v50, v44 offset:{SCALE}
            v_lshlrev_b32 v60, 5, v{vC}
            v_lshlrev_b32 v61, 4, v{vG}
            v_add_u32 v60, v60, v61
            s_lshl_b32 s8, s3, 9
            v_add_u32 v60, s8, v60
            v_lshlrev_b32 v61, 4, v1
            s_lshl_b32 s8, s7, 1
            s_add_u32 s8, s8, s6
            s_lshl_b32 s8, s8, 9
            s_add_u32 s8, s8, {OX}
            v_add_u32 v62, s8, v61
            v_add_u32 v63, {(OXA - OX) & 0xffffffff:#x}, v62
            """)
            settags(16, 20)
        if v + 1 < 128 and not opt.get("nomfma"): abuild(v + 1, 8 + 4*((v+1) & 1))
        vq.wait(("V", v))
        if not opt.get("nomfma"): mfma(4, 8 + 4*(v & 1), vslot(v), "v[4:7]")
        if v + WV < 128: vload(v + WV)
        ctl_step(128 + v + 1)
    stamp(9 if FINE else 3)
    if stamps and opt.get("clk"):
        A("s_memtime s[76:77]"); A("s_waitcnt lgkmcnt(0)"); A("s_sub_u32 s76, s76, s100")
        A("s_lshl_b32 s8, s2, 10"); A("s_lshl_b32 s9, s3, 7"); A("s_add_u32 s8, s8, s9"); A("s_add_u32 s8, s8, 0x2000000")
        A("v_mov_b32 v44, s8"); A("v_mov_b32 v45, s76"); A("s_mov_b64 exec, 1"); A("global_store_dword v44, v45, s[40:41] offset:80"); A("s_mov_b64 exec, -1")
    A("s_waitcnt lgkmcnt(0)")
    for r in range(4): A(f"v_mul_f32 v{4+r}, v{4+r}, v50")
    A(f"""
    s_mov_b32 exec_hi, 0
    ds_write_b128 v60, v[4:7] offset:{OP}
    s_waitcnt lgkmcnt(0)
    s_barrier
    s_cmp_eq_u32 s3, 0
    s_cbranch_scc0 L_sexit
    """)
    for w in range(4): A(f"ds_read_b128 {v4(128+4*w)}, v61 offset:{OP+512*w}")
    A("s_waitcnt lgkmcnt(0)")
    for k in (0, 2):
        pk(128+k, 128+k, 132+k); pk(136+k, 136+k, 140+k); pk(128+k, 128+k, 136+k)
    tag4(128, 20)
    if DUAL: A("global_store_dwordx4 v63, v[128:131], s[40:41]")
    A(f"""
    global_store_dwordx4 v62, v[128:131], s[40:41] sc1
    L_sexit:
    s_mov_b32 exec_hi, -1
    """)
    store_stamps(10 if FINE else 4)
    A("s_endpgm")

    A("L_H:")
    SELX = 24
    A(f"""
    s_setprio 3
    s_sub_u32 s71, s3, 4
    s_lshl_b32 s72, s5, 1
    s_add_u32 s72, s72, s6
    v_and_b32 v44, 1, v{vC}
    v_cmp_eq_u32 vcc, 1, v44
    v_mov_b32 v45, 0x0c0c0100
    v_mov_b32 v46, 0x01000c0c
    v_cndmask_b32 v47, v45, v46, vcc
    v_mov_b32 v45, 0x0c0c0302
    v_mov_b32 v46, 0x03020c0c
    v_cndmask_b32 v48, v45, v46, vcc
    v_bfe_u32 v44, v{vC}, 1, 2
    v_mov_b32 v45, 0x0c0c0c0c
    v_cmp_gt_u32 s[12:13], 8, v{vC}
    """)
    for r in range(4):
        A(f"v_cmp_eq_u32 vcc, {r}, v44")
        A(f"v_cndmask_b32 v{SELL+r}, v45, v47, vcc")
        A(f"v_cndmask_b32 v{SELH+r}, v45, v48, vcc")
        A(f"v_cndmask_b32 v{SELX+r}, v{SELH+r}, v{SELL+r}, s[12:13]")
    A(f"""
    s_lshr_b32 s8, s72, 1
    s_mul_i32 s8, s8, 160
    s_mul_i32 s9, s71, 40
    s_add_u32 s8, s8, s9
    v_mul_u32_u24 v44, 10, v{vG}
    v_add_u32 v44, s8, v44
    v_lshlrev_b32 v46, 1, v44
    v_lshrrev_b32 v45, 3, v{vC}
    v_add_u32 v45, v44, v45
    v_lshlrev_b32 v45, 13, v45
    v_and_b32 v47, 7, v{vC}
    v_lshlrev_b32 v47, 4, v47
    v_add_u32 v48, v45, v47
    s_waitcnt lgkmcnt(0)
    s_or_b32 s8, s2, s71
    s_cmp_eq_u32 s8, 0
    s_cbranch_scc0 L_nononce
    s_memrealtime s[8:9]
    s_waitcnt lgkmcnt(0)
    s_or_b32 s8, s8, 1
    s_mul_i32 s8, s8, 0x9e3779b1
    v_lshlrev_b32 v44, 6, v1
    v_mov_b32 v45, s8
    s_mov_b64 exec, 15
    global_store_dword v44, v45, s[38:39] sc1
    s_mov_b64 exec, -1
    L_nononce:
    s_mov_b32 s44, s16
    s_and_b32 s45, s17, 0xffff
    s_mov_b32 s46, 5120
    s_mov_b32 s47, 0x20000
    s_lshl_b32 s8, s4, 8
    s_and_b32 s9, s72, 1
    s_lshl_b32 s9, s9, 7
    s_add_u32 s8, s8, s9
    s_add_u32 s48, s22, s8
    s_addc_u32 s49, s23, 0
    s_and_b32 s49, s49, 0xffff
    s_sub_u32 s50, 5242880, s8
    s_mov_b32 s51, 0x20000
    """)
    XQ = 56; WQr = 80
    A(f"""
    s_mul_i32 s8, s71, 1280
    v_lshlrev_b32 v44, 4, v1
    v_add_u32 v45, s8, v44
    s_add_u32 s9, s8, {XL}
    s_mov_b32 m0, s9
    s_mov_b32 s60, s34
    s_and_b32 s61, s35, 0xffff
    s_mov_b32 s62, 1280
    s_mov_b32 s63, 0x20000
    buffer_load_dwordx4 v45, s[44:47], 0 offen lds
    s_add_u32 m0, s9, 1024
    s_mov_b32 s64, 1024
    s_mov_b64 exec, 0xffff
    buffer_load_dwordx4 v45, s[44:47], s64 offen lds
    s_mov_b64 exec, -1
    s_cmp_eq_u32 s71, 0
    s_cbranch_scc0 L_nogw
    s_mov_b32 m0, {GWL}
    s_nop 0
    buffer_load_dwordx4 v44, s[60:63], 0 offen lds
    s_mov_b32 m0, {GWL+1024}
    s_mov_b64 exec, 0xffff
    buffer_load_dwordx4 v44, s[60:63], s64 offen lds
    s_mov_b64 exec, -1
    L_nogw:
    """)
    for i in range(5):
        A(f"s_mov_b32 s64, {2*i*8192}")
        A(f"buffer_load_dwordx4 {v4(WQr+4*i)}, v48, s[48:51], s64 offen {WF}")
    A("s_waitcnt lgkmcnt(0)")
    if not EB: A("s_barrier")
    A(f"""
    s_cmp_eq_u32 s71, 0
    s_cbranch_scc0 L_nopoll
    s_sleep {NSLEEP}
    """)
    for k in range(4):
        A(f"s_load_dword s74, s[38:39], {64*k}")
        A("s_waitcnt lgkmcnt(0)"); A("s_cmp_lg_u32 s74, 0"); A("s_cbranch_scc1 L_ngot")
        if k < 3: A("s_sleep 3")
    A(f"""
    v_mov_b32 v44, 0
    s_mov_b32 s73, {SPIN}
    L_npoll:
    global_load_dword v45, v44, s[38:39] sc1
    s_waitcnt vmcnt(0)
    v_readfirstlane_b32 s74, v45
    s_cmp_lg_u32 s74, 0
    s_cbranch_scc1 L_ngot
    s_sub_u32 s73, s73, 1
    s_cbranch_scc0 L_npoll
    L_ngot:
    v_mov_b32 v44, 0
    v_mov_b32 v45, s74
    s_mov_b64 exec, 1
    ds_write_b32 v44, v45 offset:{NONCE}
    s_mov_b64 exec, -1
    L_nopoll:
    s_waitcnt vmcnt(5)
    """)
    hbarrier(1)
    for b in range(4): A(f"v_add_u32 v{100+b}, {XL + 1280*b}, v46")
    for b in range(4):
        A(f"ds_read2_b32 v[{XQ+6*b}:{XQ+6*b+1}], v{100+b} offset0:0 offset1:1")
        A(f"ds_read2_b32 v[{XQ+6*b+2}:{XQ+6*b+3}], v{100+b} offset0:2 offset1:3")
        A(f"ds_read_b32 v{XQ+6*b+4}, v{100+b} offset:16")
    A("s_waitcnt vmcnt(0) lgkmcnt(0)")
    stamp(1)
    def xq(b, i): return XQ + 6*b + i
    DQ = [4, 48, 52, 104]
    n = 0
    for i in range(5):
        for b in range(4):
            aset = 8 + 4 * (n & 1)
            for r in range(4): A(f"v_perm_b32 v{aset+r}, v{xq(b,i)}, v{xq(b,i)}, v{SELX+r}")
            mfma(DQ[b], aset, WQr + 4*i, "0" if i == 0 else v4(DQ[b]))
            n += 1
    A(f"""
    s_lshl_b32 s8, s71, 11
    v_lshrrev_b32 v45, 1, v{vG}
    v_lshlrev_b32 v45, 8, v45
    v_and_b32 v46, 7, v{vC}
    v_lshlrev_b32 v46, 5, v46
    v_add_u32 v45, v45, v46
    v_and_b32 v46, 1, v{vG}
    v_lshlrev_b32 v46, 4, v46
    v_add_u32 v45, v45, v46
    v_add_u32 v45, s8, v45
    s_mov_b32 exec_lo, 0x00ff00ff
    s_mov_b32 exec_hi, 0xff00ff00
    """)
    for b in range(4): A(f"ds_write_b128 v45, {v4(DQ[b])} offset:{GP+512*b}")
    A("s_mov_b64 exec, -1")
    hbarrier(2)
    A(f"""
    v_mov_b32 v44, 0
    ds_read_b32 v32, v44 offset:{NONCE}
    s_lshl_b32 s8, s71, 9
    v_lshlrev_b32 v45, 4, v{vC}
    v_add_u32 v45, s8, v45
    """)
    for w in range(4):
        for rho in range(2): A(f"ds_read_b128 {v4(56+8*w+4*rho)}, v45 offset:{GP+w*2048+rho*256}")
    A(f"""
    s_lshl_b32 s10, s4, 3
    s_add_u32 s10, s10, s72
    s_lshl_b32 s10, s10, 2
    s_add_u32 s10, s10, s71
    s_lshl_b32 s10, s10, 8
    s_add_u32 s10, s10, {QX}
    v_lshlrev_b32 v46, 4, v{vC}
    v_add_u32 v46, s10, v46
    s_waitcnt lgkmcnt(0)
    v_readfirstlane_b32 s74, v32
    """)
    settags(32, TG)
    def sum_quads(regs):
        regs = list(regs)
        while len(regs) > 1:
            nx = []
            for a in range(0, len(regs) - 1, 2):
                for k in (0, 2): pk(regs[a]+k, regs[a]+k, regs[a+1]+k)
                nx.append(regs[a])
            if len(regs) % 2: nx.append(regs[-1])
            regs = nx
    sum_quads([56+4*k for k in range(8)])
    tag4(56)
    A(f"""
    s_mov_b64 exec, 0xffff
    global_store_dwordx4 v46, v[56:59], s[40:41] sc1
    s_mov_b64 exec, -1
    """)
    stamp(2)
    def rows_reduce(regs):
        for r in regs: A(f"v_mov_b32 v{r+32}, v{r}")
        for r in regs: A(f"v_permlane16_swap_b32 v{r}, v{r+32}")
        for r in regs: A(f"v_add_f32 v{r}, v{r}, v{r+32}")
        for r in regs: A(f"v_mov_b32 v{r+32}, v{r}")
        for r in regs: A(f"v_permlane32_swap_b32 v{r}, v{r+32}")
        for r in regs: A(f"v_add_f32 v{r}, v{r}, v{r+32}")
    A(f"""
    s_cmp_eq_u32 s71, 0
    s_cbranch_scc0 L_noq
    s_lshl_b32 s10, s4, 5
    s_add_u32 s10, s10, s5
    s_lshl_b32 s10, s10, 8
    s_add_u32 s10, s10, {QX}
    v_lshlrev_b32 v46, 11, v{vG}
    v_lshlrev_b32 v47, 4, v{vC}
    v_add_u32 v46, v46, v47
    v_add_u32 v46, s10, v46
    s_mov_b32 s73, {SPIN}
    s_sleep {QSLEEP}
    L_qpoll:
    global_load_dwordx4 v[56:59], v46, s[40:41] sc1
    global_load_dwordx4 v[60:63], v46, s[40:41] offset:1024 sc1
    s_waitcnt vmcnt(0)
    """)
    chk4([56, 60], "L_qok")
    A(f"""
    s_sub_u32 s73, s73, 1
    s_cbranch_scc0 L_qpoll
    L_qok:
    """)
    rows_reduce(range(56, 64))
    A(f"""
    v_cvt_pk_bf16_f32 v56, v56, v57
    v_cvt_pk_bf16_f32 v57, v58, v59
    v_cvt_pk_bf16_f32 v58, v60, v61
    v_cvt_pk_bf16_f32 v59, v62, v63
    v_lshlrev_b32 v45, 3, v{vC}
    v_mov_b32 v44, 0
    v_mov_b32 v47, 1
    s_mov_b64 exec, 0xffff
    ds_write_b64 v45, v[56:57] offset:{QB}
    ds_write_b64 v45, v[58:59] offset:{QB+128}
    s_mov_b64 exec, 1
    ds_write_b32 v44, v47 offset:{QRDY}
    s_mov_b64 exec, -1
    L_noq:
    """)
    stamp(3)
    def idle_end():
        A(f"""
        v_mov_b32 v44, 0
        v_mov_b32 v45, 1
        v_mov_b32 v46, 1.0
        ds_write_b32 v44, v46 offset:{SCALE}
        ds_write_b32 v44, v46 offset:{SCALE+4}
        ds_write_b32 v44, v46 offset:{SCALE+8}
        ds_write_b32 v44, v46 offset:{SCALE+12}
        ds_write_b32 v44, v45 offset:{SCRDY}
        s_waitcnt lgkmcnt(0)
        s_barrier
        s_branch L_hend
        """)
    HST = int(opt.get("hstop", 0))
    if opt.get("hidle"): idle_end()
    A(f"""
    s_setprio {BP}
    s_lshr_b32 s8, s2, 3
    s_and_b32 s9, s8, 3
    s_lshl_b32 s9, s9, 1
    s_add_u32 s9, s9, 1
    s_and_b32 s10, s2, 7
    s_mul_i32 s8, s8, 7
    s_add_u32 s8, s8, s10
    s_cmp_gt_u32 s10, s9
    s_cselect_b32 s11, 1, 0
    s_sub_u32 s8, s8, s11
    s_lshr_b32 s76, s8, 3
    s_and_b32 s77, s8, 7
    s_cmp_lt_u32 s8, 216
    s_cselect_b32 s75, 1, 0
    s_cmp_eq_u32 s10, s9
    s_cselect_b32 s75, 0, s75
    """)
    if opt.get("noffn"): A("s_mov_b32 s75, 0")
    blk("s72", "s66", "s67", "s68")
    blk("s77", "s65", "s69", "s70")
    A(f"""
    s_mul_i32 s8, s4, 163840
    s_add_u32 s8, s8, s66
    s_add_u32 s48, s24, s8
    s_addc_u32 s49, s25, 0
    s_and_b32 s49, s49, 0xffff
    s_sub_u32 s50, 5242880, s8
    s_mov_b32 s51, 0x20000
    v_mul_u32_u24 v46, 2560, v{vG}
    v_lshlrev_b32 v47, 4, v{vC}
    v_add_u32 v46, v46, v47
    s_mul_i32 s8, s71, {32*1280}
    v_add_u32 v46, s8, v46
    v_mov_b32 v47, 0x7ff00000
    v_cmp_gt_u32 vcc, s67, v{vC}
    v_cndmask_b32 v46, v47, v46, vcc
    s_lshl_b32 s9, s71, 13
    s_add_u32 s9, s9, {WOL}
    """)
    WOM = opt.get("wom", "dma"); HP = int(opt.get("hp", 0))
    for i in range(8 if HST != 1 else 0):
        t, s_ = i >> 1, i & 1
        if WOM == "dma":
            A(f"s_add_u32 m0, s9, {i*1024}")
            A(f"s_mov_b32 s64, {(8*t+s_)*1280}")
            if HP and i >= HP: A(f"s_waitcnt vmcnt({HP-1})")
            A(f"buffer_load_dwordx4 v46, s[48:51], s64 offen {WF} lds")
        elif WOM == "dmax":
            A("s_mov_b32 exec_lo, 0x03ff03ff"); A("s_mov_b32 exec_hi, 0x03ff03ff")
            A(f"s_add_u32 m0, s9, {i*1024}")
            A(f"s_mov_b32 s64, {(8*t+s_)*1280}")
            A(f"buffer_load_dwordx4 v46, s[48:51], s64 offen {WF} lds")
            A("s_mov_b64 exec, -1")
        else:
            A(f"s_mov_b32 s64, {(8*t+s_)*1280}")
            A(f"buffer_load_dwordx4 {v4(192+4*i)}, v46, s[48:51], s64 offen {WF}")
    W1r = 96; W2r = 120
    A("s_cmp_eq_u32 s75, 1"); A("s_cbranch_scc0 L_nobulk")
    A(f"""
    s_and_b32 s8, s77, 1
    s_cmp_eq_u32 s8, 0
    s_cselect_b32 s60, s28, s30
    s_cselect_b32 s61, s29, s31
    s_lshl_b32 s8, s76, 7
    s_add_u32 s60, s60, s8
    s_addc_u32 s61, s61, 0
    s_and_b32 s61, s61, 0xffff
    s_sub_u32 s62, {640*3456}, s8
    s_mov_b32 s63, 0x20000
    s_lshr_b32 s8, s77, 1
    s_mul_i32 s8, s8, 160
    s_mul_i32 s9, s71, 40
    s_add_u32 s8, s8, s9
    v_mul_u32_u24 v44, 10, v{vG}
    v_add_u32 v44, s8, v44
    v_lshlrev_b32 v41, 1, v44
    v_lshrrev_b32 v45, 3, v{vC}
    v_add_u32 v45, v44, v45
    v_mul_u32_u24 v45, 3456, v45
    v_and_b32 v47, 7, v{vC}
    v_lshlrev_b32 v47, 4, v47
    v_add_u32 v45, v45, v47
    """)
    for i in range(5):
        A(f"s_mov_b32 s64, {2*i*3456}")
        if HP: A(f"s_waitcnt vmcnt({HP-1})")
        A(f"buffer_load_dwordx4 {v4(W1r+4*i)}, v45, s[60:63], s64 offen {WF}")
    A(f"""
    s_lshl_b32 s8, s76, 6
    s_lshl_b32 s9, s71, 4
    s_add_u32 s8, s8, s9
    s_mul_i32 s8, s8, 1280
    s_add_u32 s8, s8, s65
    s_add_u32 s60, s32, s8
    s_addc_u32 s61, s33, 0
    s_and_b32 s61, s61, 0xffff
    s_sub_u32 s62, {1728*1280}, s8
    s_mov_b32 s63, 0x20000
    v_mul_u32_u24 v46, 2560, v{vG}
    v_lshlrev_b32 v47, 4, v{vC}
    v_add_u32 v46, v46, v47
    v_mov_b32 v47, 0x7ff00000
    v_cmp_gt_u32 vcc, s69, v{vC}
    v_cndmask_b32 v46, v47, v46, vcc
    """)
    for ts in range(4):
        A(f"s_mov_b32 s64, {(8*(ts>>1)+(ts&1))*1280}")
        if HP: A(f"s_waitcnt vmcnt({HP-1})")
        A(f"buffer_load_dwordx4 {v4(W2r+4*ts)}, v46, s[60:63], s64 offen {WF}")
    A("L_nobulk:")
    A("s_waitcnt vmcnt(0)")
    if WOM == "reg" and HST != 1:
        A(f"""
        s_lshl_b32 s9, s71, 13
        s_add_u32 s9, s9, {WOL}
        v_lshlrev_b32 v45, 4, v1
        v_add_u32 v45, s9, v45
        """)
        for i in range(8): A(f"ds_write_b128 v45, {v4(192+4*i)} offset:{1024*i}")
    A(f"""
    v_mul_u32_u24 v44, 20, v1
    s_mul_i32 s8, s71, 1280
    s_add_u32 s8, s8, {XL}
    v_add_u32 v45, s8, v44
    v_add_u32 v44, {GWL}, v44
    ds_read2_b32 v[36:37], v45 offset0:0 offset1:1
    ds_read2_b32 v[38:39], v45 offset0:2 offset1:3
    ds_read_b32 v40, v45 offset:16
    ds_read2_b32 v[48:49], v44 offset0:0 offset1:1
    ds_read2_b32 v[50:51], v44 offset0:2 offset1:3
    ds_read_b32 v52, v44 offset:16
    s_waitcnt lgkmcnt(0)
    """)
    A("v_dot2_f32_bf16 v33, v36, v48, 0")
    for t in range(1, 5): A(f"v_dot2_f32_bf16 v33, v{36+t}, v{48+t}, v33")
    wavereduce("v_add_f32", 33)
    A(f"""
    v_mul_f32 v33, {f2u(-LOG2E):#x}, v33
    v_exp_f32 v33, v33
    v_add_f32 v33, 1.0, v33
    v_rcp_f32 v33, v33
    v_sub_f32 v32, 1.0, v33
    s_setprio 3
    """)
    hbarrier(3, 2)
    stamp(4)
    if HST in (1, 2): idle_end()
    A("s_cmp_eq_u32 s75, 1"); A("s_cbranch_scc0 L_noffn")
    for b in range(4): A(f"v_add_u32 v{100+16+b}, {XL + 1280*b}, v41")
    for b in range(4):
        A(f"ds_read2_b32 v[{XQ+6*b}:{XQ+6*b+1}], v{116+b} offset0:0 offset1:1")
        A(f"ds_read2_b32 v[{XQ+6*b+2}:{XQ+6*b+3}], v{116+b} offset0:2 offset1:3")
        A(f"ds_read_b32 v{XQ+6*b+4}, v{116+b} offset:16")
    A("s_waitcnt lgkmcnt(0)")
    DF = [4, 48, 52, 80]
    n = 0
    for i in range(5):
        for b in range(4):
            aset = 8 + 4 * (n & 1)
            for r in range(4): A(f"v_perm_b32 v{aset+r}, v{xq(b,i)}, v{xq(b,i)}, v{SELX+r}")
            mfma(DF[b], aset, W1r + 4*i, "0" if i == 0 else v4(DF[b]))
            n += 1
    A(f"""
    s_lshl_b32 s8, s71, 11
    v_lshrrev_b32 v45, 1, v{vG}
    v_lshlrev_b32 v45, 8, v45
    v_and_b32 v46, 7, v{vC}
    v_lshlrev_b32 v46, 5, v46
    v_add_u32 v45, v45, v46
    v_and_b32 v46, 1, v{vG}
    v_lshlrev_b32 v46, 4, v46
    v_add_u32 v45, v45, v46
    v_add_u32 v45, s8, v45
    s_mov_b32 exec_lo, 0x00ff00ff
    s_mov_b32 exec_hi, 0xff00ff00
    """)
    for b in range(4): A(f"ds_write_b128 v45, {v4(DF[b])} offset:{GP+512*b}")
    A("s_mov_b64 exec, -1")
    hbarrier(4)
    A(f"""
    s_lshl_b32 s8, s71, 9
    v_lshlrev_b32 v45, 4, v{vC}
    v_add_u32 v45, s8, v45
    """)
    for w in range(4):
        for rho in range(2): A(f"ds_read_b128 {v4(56+8*w+4*rho)}, v45 offset:{GP+w*2048+rho*256}")
    A(f"""
    s_lshl_b32 s10, s76, 3
    s_add_u32 s10, s10, s77
    s_lshl_b32 s10, s10, 2
    s_add_u32 s10, s10, s71
    s_lshl_b32 s10, s10, 8
    s_add_u32 s10, s10, {FX}
    v_lshlrev_b32 v46, 4, v{vC}
    v_add_u32 v46, s10, v46
    s_waitcnt lgkmcnt(0)
    """)
    sum_quads([56+4*k for k in range(8)])
    tag4(56)
    A(f"""
    s_mov_b64 exec, 0xffff
    global_store_dwordx4 v46, v[56:59], s[40:41] sc1
    s_mov_b64 exec, -1
    s_lshl_b32 s10, s76, 5
    s_add_u32 s10, s10, s71
    s_lshl_b32 s10, s10, 8
    s_add_u32 s10, s10, {FX}
    v_lshlrev_b32 v46, 11, v{vG}
    v_lshlrev_b32 v47, 4, v{vC}
    v_add_u32 v46, v46, v47
    v_add_u32 v46, s10, v46
    s_mov_b32 s73, {SPIN}
    s_sleep {FSL}
    L_fpoll:
    global_load_dwordx4 v[60:63], v46, s[40:41] offset:1024 sc1
    global_load_dwordx4 v[56:59], v46, s[40:41] sc1
    s_waitcnt vmcnt(0)
    """)
    chk4([56, 60], "L_fok")
    A(f"""
    s_sleep {FSL}
    s_sub_u32 s73, s73, 1
    s_cbranch_scc0 L_fpoll
    L_fok:
    """)
    rows_reduce(range(56, 64))
    for k in range(4): A(f"v_mul_f32 v{64+k}, {f2u(-LOG2E):#x}, v{56+k}")
    for k in range(4): A(f"v_exp_f32 v{64+k}, v{64+k}")
    for k in range(4): A(f"v_add_f32 v{64+k}, 1.0, v{64+k}")
    for k in range(4): A(f"v_rcp_f32 v{64+k}, v{64+k}")
    for k in range(4): A(f"v_mul_f32 v{56+k}, v{56+k}, v{64+k}")
    for k in range(4): A(f"v_mul_f32 v{56+k}, v{56+k}, v{60+k}")
    A(f"""
    v_cvt_pk_bf16_f32 v56, v56, v57
    v_cvt_pk_bf16_f32 v57, v58, v59
    s_lshl_b32 s8, s71, 7
    v_lshlrev_b32 v45, 3, v{vC}
    v_add_u32 v45, s8, v45
    s_mov_b64 exec, 0xffff
    ds_write_b64 v45, v[56:57] offset:{HB}
    s_mov_b64 exec, -1
    """)
    hbarrier(5)
    A(f"""
    v_lshrrev_b32 v45, 3, v{vC}
    v_lshlrev_b32 v45, 7, v45
    v_lshlrev_b32 v46, 2, v{vG}
    v_add_u32 v45, v45, v46
    s_lshl_b32 s8, s71, 5
    v_add_u32 v45, s8, v45
    ds_read_b32 v56, v45 offset:{HB}
    ds_read_b32 v57, v45 offset:{HB+16}
    ds_read_b32 v58, v45 offset:{HB+256}
    ds_read_b32 v59, v45 offset:{HB+256+16}
    s_waitcnt lgkmcnt(0)
    """)
    D2 = [4, 52]
    n = 0
    for ts in range(4):
        for p in range(2):
            aset = 8 + 4 * (n & 1)
            perms(56 + 2*p + (ts >> 1), ts & 1, aset)
            mfma(D2[p], aset, W2r + 4*ts, "0" if ts == 0 else v4(D2[p]))
            n += 1
    A(f"""
    s_lshl_b32 s8, s71, 11
    s_add_u32 s8, s8, {YP2}
    v_lshlrev_b32 v45, 4, v1
    v_add_u32 v45, s8, v45
    ds_write_b128 v45, {v4(D2[0])}
    ds_write_b128 v45, {v4(D2[1])} offset:1024
    """)
    hbarrier(6)
    A(f"""
    s_lshr_b32 s8, s71, 1
    s_lshl_b32 s8, s8, 10
    s_and_b32 s9, s71, 1
    s_lshl_b32 s9, s9, 9
    s_add_u32 s8, s8, s9
    s_add_u32 s8, s8, {YP2}
    v_and_b32 v45, 1, v1
    v_lshlrev_b32 v45, 8, v45
    v_bfe_u32 v46, v1, 1, 4
    v_lshlrev_b32 v46, 4, v46
    v_add_u32 v45, v45, v46
    v_add_u32 v45, s8, v45
    """)
    for w in range(4): A(f"ds_read_b128 {v4(56+4*w)}, v45 offset:{w*2048}")
    A(f"""
    s_lshl_b32 s10, s77, 2
    s_add_u32 s10, s10, s71
    s_mul_i32 s10, s10, 27
    s_add_u32 s10, s10, s76
    s_lshl_b32 s10, s10, 9
    s_add_u32 s10, s10, {FY}
    v_lshlrev_b32 v46, 4, v1
    v_add_u32 v46, s10, v46
    s_waitcnt lgkmcnt(0)
    """)
    sum_quads([56, 60, 64, 68])
    for k in range(4): A(f"v_mul_f32 v{56+k}, v{56+k}, v32")
    tag4(56)
    A(f"""
    s_mov_b32 exec_lo, s70
    s_mov_b32 exec_hi, 0
    global_store_dwordx4 v46, v[56:59], s[40:41] sc1
    s_mov_b64 exec, -1
    """)
    A("L_noffn:")
    stamp(5)
    if opt.get("lowprio"): A("s_setprio 0")
    WOr = 128
    A(f"""
    v_lshlrev_b32 v45, 4, v1
    v_add_u32 v45, {WOL}, v45
    """)
    for i in range(32):
        A(f"ds_read_b128 {v4(WOr+4*i)}, v45 offset:{1024*i}")
        if i % 8 == 7: A("s_waitcnt lgkmcnt(0)")
    A(f"""
    s_bfe_u32 s9, s2, 0x20003
    s_lshl_b32 s9, s9, 1
    s_add_u32 s9, s9, 1
    s_and_b32 s8, s2, 7
    s_cmp_eq_u32 s8, s9
    s_cselect_b32 s75, 1, 0
    s_lshr_b32 s76, s2, 5
    s_bfe_u32 s77, s2, 0x20003
    """)
    blk("s76", "s65", "s69", "s70")
    FSUM = 36
    M20 = 0x000fffff000fffff
    A("s_cmp_eq_u32 s75, 1"); A("s_cbranch_scc0 L_nocol")
    if not opt.get("noffn") :
        A(f"""
        s_lshl_b32 s8, s76, 2
        s_add_u32 s8, s8, s77
        s_mul_i32 s8, s8, 27
        s_add_u32 s8, s8, s71
        s_lshl_b32 s8, s8, 9
        s_add_u32 s8, s8, {FY}
        v_lshrrev_b32 v46, 5, v1
        v_lshlrev_b32 v46, 11, v46
        v_and_b32 v47, 31, v1
        v_lshlrev_b32 v47, 4, v47
        v_add_u32 v46, v46, v47
        v_add_u32 v46, s8, v46
        s_mov_b32 s73, {SPIN}
        L_cpoll:
        v_mov_b32 v48, v46
        """)
        for k in range(4):
            if k < 3: A(f"s_mov_b32 exec_lo, s70"); A("s_mov_b32 exec_hi, s70")
            else:
                A("s_cmp_lt_u32 s71, 3"); A("s_cbranch_scc0 L_cskip"); A("s_mov_b32 exec_lo, s70"); A("s_mov_b32 exec_hi, 0")
            A(f"global_load_dwordx4 {v4(56+4*k)}, v48, s[40:41] sc1")
            A("s_mov_b64 exec, -1")
            if k == 3: A("L_cskip:")
            if k < 3: A(f"v_add_u32 v48, {8*512}, v48")
        A("s_waitcnt vmcnt(0)")
        A(f"""
        v_and_b32 v44, 31, v1
        s_lshl_b32 s8, s69, 1
        v_cmp_le_u32 vcc, s8, v44
        """)
        for k in range(4):
            for r in range(4): A(f"v_cndmask_b32 v{56+4*k+r}, v{56+4*k+r}, v{TG+r}, vcc")
        A(f"""
        s_cmp_lt_u32 s71, 3
        s_cselect_b32 s8, 0xffffffff, 0
        s_mov_b32 s9, 0
        s_not_b64 vcc, s[8:9]
        """)
        for r in range(4): A(f"v_cndmask_b32 v{68+r}, v{68+r}, v{TG+r}, vcc")
        chk4([56, 60, 64, 68], "L_cok")
        A(f"""
        s_sleep 64
        s_sub_u32 s73, s73, 1
        s_cbranch_scc0 L_cpoll
        L_cok:
        """)
        sum_quads([56, 60, 64, 68])
        for r in range(4): A(f"v_mov_b32 v{60+r}, v{56+r}")
        for r in range(4): A(f"v_permlane32_swap_b32 v{56+r}, v{60+r}")
        for r in range(4): A(f"v_add_f32 v{56+r}, v{56+r}, v{60+r}")
        A(f"""
        s_lshl_b32 s8, s71, 9
        v_lshlrev_b32 v45, 4, v1
        v_add_u32 v45, s8, v45
        s_mov_b32 exec_hi, 0
        ds_write_b128 v45, v[56:59] offset:{FS}
        s_mov_b32 exec_hi, -1
        """)
        hbarrier(4)
        A(f"v_lshlrev_b32 v45, 4, v1")
        A("s_mov_b32 exec_hi, 0")
        for w in range(4): A(f"ds_read_b128 {v4(56+4*w)}, v45 offset:{FS+512*w}")
        A("s_mov_b32 exec_hi, -1")
        A("s_waitcnt lgkmcnt(0)")
        sum_quads([56, 60, 64, 68])
        for r in range(4): A(f"v_mov_b32 v{FSUM+r}, v{56+r}")
    else:
        for r in range(4): A(f"v_mov_b32 v{FSUM+r}, 0")
    A("L_nocol:")
    if CTL:
        A("s_cmp_eq_u32 s71, 1"); A("s_cbranch_scc0 L_noctl")
        A(f"""
        s_lshl_b32 s8, s2, 7
        s_add_u32 s8, s8, {PF}
        v_mov_b32 v46, s8
        v_add_u32 v47, 1, v1
        v_xor_b32 v47, s2, v47
        v_lshlrev_b32 v47, 7, v47
        v_add_u32 v47, {PF}, v47
        v_mov_b32 v44, 0
        v_mov_b32 v48, s74
        s_mov_b32 s11, 0
        L_ctl:
        s_mov_b64 exec, 1
        s_add_u32 s11, s11, 1
        s_lshl_b32 s9, s11, 2
        s_sub_u32 s9, s9, {int(opt.get("ckq", 1))}
        s_mov_b32 s73, {SPIN}
        L_ctl_w:
        ds_read_b32 v45, v44 offset:{CKC}
        s_waitcnt lgkmcnt(0)
        v_readfirstlane_b32 s8, v45
        s_cmp_ge_u32 s8, s9
        s_cbranch_scc1 L_ctl_go
        s_sleep 4
        s_sub_u32 s73, s73, 1
        s_cbranch_scc0 L_ctl_w
        L_ctl_go:
        global_store_dword v46, v48, s[40:41] sc1
        s_mov_b64 exec, {CMASK:#x}
        global_load_dword v45, v47, s[40:41] sc1
        s_waitcnt vmcnt(0)
        v_cmp_eq_u32 vcc, s74, v45
        s_bcnt1_i32_b64 s8, vcc
        s_cmp_ge_u32 s8, {CT2 if L3 else 99}
        s_cselect_b32 s9, 1, 0
        s_cmp_ge_u32 s8, {CTHR}
        s_cselect_b32 s8, 1, 0
        s_add_u32 s8, s8, s9
        s_mov_b64 exec, -1
        v_mov_b32 v45, s8
        ds_write_b32 v44, v45 offset:{MODE}
        v_add_u32 v46, 4, v46
        v_add_u32 v47, 4, v47
        s_cmp_lt_u32 s11, {len(CKS)}
        s_cbranch_scc1 L_ctl
        s_mov_b64 exec, -1
        s_branch L_B2
        L_noctl:
        """)
    lds_spin(CNTK, "ge", 8, 4)
    A("s_cmp_eq_u32 s71, 0"); A("s_cbranch_scc0 L_nostat")
    A(f"""
    v_and_b32 v44, 3, v1
    v_lshlrev_b32 v44, 3, v44
    ds_read_b64 v[46:47], v44 offset:{ST}
    s_waitcnt lgkmcnt(0)
    v_mov_b32 v48, v46
    v_max_f32_dpp v48, v48, v48 quad_perm:[2,3,0,1] row_mask:0xf bank_mask:0xf
    v_max_f32_dpp v48, v48, v48 quad_perm:[1,0,3,2] row_mask:0xf bank_mask:0xf
    v_sub_f32 v49, v46, v48
    v_exp_f32 v49, v49
    v_mul_f32 v49, v49, v47
    v_add_f32_dpp v49, v49, v49 quad_perm:[2,3,0,1] row_mask:0xf bank_mask:0xf
    v_add_f32_dpp v49, v49, v49 quad_perm:[1,0,3,2] row_mask:0xf bank_mask:0xf
    s_lshl_b32 s8, s2, 7
    s_add_u32 s8, s8, {SX}
    v_mov_b32 v44, s8
    v_mov_b32 v56, v48
    v_mov_b32 v57, s74
    v_mov_b32 v58, v49
    v_mov_b32 v59, s74
    s_mov_b64 exec, 1
    global_store_dwordx4 v44, v[56:59], s[40:41] sc1
    s_xor_b32 s8, s2, {PX_}
    s_lshl_b32 s8, s8, 7
    s_add_u32 s8, s8, {SX}
    v_mov_b32 v44, s8
    s_mov_b32 s73, {SPIN}
    L_pspin:
    global_load_dwordx4 v[60:63], v44, s[40:41] sc1
    s_waitcnt vmcnt(0)
    """)
    check_tags([61, 63], "L_pok")
    A(f"""
    s_sleep 32
    s_sub_u32 s73, s73, 1
    s_cbranch_scc0 L_pspin
    L_pok:
    v_readfirstlane_b32 s8, v60
    v_readfirstlane_b32 s9, v62
    s_mov_b64 exec, -1
    v_mov_b32 v60, s8
    v_mov_b32 v62, s9
    v_max_f32 v52, v48, v60
    v_sub_f32 v53, v48, v52
    v_sub_f32 v54, v60, v52
    v_exp_f32 v53, v53
    v_exp_f32 v54, v54
    v_mul_f32 v53, v53, v49
    v_fma_f32 v53, v54, v62, v53
    v_rcp_f32 v53, v53
    v_sub_f32 v54, v46, v52
    v_exp_f32 v54, v54
    v_mul_f32 v54, v54, v53
    v_and_b32 v44, 3, v1
    v_lshlrev_b32 v44, 2, v44
    v_mov_b32 v45, 1
    v_mov_b32 v55, 0
    s_mov_b64 exec, 15
    ds_write_b32 v44, v54 offset:{SCALE}
    s_mov_b64 exec, 1
    ds_write_b32 v55, v45 offset:{SCRDY}
    s_mov_b64 exec, -1
    L_nostat:
    """)
    A("L_B2:")
    if opt.get("lowprio"): A("s_setprio 3")
    if HST == 3: A("s_waitcnt lgkmcnt(0)"); A("s_barrier"); A("s_branch L_hend")
    A(f"""
    s_lshl_b32 s10, s71, 6
    s_lshl_b32 s9, s4, 1
    s_add_u32 s10, s10, s9
    s_lshl_b32 s10, s10, 9
    s_add_u32 s10, s10, {OX}
    v_lshlrev_b32 v46, 4, v1
    v_add_u32 v46, s10, v46
    v_lshlrev_b32 v49, 9, v1
    v_add_u32 v49, s10, v49
    v_and_b32 v47, 1, v1
    v_lshlrev_b32 v47, 7, v47
    v_bfe_u32 v48, v1, 1, 4
    v_lshlrev_b32 v48, 2, v48
    v_add_u32 v47, v47, v48
    s_lshl_b32 s8, s71, 8
    v_add_u32 v47, s8, v47
    v_add_u32 v47, {OB}, v47
    v_lshlrev_b32 v48, 6, v{vG}
    v_add_u32 v48, s8, v48
    v_lshlrev_b32 v41, 5, v{vC}
    v_lshlrev_b32 v42, 4, v{vG}
    v_add_u32 v41, v41, v42
    s_lshl_b32 s8, s71, 9
    v_add_u32 v41, s8, v41
    v_lshlrev_b32 v42, 4, v1
    v_add_u32 v42, s8, v42
    s_lshl_b32 s10, s72, 2
    s_add_u32 s10, s10, s71
    s_lshl_b32 s10, s10, 5
    s_add_u32 s10, s10, s4
    s_lshl_b32 s10, s10, 9
    s_add_u32 s10, s10, {YX}
    v_lshlrev_b32 v43, 4, v1
    v_add_u32 v43, s10, v43
    s_waitcnt lgkmcnt(0)
    s_barrier
    """)
    stamp(6)
    if DUAL:
        A(f"""
        v_add_u32 v49, {(OXA - OX) & 0xffffffff:#x}, v46
        s_mov_b32 s73, {SPIN}
        L_opoll:
        global_load_dwordx4 v[56:59], v49, s[40:41] sc1
        s_waitcnt vmcnt(0)
        """)
        chk4([56], "L_ook")
        A(f"""
        s_and_b32 s8, s73, 3
        s_cmp_eq_u32 s8, 0
        s_cbranch_scc0 L_onext
        global_load_dwordx4 v[56:59], v46, s[40:41] sc1
        s_waitcnt vmcnt(0)
        """)
        chk4([56], "L_ook")
        A(f"""
        L_onext:
        s_sub_u32 s73, s73, 1
        s_cbranch_scc0 L_opoll
        L_ook:
        """)
    else:
        A(f"""
        s_mov_b32 s73, {SPIN}
        L_opoll:
        global_load_dwordx4 v[56:59], v46, s[40:41] sc1
        s_waitcnt vmcnt(0)
        """)
        chk4([56], "L_ook")
        A(f"""
        s_sleep {OSL}
        s_sub_u32 s73, s73, 1
        s_cbranch_scc0 L_opoll
        L_ook:
        """)
    for r in range(4): A(f"v_mov_b32 v{60+r}, v{56+r}")
    for r in range(4): A(f"v_permlane32_swap_b32 v{56+r}, v{60+r}")
    for r in range(4): A(f"v_add_f32 v{56+r}, v{56+r}, v{60+r}")
    A(f"""
    v_cvt_pk_bf16_f32 v56, v56, v57
    v_cvt_pk_bf16_f32 v57, v58, v59
    s_mov_b32 exec_hi, 0
    ds_write2_b32 v47, v56, v57 offset0:{0} offset1:{16}
    s_mov_b32 exec_hi, -1
    s_waitcnt lgkmcnt(0)
    """.replace("v47, v56, v57 offset0:0 offset1:16", "v47, v56, v57 offset0:0 offset1:16"))
    XO = 64
    for k in range(4): A(f"ds_read_b128 {v4(XO+4*k)}, v48 offset:{OB+16*k}")
    A("s_waitcnt lgkmcnt(0)")
    stamp(7)
    perms(XO, 0, 8)
    for i in range(32):
        if i + 1 < 32: perms(XO + (i+1)//2, (i+1) & 1, 8 + 4*((i+1) & 1))
        mfma(4, 8 + 4*(i & 1), WOr + 4*i, "0" if i == 0 else "v[4:7]")
    A(f"""
    s_mov_b32 exec_hi, 0
    ds_write_b128 v41, v[4:7] offset:{YS}
    s_waitcnt lgkmcnt(0)
    ds_read_b128 v[56:59], v42 offset:{YS}
    s_waitcnt lgkmcnt(0)
    """)
    for k in range(4): A(f"v_mul_f32 v{56+k}, v{56+k}, v33")
    tag4(56)
    A(f"""
    s_mov_b32 exec_lo, s68
    s_mov_b32 exec_hi, 0
    global_store_dwordx4 v43, v[56:59], s[40:41] sc1
    s_mov_b64 exec, -1
    {"s_branch L_hend" if HST == 4 else ""}
    s_cmp_eq_u32 s75, 1
    s_cbranch_scc0 L_hend
    s_lshl_b32 s10, s76, 2
    s_add_u32 s10, s10, s77
    s_lshl_b32 s10, s10, 5
    s_lshl_b32 s9, s71, 3
    s_add_u32 s10, s10, s9
    s_lshl_b32 s10, s10, 9
    s_add_u32 s10, s10, {YX}
    v_lshrrev_b32 v46, 5, v1
    v_lshlrev_b32 v46, 9, v46
    v_and_b32 v47, 31, v1
    v_lshlrev_b32 v47, 4, v47
    v_add_u32 v46, v46, v47
    v_add_u32 v46, s10, v46
    v_add_u32 v47, 2048, v46
    """)
    ya = [(46, 0), (46, 1024), (47, 0), (47, 1024)]
    A(f"""
    s_mov_b32 s73, {SPIN}
    s_mov_b32 s52, s70
    s_mov_b32 s53, s70
    s_mov_b64 s[54:55], s[52:53]
    s_mov_b64 s[56:57], s[52:53]
    s_mov_b64 s[58:59], s[52:53]
    s_mov_b32 s12, 0x0c0c0400
    s_mov_b32 s13, 0x04000c0c
    L_ypoll:
    """)
    for q, (ar, off) in enumerate(ya):
        A(f"s_mov_b64 exec, s[{52+2*q}:{53+2*q}]")
        A(f"s_cbranch_execz L_ysk{q}")
        A(f"global_load_dwordx4 {v4(56+4*q)}, v{ar}, s[40:41] offset:{off} sc1")
        A(f"L_ysk{q}:")
    A("s_mov_b32 exec_lo, s70"); A("s_mov_b32 exec_hi, s70")
    A("s_waitcnt vmcnt(0)")
    for q in range(4):
        d = 56 + 4*q
        A(f"v_perm_b32 v44, v{d+1}, v{d}, s12")
        A(f"v_perm_b32 v45, v{d+3}, v{d+2}, s13")
        A(f"v_or_b32 v44, v44, v45")
        A(f"v_cmp_ne_u32 s[{52+2*q}:{53+2*q}], s74, v44")
    A(f"""
    s_or_b64 s[8:9], s[52:53], s[54:55]
    s_or_b64 s[10:11], s[56:57], s[58:59]
    s_or_b64 s[8:9], s[8:9], s[10:11]
    s_cbranch_scc0 L_yok
    s_sleep {int(opt.get("ysl", 1))}
    s_sub_u32 s73, s73, 1
    s_cbranch_scc0 L_ypoll
    L_yok:
    s_mov_b64 exec, -1
    """)
    sum_quads([56, 60, 64, 68])
    for r in range(4): A(f"v_mov_b32 v{60+r}, v{56+r}")
    for r in range(4): A(f"v_permlane32_swap_b32 v{56+r}, v{60+r}")
    for r in range(4): A(f"v_add_f32 v{56+r}, v{56+r}, v{60+r}")
    A(f"""
    s_lshl_b32 s8, s71, 9
    v_lshlrev_b32 v45, 4, v1
    v_add_u32 v45, s8, v45
    s_mov_b32 exec_hi, 0
    ds_write_b128 v45, v[56:59] offset:{FS}
    s_mov_b32 exec_hi, -1
    s_waitcnt lgkmcnt(0)
    s_barrier
    s_cmp_eq_u32 s71, 0
    s_cbranch_scc0 L_hend
    v_lshlrev_b32 v45, 4, v1
    s_mov_b32 exec_lo, s70
    s_mov_b32 exec_hi, 0
    """)
    for w in range(4): A(f"ds_read_b128 {v4(56+4*w)}, v45 offset:{FS+512*w}")
    A(f"""
    s_mul_i32 s8, s77, 1280
    s_add_u32 s8, s8, s65
    v_lshlrev_b32 v44, 3, v1
    v_add_u32 v44, s8, v44
    s_waitcnt lgkmcnt(0)
    """)
    sum_quads([56, 60, 64, 68])
    for k in (0, 2): pk(56+k, 56+k, FSUM+k)
    A(f"""
    v_cvt_pk_bf16_f32 v56, v56, v57
    v_cvt_pk_bf16_f32 v57, v58, v59
    global_store_dwordx2 v44, v[56:57], s[36:37] {opt.get("outf", "")}
    s_mov_b64 exec, -1
    """)
    A("L_hend:")
    stamp(8)
    store_stamps(9)
    A("L_end:")
    A("s_endpgm")
    body = A.finalize()
    body += f""".section .rodata,"a"
.p2align 6
.amdhsa_kernel {NAME}_kernel
  .amdhsa_next_free_vgpr 256
  .amdhsa_next_free_sgpr 102
  .amdhsa_accum_offset 256
  .amdhsa_group_segment_fixed_size 0
  .amdhsa_kernarg_size 104
  .amdhsa_user_sgpr_count 2
  .amdhsa_user_sgpr_kernarg_segment_ptr 1
  .amdhsa_system_sgpr_workgroup_id_x 1
.end_amdhsa_kernel
"""
    return body

if __name__ == "__main__":
    out = sys.argv[1] if len(sys.argv) > 1 else f"cdna_kernels/{NAME}.s"
    opt = {}
    for a in sys.argv[2:]:
        k, v = a.split("=")
        opt[k] = {"1": True, "0": False}.get(v, v) if k in ("stamps", "fine", "noffn") else v
    open(out, "w").write(gen(opt))
    print("wrote", out)
```

```python
import sys, struct
sys.path.insert(0, "gen")
from asmb import Asm
NAME = "gated_mix__mha_block_cached__swiglu_ffn__decode"
def f2u(x): return struct.unpack("<I", struct.pack("<f", x))[0]
LOG2E = 1.4426950408889634
CSC = LOG2E / (128 ** 0.5)
CNTK = 0; CNTH = 4; SCRDY = 8; QRDY = 12; CKC = 16; MODE = 20; NONCE = 32
ST = 40; SCALE = 72
QB = 128; HB = 512; OB = 1024; YS = 2048; OP = 4096; FS = 6144
GP = 8192; WOL = 16384; YP2 = 49152
XL = 49152 + 16384
GWL = XL + 5120
LDS_BYTES = GWL + 1280
SX = 0; QX = 0x10000; FX = 0x50000; OX = 0xE0000; YX = 0x100000; OXA = 0xA0000; FY = 0x180000; PF = 0x8000
NFFN = 108; FFN0 = 20
SPIN = 200000
class VMQ:
    def __init__(self, A): self.q = []; self.A = A
    def issue(self, tag):
        self.q.append(tag); assert len(self.q) <= 63, len(self.q)
    def pace(self, depth):
        if depth and len(self.q) >= depth:
            self.A(f"s_waitcnt vmcnt({depth-1})"); self.q = self.q[len(self.q) - (depth - 1):] if depth > 1 else []
    def wait(self, tag):
        if tag not in self.q: return
        idx = self.q.index(tag); n = len(self.q) - 1 - idx
        self.A(f"s_waitcnt vmcnt({n})"); self.q = self.q[idx + 1:]

def gen(opt=None):
    opt = opt or {}
    KVF = opt.get("kvflags", "nt"); WF = opt.get("wflags", "nt")
    stamps = opt.get("stamps", False); FINE = opt.get("fine", False)
    NSLEEP = int(opt.get("nsleep", 10)); QSLEEP = int(opt.get("qsleep", 16))
    WK = int(opt.get("wk", 32)); WV = int(opt.get("wv", 48))
    BP = int(opt.get("bp", 2))
    FSTOP = int(opt.get("fstop", 0))
    OSL = int(opt.get("osl", 1)); FSL = int(opt.get("fsl", 48))
    A = Asm()
    A(f"; @launch grid=(256,1,1) block=(512,1,1) lds={LDS_BYTES}")
    A('.amdgcn_target "amdgcn-amd-amdhsa--gfx950"')
    A(".text"); A(f".globl {NAME}_kernel"); A(".p2align 8"); A(f".type {NAME}_kernel,@function"); A(f"{NAME}_kernel:")
    vG, vC = 34, 35
    SELL, SELH = 16, 20
    M = 36; Q = 40
    uid = [0]
    def U(): uid[0] += 1; return uid[0]
    def v4(r): return f"v[{r}:{r+3}]"
    def stamp(i):
        if stamps: A(f"s_memrealtime s[{80+2*i}:{81+2*i}]")
    def store_stamps(n):
        if not stamps: return
        A("""
        s_waitcnt lgkmcnt(0)
        s_lshl_b32 s8, s2, 10
        s_lshl_b32 s9, s3, 7
        s_add_u32 s8, s8, s9
        s_add_u32 s8, s8, 0x2000000
        v_mov_b32 v44, s8
        s_mov_b64 exec, 1
        """)
        for i in range(n):
            A(f"v_mov_b32 v45, s{80+2*i}"); A(f"global_store_dword v44, v45, s[40:41] offset:{4*i}"); A("s_nop 0")
        A("s_getreg_b32 s9, hwreg(HW_REG_XCC_ID)"); A("v_mov_b32 v45, s9"); A("global_store_dword v44, v45, s[40:41] offset:120")
        A("s_mov_b64 exec, -1")
    def lds_spin(off, cond, sleep, val=None):
        t = U()
        A(f"""
        v_mov_b32 v44, 0
        s_mov_b32 s73, {SPIN}
        L_sp{t}:
        ds_read_b32 v45, v44 offset:{off}
        s_waitcnt lgkmcnt(0)
        v_readfirstlane_b32 s8, v45
        """)
        if cond == "nz": A("s_cmp_lg_u32 s8, 0")
        else: A(f"s_cmp_ge_u32 s8, {val}")
        A(f"""
        s_cbranch_scc1 L_sp{t}_ok
        s_sleep {sleep}
        s_sub_u32 s73, s73, 1
        s_cbranch_scc0 L_sp{t}
        L_sp{t}_ok:
        """)
    def hbarrier(n, sleep=1):
        A(f"""
        s_waitcnt lgkmcnt(0)
        v_mov_b32 v44, 0
        v_mov_b32 v45, 1
        s_mov_b64 exec, 1
        ds_add_u32 v44, v45 offset:{CNTH}
        s_mov_b64 exec, -1
        """)
        lds_spin(CNTH, "ge", sleep, 4 * n)
    def perms(xreg, hi, aset):
        sel = SELH if hi else SELL
        for r in range(4): A(f"v_perm_b32 v{aset+r}, v{xreg}, v{xreg}, v{sel+r}")
    def pk(d, a, b): A(f"v_pk_add_f32 v[{d}:{d+1}], v[{a}:{a+1}], v[{b}:{b+1}]")
    def mfma(d, a, b, c): A(f"v_mfma_f32_16x16x32_bf16 {v4(d)}, {v4(a)}, {v4(b)}, {c}")
    def rowreduce(op, reg):
        A(f"{op}_dpp v{reg}, v{reg}, v{reg} row_ror:8 row_mask:0xf bank_mask:0xf")
        A(f"{op}_dpp v{reg}, v{reg}, v{reg} row_ror:4 row_mask:0xf bank_mask:0xf")
        A(f"{op}_dpp v{reg}, v{reg}, v{reg} quad_perm:[2,3,0,1] row_mask:0xf bank_mask:0xf")
        A(f"{op}_dpp v{reg}, v{reg}, v{reg} quad_perm:[1,0,3,2] row_mask:0xf bank_mask:0xf")
    def wavereduce(op, reg):
        rowreduce(op, reg)
        for k in range(4): A(f"v_readlane_b32 s{8+k}, v{reg}, {16*k}")
        A(f"v_mov_b32 v{reg}, s8")
        for k in range(1, 4): A(f"{op} v{reg}, s{8+k}, v{reg}")
    def check_tags(tags, okl):
        A(f"v_cmp_ne_u32 s[78:79], s74, v{tags[0]}")
        for t in tags[1:]:
            A(f"v_cmp_ne_u32 vcc, s74, v{t}")
            A("s_or_b64 s[78:79], s[78:79], vcc")
        A("s_cmp_eq_u64 s[78:79], 0")
        A(f"s_cbranch_scc1 {okl}")
    def blk(sj, soff, snch, smask):
        A(f"""
        s_cmp_ge_u32 {sj}, 1
        s_cselect_b32 {soff}, 1, 0
        s_add_u32 {soff}, {soff}, {sj}
        s_cmp_ge_u32 {sj}, 5
        s_addc_u32 {soff}, {soff}, 0
        s_lshl_b32 {soff}, {soff}, 7
        s_and_b32 {snch}, {sj}, 3
        s_cmp_eq_u32 {snch}, 0
        s_cselect_b32 {snch}, 16, 8
        s_cselect_b32 {smask}, -1, 0xffff
        """)
    TG = 28
    def tag4(d, tg=TG):
        for k in range(4): A(f"v_and_or_b32 v{d+k}, v{d+k}, s75x, v{tg+k}".replace("s75x", "s14"))
    def settags(nonce_v, tg):
        A("s_mov_b32 s14, 0xffffff00")
        A(f"v_and_b32 v{tg}, 0xff, v{nonce_v}")
        for k in range(1, 4): A(f"v_bfe_u32 v{tg+k}, v{nonce_v}, {8*k}, 8")
    def chk4(quads, okl, tmp=44):
        A("s_mov_b32 s12, 0x0c0c0400"); A("s_mov_b32 s13, 0x04000c0c")
        for i, d in enumerate(quads):
            A(f"v_perm_b32 v{tmp}, v{d+1}, v{d}, s12")
            A(f"v_perm_b32 v{tmp+1}, v{d+3}, v{d+2}, s13")
            A(f"v_or_b32 v{tmp}, v{tmp}, v{tmp+1}")
            if i == 0: A(f"v_cmp_ne_u32 s[78:79], s74, v{tmp}")
            else:
                A(f"v_cmp_ne_u32 vcc, s74, v{tmp}"); A("s_or_b64 s[78:79], s[78:79], vcc")
        A("s_cmp_eq_u64 s[78:79], 0"); A(f"s_cbranch_scc1 {okl}")
    def probe(addr_v, mask, sleep):
        t = U()
        A(f"""
        s_mov_b32 s73, {SPIN}
        s_and_b32 s15, s74, 0xff
        s_mov_b64 exec, {mask:#x}
        L_pr{t}:
        global_load_dword v45, v{addr_v}, s[40:41] sc1
        s_waitcnt vmcnt(0)
        v_and_b32 v45, 0xff, v45
        v_cmp_ne_u32 vcc, s15, v45
        s_cmp_eq_u64 vcc, 0
        s_cbranch_scc1 L_pr{t}_ok
        s_sleep {sleep}
        s_sub_u32 s73, s73, 1
        s_cbranch_scc0 L_pr{t}
        L_pr{t}_ok:
        s_mov_b64 exec, -1
        """)

    A("""
    s_cmp_ge_u32 s2, 256
    s_cbranch_scc1 L_end
    s_load_dwordx16 s[16:31], s[0:1], 0
    s_load_dwordx8 s[32:39], s[0:1], 64
    s_load_dwordx2 s[40:41], s[0:1], 96
    """)
    stamp(0)
    if opt.get("delaywg") is not None:
        A(f"s_cmp_eq_u32 s2, {int(opt['delaywg'])}"); A("s_cbranch_scc0 L_nodelay"); A("s_mov_b32 s8, 60")
        A("L_dly:"); A("s_sleep 64"); A("s_sub_u32 s8, s8, 1"); A("s_cbranch_scc0 L_dly"); A("L_nodelay:")
    EB = opt.get("eb", "0") in ("1", True)
    EB_A = "s_barrier" if EB else ""
    DUAL = opt.get("dual", "1") in ("1", True)
    MAP = opt.get("map", "loc")
    if MAP == "loc":
        MAPCODE = """s_and_b32 s4, s2, 31
    s_lshr_b32 s5, s2, 6
    s_bfe_u32 s6, s2, 0x10005
    s_lshl_b32 s7, s5, 5
    s_add_u32 s7, s7, s4"""; PX_ = 32
    else:
        MAPCODE = """s_lshr_b32 s8, s2, 1
    s_xor_b32 s9, s8, s2
    s_and_b32 s9, s9, 1
    s_and_b32 s6, s8, 1
    s_lshr_b32 s8, s2, 2
    s_lshl_b32 s8, s8, 1
    s_add_u32 s7, s8, s9
    s_and_b32 s4, s7, 31
    s_lshr_b32 s5, s7, 5"""; PX_ = 3
    if stamps and opt.get("clk"): A("s_memtime s[100:101]")
    A(f"""
    v_lshrrev_b32 v3, 6, v0
    v_and_b32 v1, 63, v0
    v_readfirstlane_b32 s3, v3
    v_mov_b32 v4, 0
    v_mov_b32 v5, 0
    v_mov_b32 v6, 0
    v_mov_b32 v7, 0
    s_cmp_eq_u32 s3, 4
    s_cbranch_scc0 L_noz
    s_mov_b64 exec, 1
    ds_write_b128 v4, v[4:7] offset:0
    ds_write_b128 v4, v[4:7] offset:16
    s_mov_b64 exec, -1
    {"s_waitcnt lgkmcnt(0)" if EB else ""}
    L_noz:
    {"s_waitcnt lgkmcnt(0)" if False else ""}
    {EB_A}
    {MAPCODE}
    v_lshrrev_b32 v{vG}, 4, v1
    v_and_b32 v{vC}, 15, v1
    s_cmp_ge_u32 s3, 4
    s_cbranch_scc1 L_H
    """)
    A(f"""
    s_lshl_b32 s9, s3, 12
    v_lshlrev_b32 v2, 4, v1
    v_add_u32 v2, s9, v2
    s_lshl_b32 s8, s7, 20
    s_cmp_eq_u32 s6, 0
    s_cselect_b32 s64, 0, {63*16384}
    s_mov_b32 s9, 16384
    s_cselect_b32 s43, s9, {(-16384) & 0xffffffff:#x}
    s_waitcnt lgkmcnt(0)
    s_add_u32 s52, s18, s8
    s_addc_u32 s53, s19, 0
    s_and_b32 s53, s53, 0xffff
    s_mov_b32 s54, 0x100000
    s_mov_b32 s55, 0x20000
    s_add_u32 s56, s20, s8
    s_addc_u32 s57, s21, 0
    s_and_b32 s57, s57, 0xffff
    s_mov_b32 s58, 0x100000
    s_mov_b32 s59, 0x20000
    s_mov_b32 s65, s64
    {"" if EB else "s_barrier"}
    """)
    vq = VMQ(A)
    def slot(sl): return 128 + 4 * sl if sl < 32 else 64 + 4 * (sl - 32)
    def kslot(i): return slot(i % WK)
    DEPTH = int(opt.get("depth", 6))
    CTL = opt.get("ctl", "0") in ("1", True)
    DSH = int(opt.get("dsh", 5))
    CMASK = int(opt.get("cmask", "0x7f"), 0); CTHR = int(opt.get("cthr", 4))
    L3 = opt.get("l3", "0") in ("1", True); DMID = int(opt.get("dmid", 6)); CT2 = int(opt.get("ct2", 5))
    CKS = [int(x) for x in opt.get("cks", "64,96,128,160,192,224").split(",")]
    ctl_on = [False]
    cur_pos = [0]
    POS2 = int(opt.get("pos2", 999)); DSH2 = int(opt.get("dsh2", 4)); DEPTH2 = int(opt.get("depth2", 0))
    DSH_0, DEPTH_0 = DSH, DEPTH
    def pace():
        nonlocal DSH, DEPTH
        if cur_pos[0] >= POS2: DSH, DEPTH = DSH2, DEPTH2
        else: DSH, DEPTH = DSH_0, DEPTH_0
        if not (CTL and ctl_on[0]):
            vq.pace(int(opt.get("d0", DEPTH))); return
        if L3:
            t = U()
            if len(vq.q) >= DSH:
                A("s_cmp_ge_u32 s76, 2"); A(f"s_cbranch_scc1 L_pc{t}")
                if len(vq.q) >= DMID: A(f"s_waitcnt vmcnt({DMID-1})")
                A("s_cmp_ge_u32 s76, 1"); A(f"s_cbranch_scc1 L_pc{t}"); A(f"s_waitcnt vmcnt({DSH-1})"); A(f"L_pc{t}:")
        elif len(vq.q) >= DSH:
            t = U()
            A("s_cmp_lg_u32 s76, 0"); A(f"s_cbranch_scc1 L_pc{t}"); A(f"s_waitcnt vmcnt({DSH-1})"); A(f"L_pc{t}:")
        vq.pace(DEPTH)
    def ctl_step(pos):
        cur_pos[0] = pos
        if not CTL: return
        if pos in CKS:
            A("s_mov_b64 exec, 1"); A(f"ds_add_u32 v17, v19 offset:{CKC}"); A("s_mov_b64 exec, -1")
        if pos >= CKS[0] and pos % 8 == 0:
            A("s_waitcnt lgkmcnt(0)"); A("v_readfirstlane_b32 s76, v18"); A(f"ds_read_b32 v18, v17 offset:{MODE}")
            ctl_on[0] = True
    def kload(i):
        pace()
        if i % 4 == 0 and i > 0: A("s_add_u32 s65, s65, s43")
        A(f"buffer_load_dwordx4 {v4(kslot(i))}, v2, s[52:55], s65 offen offset:{(i%4)*1024} {KVF}")
        vq.issue(("K", i))
    def vslot(v): return slot(v % WV)
    def vload(v):
        pace()
        if v == 0: A("s_mov_b32 s65, s64")
        elif v % 4 == 0: A("s_add_u32 s65, s65, s43")
        A(f"buffer_load_dwordx4 {v4(vslot(v))}, v2, s[56:59], s65 offen offset:{(v%4)*1024} {KVF}")
        vq.issue(("V", v))
    for i in range(WK): kload(i)
    A(f"""
    v_and_b32 v44, 1, v{vC}
    v_cmp_eq_u32 vcc, 1, v44
    v_mov_b32 v45, 0x0000ffff
    v_mov_b32 v46, 0xffff0000
    v_cndmask_b32 v47, v45, v46, vcc
    v_bfe_u32 v44, v{vC}, 1, 2
    v_mov_b32 v46, 0
    """)
    for r in range(4):
        A(f"v_cmp_eq_u32 vcc, {r}, v44")
        A(f"v_cndmask_b32 v{M+r}, v46, v47, vcc")
    A(f"""
    s_mov_b32 s42, {f2u(CSC):#x}
    s_mov_b32 s66, 0xcccccccc
    s_mov_b32 s67, 0xcccccccc
    s_mov_b32 s68, 0xaaaaaaaa
    s_mov_b32 s69, 0xaaaaaaaa
    """)
    A("v_mov_b32 v17, 0"); A("v_mov_b32 v18, 0"); A("v_mov_b32 v19, 1"); A("s_mov_b32 s76, 0")
    lds_spin(QRDY, "nz", 2)
    A(f"""
    v_lshlrev_b32 v46, 4, v{vC}
    ds_read_b128 {v4(Q)}, v46 offset:{QB}
    ds_read_b32 v16, v44 offset:{NONCE}
    s_waitcnt lgkmcnt(0)
    """)
    stamp(1)
    T = 48
    def reduce16(dest):
        for a in range(8):
            A(f"v_add_f32_dpp v{T+a}, v{T+a}, v{T+a} row_ror:8 row_mask:0xf bank_mask:0x3")
            A(f"v_add_f32_dpp v{T+a}, v{T+a+8}, v{T+a+8} row_ror:8 row_mask:0xf bank_mask:0xc")
        for a in range(4):
            A(f"v_add_f32_dpp v{T+a}, v{T+a}, v{T+a} row_half_mirror row_mask:0xf bank_mask:0x5")
            A(f"v_add_f32_dpp v{T+a}, v{T+a+4}, v{T+a+4} row_half_mirror row_mask:0xf bank_mask:0xa")
        for a in range(2):
            A(f"v_cndmask_b32 v{44+2*a}, v{T+a}, v{T+a+2}, s[66:67]")
            A(f"v_cndmask_b32 v{45+2*a}, v{T+a+2}, v{T+a}, s[66:67]")
        for a in range(2):
            A(f"v_add_f32_dpp v{T+a}, v{45+2*a}, v{44+2*a} quad_perm:[2,3,0,1] row_mask:0xf bank_mask:0xf")
        A(f"v_cndmask_b32 v44, v{T}, v{T+1}, s[68:69]")
        A(f"v_cndmask_b32 v45, v{T+1}, v{T}, s[68:69]")
        A(f"v_add_f32_dpp v{dest}, v45, v44 quad_perm:[1,0,3,2] row_mask:0xf bank_mask:0xf")
    SC = 24
    nv = 0
    for j in range(0, 128, 2):
        vq.wait(("K", j + 1))
        for r in range(4 if not opt.get("nodot") else 0):
            for jj in (j, j+1):
                t = T + (jj & 15)
                c = "0" if r == 0 else f"v{t}"
                A(f"v_dot2_f32_bf16 v{t}, v{kslot(jj)+r}, v{Q+r}, {c}")
        for jj in (j, j+1):
            if jj + WK < 128: kload(jj + WK)
            else: vload(nv); nv += 1
        if (j + 1) % 16 == 15 and not opt.get("nodot"): reduce16(SC + (j >> 4))
        ctl_step(j + 2)
        if FINE and (j + 2) % 32 == 0: stamp(1 + (j + 2) // 32)
    if not FINE: stamp(2)
    B = Asm(); _A = A
    sm = []
    class Cap:
        def __call__(self, s):
            for l in s.split("\n"):
                if l.strip(): sm.append(l.strip())
    A = Cap()
    A(f"""
    v_max3_f32 v44, v{SC}, v{SC+1}, v{SC+2}
    v_max3_f32 v44, v44, v{SC+3}, v{SC+4}
    v_max3_f32 v44, v44, v{SC+5}, v{SC+6}
    v_max_f32 v44, v44, v{SC+7}
    """)
    wavereduce("v_max_f32", 44)
    A("v_mul_f32 v46, s42, v44")
    for k in range(8): A(f"v_fma_f32 v{SC+k}, v{SC+k}, s42, -v46")
    for k in range(8): A(f"v_exp_f32 v{SC+k}, v{SC+k}")
    A(f"""
    v_add_f32 v47, v{SC}, v{SC+1}
    v_add_f32 v44, v{SC+2}, v{SC+3}
    v_add_f32 v45, v{SC+4}, v{SC+5}
    v_add_f32 v48, v{SC+6}, v{SC+7}
    v_add_f32 v47, v47, v44
    v_add_f32 v45, v45, v48
    v_add_f32 v47, v47, v45
    """)
    wavereduce("v_add_f32", 47)
    for k in range(8): A(f"v_cvt_pk_bf16_f32 v{SC+k}, v{SC+k}, v{SC+k}")
    A = _A
    extra = WV - nv
    step = max(1, len(sm) // (extra + 1)) if extra > 0 else 0
    for i, l in enumerate(sm):
        A(l)
        if extra > 0 and (i + 1) % step == 0 and nv < WV: vload(nv); nv += 1
    while nv < WV: vload(nv); nv += 1
    A(f"""
    s_lshl_b32 s8, s3, 3
    v_mov_b32 v44, s8
    v_mov_b32 v45, 1
    v_mov_b32 v48, 0
    s_mov_b64 exec, 1
    ds_write_b64 v44, v[46:47] offset:{ST}
    ds_add_u32 v48, v45 offset:{CNTK}
    s_mov_b64 exec, -1
    """)
    for r in range(4): A(f"v_mov_b32 v{4+r}, 0")
    def abuild(v, aset):
        p, jj = SC + (v >> 4), v & 15
        for q in range(4):
            A(f"v_and_b32_dpp v{aset+q}, v{p}, v{M+q} row_newbcast:{jj} row_mask:0xf bank_mask:0xf")
    abuild(0, 8)
    for v in range(128):
        if FINE and v in (32, 64, 96): stamp(5 + v // 32)
        if v == 96:
            lds_spin(SCRDY, "nz", 2)
            A(f"""
            s_lshl_b32 s8, s3, 2
            v_mov_b32 v44, s8
            ds_read_b32 v50, v44 offset:{SCALE}
            v_lshlrev_b32 v60, 5, v{vC}
            v_lshlrev_b32 v61, 4, v{vG}
            v_add_u32 v60, v60, v61
            s_lshl_b32 s8, s3, 9
            v_add_u32 v60, s8, v60
            v_lshlrev_b32 v61, 4, v1
            s_lshl_b32 s8, s7, 1
            s_add_u32 s8, s8, s6
            s_lshl_b32 s8, s8, 9
            s_add_u32 s8, s8, {OX}
            v_add_u32 v62, s8, v61
            v_add_u32 v63, {(OXA - OX) & 0xffffffff:#x}, v62
            """)
            settags(16, 20)
        if v + 1 < 128 and not opt.get("nomfma"): abuild(v + 1, 8 + 4*((v+1) & 1))
        vq.wait(("V", v))
        if not opt.get("nomfma"): mfma(4, 8 + 4*(v & 1), vslot(v), "v[4:7]")
        if v + WV < 128: vload(v + WV)
        ctl_step(128 + v + 1)
    stamp(9 if FINE else 3)
    if stamps and opt.get("clk"):
        A("s_memtime s[76:77]"); A("s_waitcnt lgkmcnt(0)"); A("s_sub_u32 s76, s76, s100")
        A("s_lshl_b32 s8, s2, 10"); A("s_lshl_b32 s9, s3, 7"); A("s_add_u32 s8, s8, s9"); A("s_add_u32 s8, s8, 0x2000000")
        A("v_mov_b32 v44, s8"); A("v_mov_b32 v45, s76"); A("s_mov_b64 exec, 1"); A("global_store_dword v44, v45, s[40:41] offset:80"); A("s_mov_b64 exec, -1")
    A("s_waitcnt lgkmcnt(0)")
    for r in range(4): A(f"v_mul_f32 v{4+r}, v{4+r}, v50")
    A(f"""
    s_mov_b32 exec_hi, 0
    ds_write_b128 v60, v[4:7] offset:{OP}
    s_waitcnt lgkmcnt(0)
    s_barrier
    s_cmp_eq_u32 s3, 0
    s_cbranch_scc0 L_sexit
    """)
    for w in range(4): A(f"ds_read_b128 {v4(128+4*w)}, v61 offset:{OP+512*w}")
    A("s_waitcnt lgkmcnt(0)")
    for k in (0, 2):
        pk(128+k, 128+k, 132+k); pk(136+k, 136+k, 140+k); pk(128+k, 128+k, 136+k)
    tag4(128, 20)
    if DUAL: A("global_store_dwordx4 v63, v[128:131], s[40:41]")
    A(f"""
    global_store_dwordx4 v62, v[128:131], s[40:41] sc1
    L_sexit:
    s_mov_b32 exec_hi, -1
    """)
    store_stamps(10 if FINE else 4)
    A("s_endpgm")

    A("L_H:")
    SELX = 24
    A(f"""
    s_setprio 3
    s_sub_u32 s71, s3, 4
    s_lshl_b32 s72, s5, 1
    s_add_u32 s72, s72, s6
    v_and_b32 v44, 1, v{vC}
    v_cmp_eq_u32 vcc, 1, v44
    v_mov_b32 v45, 0x0c0c0100
    v_mov_b32 v46, 0x01000c0c
    v_cndmask_b32 v47, v45, v46, vcc
    v_mov_b32 v45, 0x0c0c0302
    v_mov_b32 v46, 0x03020c0c
    v_cndmask_b32 v48, v45, v46, vcc
    v_bfe_u32 v44, v{vC}, 1, 2
    v_mov_b32 v45, 0x0c0c0c0c
    v_cmp_gt_u32 s[12:13], 8, v{vC}
    """)
    for r in range(4):
        A(f"v_cmp_eq_u32 vcc, {r}, v44")
        A(f"v_cndmask_b32 v{SELL+r}, v45, v47, vcc")
        A(f"v_cndmask_b32 v{SELH+r}, v45, v48, vcc")
        A(f"v_cndmask_b32 v{SELX+r}, v{SELH+r}, v{SELL+r}, s[12:13]")
    A(f"""
    s_lshr_b32 s8, s72, 1
    s_mul_i32 s8, s8, 160
    s_mul_i32 s9, s71, 40
    s_add_u32 s8, s8, s9
    v_mul_u32_u24 v44, 10, v{vG}
    v_add_u32 v44, s8, v44
    v_lshlrev_b32 v46, 1, v44
    v_lshrrev_b32 v45, 3, v{vC}
    v_add_u32 v45, v44, v45
    v_lshlrev_b32 v45, 13, v45
    v_and_b32 v47, 7, v{vC}
    v_lshlrev_b32 v47, 4, v47
    v_add_u32 v48, v45, v47
    s_waitcnt lgkmcnt(0)
    s_or_b32 s8, s2, s71
    s_cmp_eq_u32 s8, 0
    s_cbranch_scc0 L_nononce
    s_memrealtime s[8:9]
    s_waitcnt lgkmcnt(0)
    s_or_b32 s8, s8, 1
    s_mul_i32 s8, s8, 0x9e3779b1
    v_mov_b32 v44, 0
    v_mov_b32 v50, s8
    v_mov_b32 v51, 0
    s_mov_b64 exec, 1
    global_atomic_cmpswap v44, v[50:51], s[38:39]
    s_mov_b64 exec, -1
    L_nononce:
    s_mov_b32 s44, s16
    s_and_b32 s45, s17, 0xffff
    s_mov_b32 s46, 5120
    s_mov_b32 s47, 0x20000
    s_lshl_b32 s8, s4, 8
    s_and_b32 s9, s72, 1
    s_lshl_b32 s9, s9, 7
    s_add_u32 s8, s8, s9
    s_add_u32 s48, s22, s8
    s_addc_u32 s49, s23, 0
    s_and_b32 s49, s49, 0xffff
    s_sub_u32 s50, 5242880, s8
    s_mov_b32 s51, 0x20000
    """)
    XQ = 56; WQr = 80
    A(f"""
    s_mul_i32 s8, s71, 1280
    v_lshlrev_b32 v44, 4, v1
    v_add_u32 v45, s8, v44
    s_add_u32 s9, s8, {XL}
    s_mov_b32 m0, s9
    s_mov_b32 s60, s34
    s_and_b32 s61, s35, 0xffff
    s_mov_b32 s62, 1280
    s_mov_b32 s63, 0x20000
    buffer_load_dwordx4 v45, s[44:47], 0 offen lds
    s_add_u32 m0, s9, 1024
    s_mov_b32 s64, 1024
    s_mov_b64 exec, 0xffff
    buffer_load_dwordx4 v45, s[44:47], s64 offen lds
    s_mov_b64 exec, -1
    s_cmp_eq_u32 s71, 0
    s_cbranch_scc0 L_nogw
    s_mov_b32 m0, {GWL}
    s_nop 0
    buffer_load_dwordx4 v44, s[60:63], 0 offen lds
    s_mov_b32 m0, {GWL+1024}
    s_mov_b64 exec, 0xffff
    buffer_load_dwordx4 v44, s[60:63], s64 offen lds
    s_mov_b64 exec, -1
    L_nogw:
    """)
    for i in range(5):
        A(f"s_mov_b32 s64, {2*i*8192}")
        A(f"buffer_load_dwordx4 {v4(WQr+4*i)}, v48, s[48:51], s64 offen {WF}")
    A("s_waitcnt lgkmcnt(0)")
    if not EB: A("s_barrier")
    A("s_waitcnt vmcnt(5)")
    hbarrier(1)
    for b in range(4): A(f"v_add_u32 v{100+b}, {XL + 1280*b}, v46")
    for b in range(4):
        A(f"ds_read2_b32 v[{XQ+6*b}:{XQ+6*b+1}], v{100+b} offset0:0 offset1:1")
        A(f"ds_read2_b32 v[{XQ+6*b+2}:{XQ+6*b+3}], v{100+b} offset0:2 offset1:3")
        A(f"ds_read_b32 v{XQ+6*b+4}, v{100+b} offset:16")
    A(f"""
    s_cmp_eq_u32 s71, 0
    s_cbranch_scc0 L_nopoll
    v_mov_b32 v44, 0
    s_mov_b32 s73, {SPIN}
    s_mov_b64 exec, 1
    L_npoll:
    global_load_dword v45, v44, s[38:39] sc1
    s_waitcnt vmcnt(0)
    v_readfirstlane_b32 s74, v45
    s_cmp_lg_u32 s74, 0
    s_cbranch_scc1 L_ngot
    s_and_b32 s8, s73, 15
    s_cmp_eq_u32 s8, 8
    s_cbranch_scc0 L_nelect
    s_memrealtime s[8:9]
    s_waitcnt lgkmcnt(0)
    s_or_b32 s8, s8, 1
    s_mul_i32 s8, s8, 0x9e3779b1
    v_mov_b32 v50, s8
    v_mov_b32 v51, 0
    global_atomic_cmpswap v44, v[50:51], s[38:39]
    L_nelect:
    s_sub_u32 s73, s73, 1
    s_cbranch_scc0 L_npoll
    L_ngot:
    v_mov_b32 v45, s74
    ds_write_b32 v44, v45 offset:{NONCE}
    s_mov_b64 exec, -1
    L_nopoll:
    """)
    A("s_waitcnt vmcnt(0) lgkmcnt(0)")
    stamp(1)
    def xq(b, i): return XQ + 6*b + i
    DQ = [4, 48, 52, 104]
    n = 0
    for i in range(5):
        for b in range(4):
            aset = 8 + 4 * (n & 1)
            for r in range(4): A(f"v_perm_b32 v{aset+r}, v{xq(b,i)}, v{xq(b,i)}, v{SELX+r}")
            mfma(DQ[b], aset, WQr + 4*i, "0" if i == 0 else v4(DQ[b]))
            n += 1
    A(f"""
    s_lshl_b32 s8, s71, 11
    v_lshrrev_b32 v45, 1, v{vG}
    v_lshlrev_b32 v45, 8, v45
    v_and_b32 v46, 7, v{vC}
    v_lshlrev_b32 v46, 5, v46
    v_add_u32 v45, v45, v46
    v_and_b32 v46, 1, v{vG}
    v_lshlrev_b32 v46, 4, v46
    v_add_u32 v45, v45, v46
    v_add_u32 v45, s8, v45
    s_mov_b32 exec_lo, 0x00ff00ff
    s_mov_b32 exec_hi, 0xff00ff00
    """)
    for b in range(4): A(f"ds_write_b128 v45, {v4(DQ[b])} offset:{GP+512*b}")
    A("s_mov_b64 exec, -1")
    hbarrier(2)
    A(f"""
    v_mov_b32 v44, 0
    ds_read_b32 v32, v44 offset:{NONCE}
    s_lshl_b32 s8, s71, 9
    v_lshlrev_b32 v45, 4, v{vC}
    v_add_u32 v45, s8, v45
    """)
    for w in range(4):
        for rho in range(2): A(f"ds_read_b128 {v4(56+8*w+4*rho)}, v45 offset:{GP+w*2048+rho*256}")
    A(f"""
    s_lshl_b32 s10, s4, 3
    s_add_u32 s10, s10, s72
    s_lshl_b32 s10, s10, 2
    s_add_u32 s10, s10, s71
    s_lshl_b32 s10, s10, 8
    s_add_u32 s10, s10, {QX}
    v_lshlrev_b32 v46, 4, v{vC}
    v_add_u32 v46, s10, v46
    s_waitcnt lgkmcnt(0)
    v_readfirstlane_b32 s74, v32
    """)
    settags(32, TG)
    def sum_quads(regs):
        regs = list(regs)
        while len(regs) > 1:
            nx = []
            for a in range(0, len(regs) - 1, 2):
                for k in (0, 2): pk(regs[a]+k, regs[a]+k, regs[a+1]+k)
                nx.append(regs[a])
            if len(regs) % 2: nx.append(regs[-1])
            regs = nx
    sum_quads([56+4*k for k in range(8)])
    tag4(56)
    A(f"""
    s_mov_b64 exec, 0xffff
    global_store_dwordx4 v46, v[56:59], s[40:41] sc1
    s_mov_b64 exec, -1
    """)
    stamp(2)
    def rows_reduce(regs):
        for r in regs: A(f"v_mov_b32 v{r+32}, v{r}")
        for r in regs: A(f"v_permlane16_swap_b32 v{r}, v{r+32}")
        for r in regs: A(f"v_add_f32 v{r}, v{r}, v{r+32}")
        for r in regs: A(f"v_mov_b32 v{r+32}, v{r}")
        for r in regs: A(f"v_permlane32_swap_b32 v{r}, v{r+32}")
        for r in regs: A(f"v_add_f32 v{r}, v{r}, v{r+32}")
    A(f"""
    s_cmp_eq_u32 s71, 0
    s_cbranch_scc0 L_noq
    s_lshl_b32 s10, s4, 5
    s_add_u32 s10, s10, s5
    s_lshl_b32 s10, s10, 8
    s_add_u32 s10, s10, {QX}
    v_lshlrev_b32 v46, 11, v{vG}
    v_lshlrev_b32 v47, 4, v{vC}
    v_add_u32 v46, v46, v47
    v_add_u32 v46, s10, v46
    s_mov_b32 s73, {SPIN}
    s_sleep {QSLEEP}
    L_qpoll:
    global_load_dwordx4 v[56:59], v46, s[40:41] sc1
    global_load_dwordx4 v[60:63], v46, s[40:41] offset:1024 sc1
    s_waitcnt vmcnt(0)
    """)
    chk4([56, 60], "L_qok")
    A(f"""
    s_sub_u32 s73, s73, 1
    s_cbranch_scc0 L_qpoll
    L_qok:
    """)
    rows_reduce(range(56, 64))
    A(f"""
    v_cvt_pk_bf16_f32 v56, v56, v57
    v_cvt_pk_bf16_f32 v57, v58, v59
    v_cvt_pk_bf16_f32 v58, v60, v61
    v_cvt_pk_bf16_f32 v59, v62, v63
    v_lshlrev_b32 v45, 3, v{vC}
    v_mov_b32 v44, 0
    v_mov_b32 v47, 1
    s_mov_b64 exec, 0xffff
    ds_write_b64 v45, v[56:57] offset:{QB}
    ds_write_b64 v45, v[58:59] offset:{QB+128}
    s_mov_b64 exec, 1
    ds_write_b32 v44, v47 offset:{QRDY}
    s_mov_b64 exec, -1
    L_noq:
    """)
    stamp(3)
    def idle_end():
        A(f"""
        v_mov_b32 v44, 0
        v_mov_b32 v45, 1
        v_mov_b32 v46, 1.0
        ds_write_b32 v44, v46 offset:{SCALE}
        ds_write_b32 v44, v46 offset:{SCALE+4}
        ds_write_b32 v44, v46 offset:{SCALE+8}
        ds_write_b32 v44, v46 offset:{SCALE+12}
        ds_write_b32 v44, v45 offset:{SCRDY}
        s_waitcnt lgkmcnt(0)
        s_barrier
        s_branch L_hend
        """)
    HST = int(opt.get("hstop", 0))
    if opt.get("hidle"): idle_end()
    A(f"""
    s_setprio {BP}
    s_lshr_b32 s8, s2, 3
    s_and_b32 s9, s8, 3
    s_lshl_b32 s9, s9, 1
    s_add_u32 s9, s9, 1
    s_and_b32 s10, s2, 7
    s_mul_i32 s8, s8, 7
    s_add_u32 s8, s8, s10
    s_cmp_gt_u32 s10, s9
    s_cselect_b32 s11, 1, 0
    s_sub_u32 s8, s8, s11
    s_lshr_b32 s76, s8, 3
    s_and_b32 s77, s8, 7
    s_cmp_lt_u32 s8, 216
    s_cselect_b32 s75, 1, 0
    s_cmp_eq_u32 s10, s9
    s_cselect_b32 s75, 0, s75
    """)
    if opt.get("noffn"): A("s_mov_b32 s75, 0")
    blk("s72", "s66", "s67", "s68")
    blk("s77", "s65", "s69", "s70")
    A(f"""
    s_mul_i32 s8, s4, 163840
    s_add_u32 s8, s8, s66
    s_add_u32 s48, s24, s8
    s_addc_u32 s49, s25, 0
    s_and_b32 s49, s49, 0xffff
    s_sub_u32 s50, 5242880, s8
    s_mov_b32 s51, 0x20000
    v_mul_u32_u24 v46, 2560, v{vG}
    v_lshlrev_b32 v47, 4, v{vC}
    v_add_u32 v46, v46, v47
    s_mul_i32 s8, s71, {32*1280}
    v_add_u32 v46, s8, v46
    v_mov_b32 v47, 0x7ff00000
    v_cmp_gt_u32 vcc, s67, v{vC}
    v_cndmask_b32 v46, v47, v46, vcc
    s_lshl_b32 s9, s71, 13
    s_add_u32 s9, s9, {WOL}
    """)
    WOM = opt.get("wom", "dma"); HP = int(opt.get("hp", 0))
    for i in range(8 if HST != 1 else 0):
        t, s_ = i >> 1, i & 1
        if WOM == "dma":
            A(f"s_add_u32 m0, s9, {i*1024}")
            A(f"s_mov_b32 s64, {(8*t+s_)*1280}")
            if HP and i >= HP: A(f"s_waitcnt vmcnt({HP-1})")
            A(f"buffer_load_dwordx4 v46, s[48:51], s64 offen {WF} lds")
        elif WOM == "dmax":
            A("s_mov_b32 exec_lo, 0x03ff03ff"); A("s_mov_b32 exec_hi, 0x03ff03ff")
            A(f"s_add_u32 m0, s9, {i*1024}")
            A(f"s_mov_b32 s64, {(8*t+s_)*1280}")
            A(f"buffer_load_dwordx4 v46, s[48:51], s64 offen {WF} lds")
            A("s_mov_b64 exec, -1")
        else:
            A(f"s_mov_b32 s64, {(8*t+s_)*1280}")
            A(f"buffer_load_dwordx4 {v4(192+4*i)}, v46, s[48:51], s64 offen {WF}")
    W1r = 96; W2r = 120
    A("s_cmp_eq_u32 s75, 1"); A("s_cbranch_scc0 L_nobulk")
    A(f"""
    s_and_b32 s8, s77, 1
    s_cmp_eq_u32 s8, 0
    s_cselect_b32 s60, s28, s30
    s_cselect_b32 s61, s29, s31
    s_lshl_b32 s8, s76, 7
    s_add_u32 s60, s60, s8
    s_addc_u32 s61, s61, 0
    s_and_b32 s61, s61, 0xffff
    s_sub_u32 s62, {640*3456}, s8
    s_mov_b32 s63, 0x20000
    s_lshr_b32 s8, s77, 1
    s_mul_i32 s8, s8, 160
    s_mul_i32 s9, s71, 40
    s_add_u32 s8, s8, s9
    v_mul_u32_u24 v44, 10, v{vG}
    v_add_u32 v44, s8, v44
    v_lshlrev_b32 v41, 1, v44
    v_lshrrev_b32 v45, 3, v{vC}
    v_add_u32 v45, v44, v45
    v_mul_u32_u24 v45, 3456, v45
    v_and_b32 v47, 7, v{vC}
    v_lshlrev_b32 v47, 4, v47
    v_add_u32 v45, v45, v47
    """)
    for i in range(5):
        A(f"s_mov_b32 s64, {2*i*3456}")
        if HP: A(f"s_waitcnt vmcnt({HP-1})")
        A(f"buffer_load_dwordx4 {v4(W1r+4*i)}, v45, s[60:63], s64 offen {WF}")
    A(f"""
    s_lshl_b32 s8, s76, 6
    s_lshl_b32 s9, s71, 4
    s_add_u32 s8, s8, s9
    s_mul_i32 s8, s8, 1280
    s_add_u32 s8, s8, s65
    s_add_u32 s60, s32, s8
    s_addc_u32 s61, s33, 0
    s_and_b32 s61, s61, 0xffff
    s_sub_u32 s62, {1728*1280}, s8
    s_mov_b32 s63, 0x20000
    v_mul_u32_u24 v46, 2560, v{vG}
    v_lshlrev_b32 v47, 4, v{vC}
    v_add_u32 v46, v46, v47
    v_mov_b32 v47, 0x7ff00000
    v_cmp_gt_u32 vcc, s69, v{vC}
    v_cndmask_b32 v46, v47, v46, vcc
    """)
    for ts in range(4):
        A(f"s_mov_b32 s64, {(8*(ts>>1)+(ts&1))*1280}")
        if HP: A(f"s_waitcnt vmcnt({HP-1})")
        A(f"buffer_load_dwordx4 {v4(W2r+4*ts)}, v46, s[60:63], s64 offen {WF}")
    A("L_nobulk:")
    A("s_waitcnt vmcnt(0)")
    if WOM == "reg" and HST != 1:
        A(f"""
        s_lshl_b32 s9, s71, 13
        s_add_u32 s9, s9, {WOL}
        v_lshlrev_b32 v45, 4, v1
        v_add_u32 v45, s9, v45
        """)
        for i in range(8): A(f"ds_write_b128 v45, {v4(192+4*i)} offset:{1024*i}")
    A(f"""
    v_mul_u32_u24 v44, 20, v1
    s_mul_i32 s8, s71, 1280
    s_add_u32 s8, s8, {XL}
    v_add_u32 v45, s8, v44
    v_add_u32 v44, {GWL}, v44
    ds_read2_b32 v[36:37], v45 offset0:0 offset1:1
    ds_read2_b32 v[38:39], v45 offset0:2 offset1:3
    ds_read_b32 v40, v45 offset:16
    ds_read2_b32 v[48:49], v44 offset0:0 offset1:1
    ds_read2_b32 v[50:51], v44 offset0:2 offset1:3
    ds_read_b32 v52, v44 offset:16
    s_waitcnt lgkmcnt(0)
    """)
    A("v_dot2_f32_bf16 v33, v36, v48, 0")
    for t in range(1, 5): A(f"v_dot2_f32_bf16 v33, v{36+t}, v{48+t}, v33")
    wavereduce("v_add_f32", 33)
    A(f"""
    v_mul_f32 v33, {f2u(-LOG2E):#x}, v33
    v_exp_f32 v33, v33
    v_add_f32 v33, 1.0, v33
    v_rcp_f32 v33, v33
    v_sub_f32 v32, 1.0, v33
    s_setprio {int(opt.get("fp", 3))}
    """)
    hbarrier(3, 2)
    stamp(4)
    if HST in (1, 2): idle_end()
    A("s_cmp_eq_u32 s75, 1"); A("s_cbranch_scc0 L_noffn")
    for b in range(4): A(f"v_add_u32 v{100+16+b}, {XL + 1280*b}, v41")
    for b in range(4):
        A(f"ds_read2_b32 v[{XQ+6*b}:{XQ+6*b+1}], v{116+b} offset0:0 offset1:1")
        A(f"ds_read2_b32 v[{XQ+6*b+2}:{XQ+6*b+3}], v{116+b} offset0:2 offset1:3")
        A(f"ds_read_b32 v{XQ+6*b+4}, v{116+b} offset:16")
    A("s_waitcnt lgkmcnt(0)")
    DF = [4, 48, 52, 80]
    n = 0
    for i in range(5):
        for b in range(4):
            aset = 8 + 4 * (n & 1)
            for r in range(4): A(f"v_perm_b32 v{aset+r}, v{xq(b,i)}, v{xq(b,i)}, v{SELX+r}")
            mfma(DF[b], aset, W1r + 4*i, "0" if i == 0 else v4(DF[b]))
            n += 1
    A(f"""
    s_lshl_b32 s8, s71, 11
    v_lshrrev_b32 v45, 1, v{vG}
    v_lshlrev_b32 v45, 8, v45
    v_and_b32 v46, 7, v{vC}
    v_lshlrev_b32 v46, 5, v46
    v_add_u32 v45, v45, v46
    v_and_b32 v46, 1, v{vG}
    v_lshlrev_b32 v46, 4, v46
    v_add_u32 v45, v45, v46
    v_add_u32 v45, s8, v45
    s_mov_b32 exec_lo, 0x00ff00ff
    s_mov_b32 exec_hi, 0xff00ff00
    """)
    for b in range(4): A(f"ds_write_b128 v45, {v4(DF[b])} offset:{GP+512*b}")
    A("s_mov_b64 exec, -1")
    hbarrier(4)
    A(f"""
    s_lshl_b32 s8, s71, 9
    v_lshlrev_b32 v45, 4, v{vC}
    v_add_u32 v45, s8, v45
    """)
    for w in range(4):
        for rho in range(2): A(f"ds_read_b128 {v4(56+8*w+4*rho)}, v45 offset:{GP+w*2048+rho*256}")
    A(f"""
    s_lshl_b32 s10, s76, 3
    s_add_u32 s10, s10, s77
    s_lshl_b32 s10, s10, 2
    s_add_u32 s10, s10, s71
    s_lshl_b32 s10, s10, 8
    s_add_u32 s10, s10, {FX}
    v_lshlrev_b32 v46, 4, v{vC}
    v_add_u32 v46, s10, v46
    s_waitcnt lgkmcnt(0)
    """)
    sum_quads([56+4*k for k in range(8)])
    tag4(56)
    A(f"""
    s_mov_b64 exec, 0xffff
    global_store_dwordx4 v46, v[56:59], s[40:41] sc1
    s_mov_b64 exec, -1
    s_lshl_b32 s10, s76, 5
    s_add_u32 s10, s10, s71
    s_lshl_b32 s10, s10, 8
    s_add_u32 s10, s10, {FX}
    v_lshlrev_b32 v46, 11, v{vG}
    v_lshlrev_b32 v47, 4, v{vC}
    v_add_u32 v46, v46, v47
    v_add_u32 v46, s10, v46
    s_mov_b32 s73, {SPIN}
    s_sleep {FSL}
    L_fpoll:
    global_load_dwordx4 v[60:63], v46, s[40:41] offset:1024 sc1
    global_load_dwordx4 v[56:59], v46, s[40:41] sc1
    s_waitcnt vmcnt(0)
    """)
    chk4([56, 60], "L_fok")
    A(f"""
    s_sleep {FSL}
    s_sub_u32 s73, s73, 1
    s_cbranch_scc0 L_fpoll
    L_fok:
    """)
    rows_reduce(range(56, 64))
    for k in range(4): A(f"v_mul_f32 v{64+k}, {f2u(-LOG2E):#x}, v{56+k}")
    for k in range(4): A(f"v_exp_f32 v{64+k}, v{64+k}")
    for k in range(4): A(f"v_add_f32 v{64+k}, 1.0, v{64+k}")
    for k in range(4): A(f"v_rcp_f32 v{64+k}, v{64+k}")
    for k in range(4): A(f"v_mul_f32 v{56+k}, v{56+k}, v{64+k}")
    for k in range(4): A(f"v_mul_f32 v{56+k}, v{56+k}, v{60+k}")
    A(f"""
    v_cvt_pk_bf16_f32 v56, v56, v57
    v_cvt_pk_bf16_f32 v57, v58, v59
    s_lshl_b32 s8, s71, 7
    v_lshlrev_b32 v45, 3, v{vC}
    v_add_u32 v45, s8, v45
    s_mov_b64 exec, 0xffff
    ds_write_b64 v45, v[56:57] offset:{HB}
    s_mov_b64 exec, -1
    """)
    hbarrier(5)
    A(f"""
    v_lshrrev_b32 v45, 3, v{vC}
    v_lshlrev_b32 v45, 7, v45
    v_lshlrev_b32 v46, 2, v{vG}
    v_add_u32 v45, v45, v46
    s_lshl_b32 s8, s71, 5
    v_add_u32 v45, s8, v45
    ds_read_b32 v56, v45 offset:{HB}
    ds_read_b32 v57, v45 offset:{HB+16}
    ds_read_b32 v58, v45 offset:{HB+256}
    ds_read_b32 v59, v45 offset:{HB+256+16}
    s_waitcnt lgkmcnt(0)
    """)
    D2 = [4, 52]
    n = 0
    for ts in range(4):
        for p in range(2):
            aset = 8 + 4 * (n & 1)
            perms(56 + 2*p + (ts >> 1), ts & 1, aset)
            mfma(D2[p], aset, W2r + 4*ts, "0" if ts == 0 else v4(D2[p]))
            n += 1
    A(f"""
    s_lshl_b32 s8, s71, 11
    s_add_u32 s8, s8, {YP2}
    v_lshlrev_b32 v45, 4, v1
    v_add_u32 v45, s8, v45
    ds_write_b128 v45, {v4(D2[0])}
    ds_write_b128 v45, {v4(D2[1])} offset:1024
    """)
    hbarrier(6)
    A(f"""
    s_lshr_b32 s8, s71, 1
    s_lshl_b32 s8, s8, 10
    s_and_b32 s9, s71, 1
    s_lshl_b32 s9, s9, 9
    s_add_u32 s8, s8, s9
    s_add_u32 s8, s8, {YP2}
    v_and_b32 v45, 1, v1
    v_lshlrev_b32 v45, 8, v45
    v_bfe_u32 v46, v1, 1, 4
    v_lshlrev_b32 v46, 4, v46
    v_add_u32 v45, v45, v46
    v_add_u32 v45, s8, v45
    """)
    for w in range(4): A(f"ds_read_b128 {v4(56+4*w)}, v45 offset:{w*2048}")
    A(f"""
    s_lshl_b32 s10, s77, 2
    s_add_u32 s10, s10, s71
    s_mul_i32 s10, s10, 27
    s_add_u32 s10, s10, s76
    s_lshl_b32 s10, s10, 9
    s_add_u32 s10, s10, {FY}
    v_lshlrev_b32 v46, 4, v1
    v_add_u32 v46, s10, v46
    s_waitcnt lgkmcnt(0)
    """)
    sum_quads([56, 60, 64, 68])
    for k in range(4): A(f"v_mul_f32 v{56+k}, v{56+k}, v32")
    tag4(56)
    A(f"""
    s_mov_b32 exec_lo, s70
    s_mov_b32 exec_hi, 0
    global_store_dwordx4 v46, v[56:59], s[40:41] sc1
    s_mov_b64 exec, -1
    """)
    A("L_noffn:")
    stamp(5)
    if opt.get("lowprio"): A("s_setprio 0")
    WOr = 128
    A(f"""
    v_lshlrev_b32 v45, 4, v1
    v_add_u32 v45, {WOL}, v45
    """)
    for i in range(32):
        A(f"ds_read_b128 {v4(WOr+4*i)}, v45 offset:{1024*i}")
        if i % 8 == 7: A("s_waitcnt lgkmcnt(0)")
    A(f"""
    s_bfe_u32 s9, s2, 0x20003
    s_lshl_b32 s9, s9, 1
    s_add_u32 s9, s9, 1
    s_and_b32 s8, s2, 7
    s_cmp_eq_u32 s8, s9
    s_cselect_b32 s75, 1, 0
    s_lshr_b32 s76, s2, 5
    s_bfe_u32 s77, s2, 0x20003
    """)
    blk("s76", "s65", "s69", "s70")
    FSUM = 36
    M20 = 0x000fffff000fffff
    A("s_cmp_eq_u32 s75, 1"); A("s_cbranch_scc0 L_nocol")
    if not opt.get("noffn") :
        A(f"""
        s_lshl_b32 s8, s76, 2
        s_add_u32 s8, s8, s77
        s_mul_i32 s8, s8, 27
        s_add_u32 s8, s8, s71
        s_lshl_b32 s8, s8, 9
        s_add_u32 s8, s8, {FY}
        v_lshrrev_b32 v46, 5, v1
        v_lshlrev_b32 v46, 11, v46
        v_and_b32 v47, 31, v1
        v_lshlrev_b32 v47, 4, v47
        v_add_u32 v46, v46, v47
        v_add_u32 v46, s8, v46
        s_mov_b32 s73, {SPIN}
        L_cpoll:
        v_mov_b32 v48, v46
        """)
        for k in range(4):
            if k < 3: A(f"s_mov_b32 exec_lo, s70"); A("s_mov_b32 exec_hi, s70")
            else:
                A("s_cmp_lt_u32 s71, 3"); A("s_cbranch_scc0 L_cskip"); A("s_mov_b32 exec_lo, s70"); A("s_mov_b32 exec_hi, 0")
            A(f"global_load_dwordx4 {v4(56+4*k)}, v48, s[40:41] sc1")
            A("s_mov_b64 exec, -1")
            if k == 3: A("L_cskip:")
            if k < 3: A(f"v_add_u32 v48, {8*512}, v48")
        A("s_waitcnt vmcnt(0)")
        A(f"""
        v_and_b32 v44, 31, v1
        s_lshl_b32 s8, s69, 1
        v_cmp_le_u32 vcc, s8, v44
        """)
        for k in range(4):
            for r in range(4): A(f"v_cndmask_b32 v{56+4*k+r}, v{56+4*k+r}, v{TG+r}, vcc")
        A(f"""
        s_cmp_lt_u32 s71, 3
        s_cselect_b32 s8, 0xffffffff, 0
        s_mov_b32 s9, 0
        s_not_b64 vcc, s[8:9]
        """)
        for r in range(4): A(f"v_cndmask_b32 v{68+r}, v{68+r}, v{TG+r}, vcc")
        chk4([56, 60, 64, 68], "L_cok")
        A(f"""
        s_sleep 64
        s_sub_u32 s73, s73, 1
        s_cbranch_scc0 L_cpoll
        L_cok:
        """)
        sum_quads([56, 60, 64, 68])
        for r in range(4): A(f"v_mov_b32 v{60+r}, v{56+r}")
        for r in range(4): A(f"v_permlane32_swap_b32 v{56+r}, v{60+r}")
        for r in range(4): A(f"v_add_f32 v{56+r}, v{56+r}, v{60+r}")
        A(f"""
        s_lshl_b32 s8, s71, 9
        v_lshlrev_b32 v45, 4, v1
        v_add_u32 v45, s8, v45
        s_mov_b32 exec_hi, 0
        ds_write_b128 v45, v[56:59] offset:{FS}
        s_mov_b32 exec_hi, -1
        """)
        hbarrier(4)
        A(f"v_lshlrev_b32 v45, 4, v1")
        A("s_mov_b32 exec_hi, 0")
        for w in range(4): A(f"ds_read_b128 {v4(56+4*w)}, v45 offset:{FS+512*w}")
        A("s_mov_b32 exec_hi, -1")
        A("s_waitcnt lgkmcnt(0)")
        sum_quads([56, 60, 64, 68])
        for r in range(4): A(f"v_mov_b32 v{FSUM+r}, v{56+r}")
    else:
        for r in range(4): A(f"v_mov_b32 v{FSUM+r}, 0")
    A("L_nocol:")
    if CTL:
        A("s_cmp_eq_u32 s71, 1"); A("s_cbranch_scc0 L_noctl")
        A(f"""
        s_lshl_b32 s8, s2, 7
        s_add_u32 s8, s8, {PF}
        v_mov_b32 v46, s8
        v_add_u32 v47, 1, v1
        v_xor_b32 v47, s2, v47
        v_lshlrev_b32 v47, 7, v47
        v_add_u32 v47, {PF}, v47
        v_mov_b32 v44, 0
        v_mov_b32 v48, s74
        s_mov_b32 s11, 0
        L_ctl:
        s_mov_b64 exec, 1
        s_add_u32 s11, s11, 1
        s_lshl_b32 s9, s11, 2
        s_sub_u32 s9, s9, {int(opt.get("ckq", 1))}
        s_mov_b32 s73, {SPIN}
        L_ctl_w:
        ds_read_b32 v45, v44 offset:{CKC}
        s_waitcnt lgkmcnt(0)
        v_readfirstlane_b32 s8, v45
        s_cmp_ge_u32 s8, s9
        s_cbranch_scc1 L_ctl_go
        s_sleep 4
        s_sub_u32 s73, s73, 1
        s_cbranch_scc0 L_ctl_w
        L_ctl_go:
        global_store_dword v46, v48, s[40:41] sc1
        s_mov_b64 exec, {CMASK:#x}
        global_load_dword v45, v47, s[40:41] sc1
        s_waitcnt vmcnt(0)
        v_cmp_eq_u32 vcc, s74, v45
        s_bcnt1_i32_b64 s8, vcc
        s_cmp_ge_u32 s8, {CT2 if L3 else 99}
        s_cselect_b32 s9, 1, 0
        s_cmp_ge_u32 s8, {CTHR}
        s_cselect_b32 s8, 1, 0
        s_add_u32 s8, s8, s9
        s_mov_b64 exec, -1
        v_mov_b32 v45, s8
        ds_write_b32 v44, v45 offset:{MODE}
        v_add_u32 v46, 4, v46
        v_add_u32 v47, 4, v47
        s_cmp_lt_u32 s11, {len(CKS)}
        s_cbranch_scc1 L_ctl
        s_mov_b64 exec, -1
        s_branch L_B2
        L_noctl:
        """)
    lds_spin(CNTK, "ge", 8, 4)
    A("s_cmp_eq_u32 s71, 0"); A("s_cbranch_scc0 L_nostat")
    A(f"""
    v_and_b32 v44, 3, v1
    v_lshlrev_b32 v44, 3, v44
    ds_read_b64 v[46:47], v44 offset:{ST}
    s_waitcnt lgkmcnt(0)
    v_mov_b32 v48, v46
    v_max_f32_dpp v48, v48, v48 quad_perm:[2,3,0,1] row_mask:0xf bank_mask:0xf
    v_max_f32_dpp v48, v48, v48 quad_perm:[1,0,3,2] row_mask:0xf bank_mask:0xf
    v_sub_f32 v49, v46, v48
    v_exp_f32 v49, v49
    v_mul_f32 v49, v49, v47
    v_add_f32_dpp v49, v49, v49 quad_perm:[2,3,0,1] row_mask:0xf bank_mask:0xf
    v_add_f32_dpp v49, v49, v49 quad_perm:[1,0,3,2] row_mask:0xf bank_mask:0xf
    s_lshl_b32 s8, s2, 7
    s_add_u32 s8, s8, {SX}
    v_mov_b32 v44, s8
    v_mov_b32 v56, v48
    v_mov_b32 v57, s74
    v_mov_b32 v58, v49
    v_mov_b32 v59, s74
    s_mov_b64 exec, 1
    global_store_dwordx4 v44, v[56:59], s[40:41] sc1
    s_xor_b32 s8, s2, {PX_}
    s_lshl_b32 s8, s8, 7
    s_add_u32 s8, s8, {SX}
    v_mov_b32 v44, s8
    s_mov_b32 s73, {SPIN}
    L_pspin:
    global_load_dwordx4 v[60:63], v44, s[40:41] sc1
    s_waitcnt vmcnt(0)
    """)
    check_tags([61, 63], "L_pok")
    A(f"""
    s_sleep 32
    s_sub_u32 s73, s73, 1
    s_cbranch_scc0 L_pspin
    L_pok:
    v_readfirstlane_b32 s8, v60
    v_readfirstlane_b32 s9, v62
    s_mov_b64 exec, -1
    v_mov_b32 v60, s8
    v_mov_b32 v62, s9
    v_max_f32 v52, v48, v60
    v_sub_f32 v53, v48, v52
    v_sub_f32 v54, v60, v52
    v_exp_f32 v53, v53
    v_exp_f32 v54, v54
    v_mul_f32 v53, v53, v49
    v_fma_f32 v53, v54, v62, v53
    v_rcp_f32 v53, v53
    v_sub_f32 v54, v46, v52
    v_exp_f32 v54, v54
    v_mul_f32 v54, v54, v53
    v_and_b32 v44, 3, v1
    v_lshlrev_b32 v44, 2, v44
    v_mov_b32 v45, 1
    v_mov_b32 v55, 0
    s_mov_b64 exec, 15
    ds_write_b32 v44, v54 offset:{SCALE}
    s_mov_b64 exec, 1
    ds_write_b32 v55, v45 offset:{SCRDY}
    s_mov_b64 exec, -1
    L_nostat:
    """)
    A("L_B2:")
    if opt.get("lowprio"): A("s_setprio 3")
    if HST == 3: A("s_waitcnt lgkmcnt(0)"); A("s_barrier"); A("s_branch L_hend")
    A(f"""
    s_lshl_b32 s10, s71, 6
    s_lshl_b32 s9, s4, 1
    s_add_u32 s10, s10, s9
    s_lshl_b32 s10, s10, 9
    s_add_u32 s10, s10, {OX}
    v_lshlrev_b32 v46, 4, v1
    v_add_u32 v46, s10, v46
    v_lshlrev_b32 v49, 9, v1
    v_add_u32 v49, s10, v49
    v_and_b32 v47, 1, v1
    v_lshlrev_b32 v47, 7, v47
    v_bfe_u32 v48, v1, 1, 4
    v_lshlrev_b32 v48, 2, v48
    v_add_u32 v47, v47, v48
    s_lshl_b32 s8, s71, 8
    v_add_u32 v47, s8, v47
    v_add_u32 v47, {OB}, v47
    v_lshlrev_b32 v48, 6, v{vG}
    v_add_u32 v48, s8, v48
    v_lshlrev_b32 v41, 5, v{vC}
    v_lshlrev_b32 v42, 4, v{vG}
    v_add_u32 v41, v41, v42
    s_lshl_b32 s8, s71, 9
    v_add_u32 v41, s8, v41
    v_lshlrev_b32 v42, 4, v1
    v_add_u32 v42, s8, v42
    s_lshl_b32 s10, s72, 2
    s_add_u32 s10, s10, s71
    s_lshl_b32 s10, s10, 5
    s_add_u32 s10, s10, s4
    s_lshl_b32 s10, s10, 9
    s_add_u32 s10, s10, {YX}
    v_lshlrev_b32 v43, 4, v1
    v_add_u32 v43, s10, v43
    s_waitcnt lgkmcnt(0)
    s_barrier
    """)
    stamp(6)
    if DUAL:
        A(f"""
        v_add_u32 v49, {(OXA - OX) & 0xffffffff:#x}, v46
        s_mov_b32 s73, {SPIN}
        L_opoll:
        global_load_dwordx4 v[56:59], v49, s[40:41] sc1
        s_waitcnt vmcnt(0)
        """)
        chk4([56], "L_ook")
        A(f"""
        s_and_b32 s8, s73, 3
        s_cmp_eq_u32 s8, 0
        s_cbranch_scc0 L_onext
        global_load_dwordx4 v[56:59], v46, s[40:41] sc1
        s_waitcnt vmcnt(0)
        """)
        chk4([56], "L_ook")
        A(f"""
        L_onext:
        s_sub_u32 s73, s73, 1
        s_cbranch_scc0 L_opoll
        L_ook:
        """)
    else:
        A(f"""
        s_mov_b32 s73, {SPIN}
        L_opoll:
        global_load_dwordx4 v[56:59], v46, s[40:41] sc1
        s_waitcnt vmcnt(0)
        """)
        chk4([56], "L_ook")
        A(f"""
        s_sleep {OSL}
        s_sub_u32 s73, s73, 1
        s_cbranch_scc0 L_opoll
        L_ook:
        """)
    for r in range(4): A(f"v_mov_b32 v{60+r}, v{56+r}")
    for r in range(4): A(f"v_permlane32_swap_b32 v{56+r}, v{60+r}")
    for r in range(4): A(f"v_add_f32 v{56+r}, v{56+r}, v{60+r}")
    A(f"""
    v_cvt_pk_bf16_f32 v56, v56, v57
    v_cvt_pk_bf16_f32 v57, v58, v59
    s_mov_b32 exec_hi, 0
    ds_write2_b32 v47, v56, v57 offset0:{0} offset1:{16}
    s_mov_b32 exec_hi, -1
    s_waitcnt lgkmcnt(0)
    """.replace("v47, v56, v57 offset0:0 offset1:16", "v47, v56, v57 offset0:0 offset1:16"))
    XO = 64
    for k in range(4): A(f"ds_read_b128 {v4(XO+4*k)}, v48 offset:{OB+16*k}")
    A("s_waitcnt lgkmcnt(0)")
    stamp(7)
    perms(XO, 0, 8)
    for i in range(32):
        if i + 1 < 32: perms(XO + (i+1)//2, (i+1) & 1, 8 + 4*((i+1) & 1))
        mfma(4, 8 + 4*(i & 1), WOr + 4*i, "0" if i == 0 else "v[4:7]")
    A(f"""
    s_mov_b32 exec_hi, 0
    ds_write_b128 v41, v[4:7] offset:{YS}
    s_waitcnt lgkmcnt(0)
    ds_read_b128 v[56:59], v42 offset:{YS}
    s_waitcnt lgkmcnt(0)
    """)
    for k in range(4): A(f"v_mul_f32 v{56+k}, v{56+k}, v33")
    tag4(56)
    A(f"""
    s_mov_b32 exec_lo, s68
    s_mov_b32 exec_hi, 0
    global_store_dwordx4 v43, v[56:59], s[40:41] sc1
    s_mov_b64 exec, -1
    {"s_branch L_hend" if HST == 4 else ""}
    s_cmp_eq_u32 s75, 1
    s_cbranch_scc0 L_hend
    s_lshl_b32 s10, s76, 2
    s_add_u32 s10, s10, s77
    s_lshl_b32 s10, s10, 5
    s_lshl_b32 s9, s71, 3
    s_add_u32 s10, s10, s9
    s_lshl_b32 s10, s10, 9
    s_add_u32 s10, s10, {YX}
    v_lshrrev_b32 v46, 5, v1
    v_lshlrev_b32 v46, 9, v46
    v_and_b32 v47, 31, v1
    v_lshlrev_b32 v47, 4, v47
    v_add_u32 v46, v46, v47
    v_add_u32 v46, s10, v46
    v_add_u32 v47, 2048, v46
    """)
    ya = [(46, 0), (46, 1024), (47, 0), (47, 1024)]
    A(f"""
    s_mov_b32 s73, {SPIN}
    s_mov_b32 s52, s70
    s_mov_b32 s53, s70
    s_mov_b64 s[54:55], s[52:53]
    s_mov_b64 s[56:57], s[52:53]
    s_mov_b64 s[58:59], s[52:53]
    s_mov_b32 s12, 0x0c0c0400
    s_mov_b32 s13, 0x04000c0c
    L_ypoll:
    """)
    for q, (ar, off) in enumerate(ya):
        A(f"s_mov_b64 exec, s[{52+2*q}:{53+2*q}]")
        A(f"s_cbranch_execz L_ysk{q}")
        A(f"global_load_dwordx4 {v4(56+4*q)}, v{ar}, s[40:41] offset:{off} sc1")
        A(f"L_ysk{q}:")
    A("s_mov_b32 exec_lo, s70"); A("s_mov_b32 exec_hi, s70")
    A("s_waitcnt vmcnt(0)")
    for q in range(4):
        d = 56 + 4*q
        A(f"v_perm_b32 v44, v{d+1}, v{d}, s12")
        A(f"v_perm_b32 v45, v{d+3}, v{d+2}, s13")
        A(f"v_or_b32 v44, v44, v45")
        A(f"v_cmp_ne_u32 s[{52+2*q}:{53+2*q}], s74, v44")
    A(f"""
    s_or_b64 s[8:9], s[52:53], s[54:55]
    s_or_b64 s[10:11], s[56:57], s[58:59]
    s_or_b64 s[8:9], s[8:9], s[10:11]
    s_cbranch_scc0 L_yok
    s_sleep {int(opt.get("ysl", 1))}
    s_sub_u32 s73, s73, 1
    s_cbranch_scc0 L_ypoll
    L_yok:
    s_mov_b64 exec, -1
    """)
    sum_quads([56, 60, 64, 68])
    for r in range(4): A(f"v_mov_b32 v{60+r}, v{56+r}")
    for r in range(4): A(f"v_permlane32_swap_b32 v{56+r}, v{60+r}")
    for r in range(4): A(f"v_add_f32 v{56+r}, v{56+r}, v{60+r}")
    A(f"""
    s_lshl_b32 s8, s71, 9
    v_lshlrev_b32 v45, 4, v1
    v_add_u32 v45, s8, v45
    s_mov_b32 exec_hi, 0
    ds_write_b128 v45, v[56:59] offset:{FS}
    s_mov_b32 exec_hi, -1
    s_waitcnt lgkmcnt(0)
    s_barrier
    s_cmp_eq_u32 s71, 0
    s_cbranch_scc0 L_hend
    v_lshlrev_b32 v45, 4, v1
    s_mov_b32 exec_lo, s70
    s_mov_b32 exec_hi, 0
    """)
    for w in range(4): A(f"ds_read_b128 {v4(56+4*w)}, v45 offset:{FS+512*w}")
    A(f"""
    s_mul_i32 s8, s77, 1280
    s_add_u32 s8, s8, s65
    v_lshlrev_b32 v44, 3, v1
    v_add_u32 v44, s8, v44
    s_waitcnt lgkmcnt(0)
    """)
    sum_quads([56, 60, 64, 68])
    for k in (0, 2): pk(56+k, 56+k, FSUM+k)
    A(f"""
    v_cvt_pk_bf16_f32 v56, v56, v57
    v_cvt_pk_bf16_f32 v57, v58, v59
    global_store_dwordx2 v44, v[56:57], s[36:37] {opt.get("outf", "")}
    s_mov_b64 exec, -1
    """)
    A("L_hend:")
    stamp(8)
    store_stamps(9)
    A("L_end:")
    A("s_endpgm")
    body = A.finalize()
    body += f""".section .rodata,"a"
.p2align 6
.amdhsa_kernel {NAME}_kernel
  .amdhsa_next_free_vgpr 256
  .amdhsa_next_free_sgpr 102
  .amdhsa_accum_offset 256
  .amdhsa_group_segment_fixed_size 0
  .amdhsa_kernarg_size 104
  .amdhsa_user_sgpr_count 2
  .amdhsa_user_sgpr_kernarg_segment_ptr 1
  .amdhsa_system_sgpr_workgroup_id_x 1
.end_amdhsa_kernel
"""
    return body

if __name__ == "__main__":
    out = sys.argv[1] if len(sys.argv) > 1 else f"cdna_kernels/{NAME}.s"
    opt = {}
    for a in sys.argv[2:]:
        k, v = a.split("=")
        opt[k] = {"1": True, "0": False}.get(v, v) if k in ("stamps", "fine", "noffn") else v
    open(out, "w").write(gen(opt))
    print("wrote", out)
```

```python
import sys, struct
sys.path.insert(0, "gen")
from asmb import Asm
NAME = "gated_mix__mha_block_cached__swiglu_ffn__decode"
def f2u(x): return struct.unpack("<I", struct.pack("<f", x))[0]
LOG2E = 1.4426950408889634
CSC = LOG2E / (128 ** 0.5)
CNTK = 0; CNTH = 4; SCRDY = 8; QRDY = 12; CKC = 16; MODE = 20; NONCE = 32
ST = 40; SCALE = 72
QB = 128; HB = 512; OB = 1024; YS = 2048; OP = 4096; FS = 6144
GP = 8192; WOL = 16384; YP2 = 49152
XL = 49152 + 16384
GWL = XL + 5120
LDS_BYTES = GWL + 1280
SX = 0; QX = 0x10000; FX = 0x50000; OX = 0xE0000; YX = 0x100000; OXA = 0xA0000; FY = 0x180000; PF = 0x8000
NFFN = 108; FFN0 = 20
SPIN = 200000
class VMQ:
    def __init__(self, A): self.q = []; self.A = A
    def issue(self, tag):
        self.q.append(tag); assert len(self.q) <= 63, len(self.q)
    def pace(self, depth):
        if depth and len(self.q) >= depth:
            self.A(f"s_waitcnt vmcnt({depth-1})"); self.q = self.q[len(self.q) - (depth - 1):] if depth > 1 else []
    def wait(self, tag):
        if tag not in self.q: return
        idx = self.q.index(tag); n = len(self.q) - 1 - idx
        self.A(f"s_waitcnt vmcnt({n})"); self.q = self.q[idx + 1:]

def gen(opt=None):
    opt = opt or {}
    KVF = opt.get("kvflags", "nt"); WF = opt.get("wflags", "nt")
    stamps = opt.get("stamps", False); FINE = opt.get("fine", False)
    NSLEEP = int(opt.get("nsleep", 10)); QSLEEP = int(opt.get("qsleep", 16))
    WK = int(opt.get("wk", 32)); WV = int(opt.get("wv", 48))
    BP = int(opt.get("bp", 2))
    FSTOP = int(opt.get("fstop", 0))
    OSL = int(opt.get("osl", 1)); FSL = int(opt.get("fsl", 48))
    A = Asm()
    A(f"; @launch grid=(256,1,1) block=(512,1,1) lds={LDS_BYTES}")
    A('.amdgcn_target "amdgcn-amd-amdhsa--gfx950"')
    A(".text"); A(f".globl {NAME}_kernel"); A(".p2align 8"); A(f".type {NAME}_kernel,@function"); A(f"{NAME}_kernel:")
    vG, vC = 34, 35
    SELL, SELH = 16, 20
    M = 36; Q = 40
    uid = [0]
    def U(): uid[0] += 1; return uid[0]
    def v4(r): return f"v[{r}:{r+3}]"
    def stamp(i):
        if stamps: A(f"s_memrealtime s[{80+2*i}:{81+2*i}]")
    def store_stamps(n):
        if not stamps: return
        A("""
        s_waitcnt lgkmcnt(0)
        s_lshl_b32 s8, s2, 10
        s_lshl_b32 s9, s3, 7
        s_add_u32 s8, s8, s9
        s_add_u32 s8, s8, 0x2000000
        v_mov_b32 v44, s8
        s_mov_b64 exec, 1
        """)
        for i in range(n):
            A(f"v_mov_b32 v45, s{80+2*i}"); A(f"global_store_dword v44, v45, s[40:41] offset:{4*i}"); A("s_nop 0")
        A("s_getreg_b32 s9, hwreg(HW_REG_XCC_ID)"); A("v_mov_b32 v45, s9"); A("global_store_dword v44, v45, s[40:41] offset:120")
        A("s_mov_b64 exec, -1")
    def lds_spin(off, cond, sleep, val=None):
        t = U()
        A(f"""
        v_mov_b32 v44, 0
        s_mov_b32 s73, {SPIN}
        L_sp{t}:
        ds_read_b32 v45, v44 offset:{off}
        s_waitcnt lgkmcnt(0)
        v_readfirstlane_b32 s8, v45
        """)
        if cond == "nz": A("s_cmp_lg_u32 s8, 0")
        else: A(f"s_cmp_ge_u32 s8, {val}")
        A(f"""
        s_cbranch_scc1 L_sp{t}_ok
        s_sleep {sleep}
        s_sub_u32 s73, s73, 1
        s_cbranch_scc0 L_sp{t}
        L_sp{t}_ok:
        """)
    def hbarrier(n, sleep=1):
        A(f"""
        s_waitcnt lgkmcnt(0)
        v_mov_b32 v44, 0
        v_mov_b32 v45, 1
        s_mov_b64 exec, 1
        ds_add_u32 v44, v45 offset:{CNTH}
        s_mov_b64 exec, -1
        """)
        lds_spin(CNTH, "ge", sleep, 4 * n)
    def perms(xreg, hi, aset):
        sel = SELH if hi else SELL
        for r in range(4): A(f"v_perm_b32 v{aset+r}, v{xreg}, v{xreg}, v{sel+r}")
    def pk(d, a, b): A(f"v_pk_add_f32 v[{d}:{d+1}], v[{a}:{a+1}], v[{b}:{b+1}]")
    def mfma(d, a, b, c): A(f"v_mfma_f32_16x16x32_bf16 {v4(d)}, {v4(a)}, {v4(b)}, {c}")
    def rowreduce(op, reg):
        A(f"{op}_dpp v{reg}, v{reg}, v{reg} row_ror:8 row_mask:0xf bank_mask:0xf")
        A(f"{op}_dpp v{reg}, v{reg}, v{reg} row_ror:4 row_mask:0xf bank_mask:0xf")
        A(f"{op}_dpp v{reg}, v{reg}, v{reg} quad_perm:[2,3,0,1] row_mask:0xf bank_mask:0xf")
        A(f"{op}_dpp v{reg}, v{reg}, v{reg} quad_perm:[1,0,3,2] row_mask:0xf bank_mask:0xf")
    def wavereduce(op, reg):
        rowreduce(op, reg)
        for k in range(4): A(f"v_readlane_b32 s{8+k}, v{reg}, {16*k}")
        A(f"v_mov_b32 v{reg}, s8")
        for k in range(1, 4): A(f"{op} v{reg}, s{8+k}, v{reg}")
    def check_tags(tags, okl):
        A(f"v_cmp_ne_u32 s[78:79], s74, v{tags[0]}")
        for t in tags[1:]:
            A(f"v_cmp_ne_u32 vcc, s74, v{t}")
            A("s_or_b64 s[78:79], s[78:79], vcc")
        A("s_cmp_eq_u64 s[78:79], 0")
        A(f"s_cbranch_scc1 {okl}")
    def blk(sj, soff, snch, smask):
        A(f"""
        s_cmp_ge_u32 {sj}, 1
        s_cselect_b32 {soff}, 1, 0
        s_add_u32 {soff}, {soff}, {sj}
        s_cmp_ge_u32 {sj}, 5
        s_addc_u32 {soff}, {soff}, 0
        s_lshl_b32 {soff}, {soff}, 7
        s_and_b32 {snch}, {sj}, 3
        s_cmp_eq_u32 {snch}, 0
        s_cselect_b32 {snch}, 16, 8
        s_cselect_b32 {smask}, -1, 0xffff
        """)
    TG = 28
    def tag4(d, tg=TG):
        for k in range(4): A(f"v_and_or_b32 v{d+k}, v{d+k}, s75x, v{tg+k}".replace("s75x", "s14"))
    def settags(nonce_v, tg):
        A("s_mov_b32 s14, 0xffffff00")
        A(f"v_and_b32 v{tg}, 0xff, v{nonce_v}")
        for k in range(1, 4): A(f"v_bfe_u32 v{tg+k}, v{nonce_v}, {8*k}, 8")
    def chk4(quads, okl, tmp=44):
        A("s_mov_b32 s12, 0x0c0c0400"); A("s_mov_b32 s13, 0x04000c0c")
        for i, d in enumerate(quads):
            A(f"v_perm_b32 v{tmp}, v{d+1}, v{d}, s12")
            A(f"v_perm_b32 v{tmp+1}, v{d+3}, v{d+2}, s13")
            A(f"v_or_b32 v{tmp}, v{tmp}, v{tmp+1}")
            if i == 0: A(f"v_cmp_ne_u32 s[78:79], s74, v{tmp}")
            else:
                A(f"v_cmp_ne_u32 vcc, s74, v{tmp}"); A("s_or_b64 s[78:79], s[78:79], vcc")
        A("s_cmp_eq_u64 s[78:79], 0"); A(f"s_cbranch_scc1 {okl}")
    def probe(addr_v, mask, sleep):
        t = U()
        A(f"""
        s_mov_b32 s73, {SPIN}
        s_and_b32 s15, s74, 0xff
        s_mov_b64 exec, {mask:#x}
        L_pr{t}:
        global_load_dword v45, v{addr_v}, s[40:41] sc1
        s_waitcnt vmcnt(0)
        v_and_b32 v45, 0xff, v45
        v_cmp_ne_u32 vcc, s15, v45
        s_cmp_eq_u64 vcc, 0
        s_cbranch_scc1 L_pr{t}_ok
        s_sleep {sleep}
        s_sub_u32 s73, s73, 1
        s_cbranch_scc0 L_pr{t}
        L_pr{t}_ok:
        s_mov_b64 exec, -1
        """)

    A("""
    s_cmp_ge_u32 s2, 256
    s_cbranch_scc1 L_end
    s_load_dwordx16 s[16:31], s[0:1], 0
    s_load_dwordx8 s[32:39], s[0:1], 64
    s_load_dwordx2 s[40:41], s[0:1], 96
    """)
    stamp(0)
    if opt.get("delaywg") is not None:
        A(f"s_cmp_eq_u32 s2, {int(opt['delaywg'])}"); A("s_cbranch_scc0 L_nodelay"); A("s_mov_b32 s8, 60")
        A("L_dly:"); A("s_sleep 64"); A("s_sub_u32 s8, s8, 1"); A("s_cbranch_scc0 L_dly"); A("L_nodelay:")
    EB = opt.get("eb", "0") in ("1", True)
    EB_A = "s_barrier" if EB else ""
    DUAL = opt.get("dual", "1") in ("1", True)
    MAP = opt.get("map", "loc")
    if MAP == "loc":
        MAPCODE = """s_and_b32 s4, s2, 31
    s_lshr_b32 s5, s2, 6
    s_bfe_u32 s6, s2, 0x10005
    s_lshl_b32 s7, s5, 5
    s_add_u32 s7, s7, s4"""; PX_ = 32
    else:
        MAPCODE = """s_lshr_b32 s8, s2, 1
    s_xor_b32 s9, s8, s2
    s_and_b32 s9, s9, 1
    s_and_b32 s6, s8, 1
    s_lshr_b32 s8, s2, 2
    s_lshl_b32 s8, s8, 1
    s_add_u32 s7, s8, s9
    s_and_b32 s4, s7, 31
    s_lshr_b32 s5, s7, 5"""; PX_ = 3
    if stamps and opt.get("clk"): A("s_memtime s[100:101]")
    A(f"""
    v_lshrrev_b32 v3, 6, v0
    v_and_b32 v1, 63, v0
    v_readfirstlane_b32 s3, v3
    v_mov_b32 v4, 0
    v_mov_b32 v5, 0
    v_mov_b32 v6, 0
    v_mov_b32 v7, 0
    s_cmp_eq_u32 s3, 4
    s_cbranch_scc0 L_noz
    s_mov_b64 exec, 1
    ds_write_b128 v4, v[4:7] offset:0
    ds_write_b128 v4, v[4:7] offset:16
    s_mov_b64 exec, -1
    {"s_waitcnt lgkmcnt(0)" if EB else ""}
    L_noz:
    {"s_waitcnt lgkmcnt(0)" if False else ""}
    {EB_A}
    {MAPCODE}
    v_lshrrev_b32 v{vG}, 4, v1
    v_and_b32 v{vC}, 15, v1
    s_cmp_ge_u32 s3, 4
    s_cbranch_scc1 L_H
    """)
    A(f"""
    s_lshl_b32 s9, s3, 12
    v_lshlrev_b32 v2, 4, v1
    v_add_u32 v2, s9, v2
    s_lshl_b32 s8, s7, 20
    s_cmp_eq_u32 s6, 0
    s_cselect_b32 s64, 0, {63*16384}
    s_mov_b32 s9, 16384
    s_cselect_b32 s43, s9, {(-16384) & 0xffffffff:#x}
    s_waitcnt lgkmcnt(0)
    s_add_u32 s52, s18, s8
    s_addc_u32 s53, s19, 0
    s_and_b32 s53, s53, 0xffff
    s_mov_b32 s54, 0x100000
    s_mov_b32 s55, 0x20000
    s_add_u32 s56, s20, s8
    s_addc_u32 s57, s21, 0
    s_and_b32 s57, s57, 0xffff
    s_mov_b32 s58, 0x100000
    s_mov_b32 s59, 0x20000
    s_mov_b32 s65, s64
    {"" if EB else "s_barrier"}
    """)
    vq = VMQ(A)
    def slot(sl): return 128 + 4 * sl if sl < 32 else 64 + 4 * (sl - 32)
    def kslot(i): return slot(i % WK)
    DEPTH = int(opt.get("depth", 6))
    CTL = opt.get("ctl", "0") in ("1", True)
    DSH = int(opt.get("dsh", 5))
    CMASK = int(opt.get("cmask", "0x7f"), 0); CTHR = int(opt.get("cthr", 4))
    L3 = opt.get("l3", "0") in ("1", True); DMID = int(opt.get("dmid", 6)); CT2 = int(opt.get("ct2", 5))
    CKS = [int(x) for x in opt.get("cks", "64,96,128,160,192,224").split(",")]
    ctl_on = [False]
    cur_pos = [0]
    POS2 = int(opt.get("pos2", 999)); DSH2 = int(opt.get("dsh2", 4)); DEPTH2 = int(opt.get("depth2", 0))
    DSH_0, DEPTH_0 = DSH, DEPTH
    def pace():
        nonlocal DSH, DEPTH
        if cur_pos[0] >= POS2: DSH, DEPTH = DSH2, DEPTH2
        else: DSH, DEPTH = DSH_0, DEPTH_0
        if not (CTL and ctl_on[0]):
            vq.pace(int(opt.get("d0", DEPTH))); return
        if L3:
            t = U()
            if len(vq.q) >= DSH:
                A("s_cmp_ge_u32 s76, 2"); A(f"s_cbranch_scc1 L_pc{t}")
                if len(vq.q) >= DMID: A(f"s_waitcnt vmcnt({DMID-1})")
                A("s_cmp_ge_u32 s76, 1"); A(f"s_cbranch_scc1 L_pc{t}"); A(f"s_waitcnt vmcnt({DSH-1})"); A(f"L_pc{t}:")
        elif len(vq.q) >= DSH:
            t = U()
            A("s_cmp_lg_u32 s76, 0"); A(f"s_cbranch_scc1 L_pc{t}"); A(f"s_waitcnt vmcnt({DSH-1})"); A(f"L_pc{t}:")
        vq.pace(DEPTH)
    def ctl_step(pos):
        cur_pos[0] = pos
        if not CTL: return
        if pos in CKS:
            A("s_mov_b64 exec, 1"); A(f"ds_add_u32 v17, v19 offset:{CKC}"); A("s_mov_b64 exec, -1")
        if pos >= CKS[0] and pos % 8 == 0:
            A("s_waitcnt lgkmcnt(0)"); A("v_readfirstlane_b32 s76, v18"); A(f"ds_read_b32 v18, v17 offset:{MODE}")
            ctl_on[0] = True
    def kload(i):
        pace()
        if i % 4 == 0 and i > 0: A("s_add_u32 s65, s65, s43")
        A(f"buffer_load_dwordx4 {v4(kslot(i))}, v2, s[52:55], s65 offen offset:{(i%4)*1024} {KVF}")
        vq.issue(("K", i))
    def vslot(v): return slot(v % WV)
    def vload(v):
        pace()
        if v == 0: A("s_mov_b32 s65, s64")
        elif v % 4 == 0: A("s_add_u32 s65, s65, s43")
        A(f"buffer_load_dwordx4 {v4(vslot(v))}, v2, s[56:59], s65 offen offset:{(v%4)*1024} {KVF}")
        vq.issue(("V", v))
    for i in range(WK): kload(i)
    A(f"""
    v_and_b32 v44, 1, v{vC}
    v_cmp_eq_u32 vcc, 1, v44
    v_mov_b32 v45, 0x0000ffff
    v_mov_b32 v46, 0xffff0000
    v_cndmask_b32 v47, v45, v46, vcc
    v_bfe_u32 v44, v{vC}, 1, 2
    v_mov_b32 v46, 0
    """)
    for r in range(4):
        A(f"v_cmp_eq_u32 vcc, {r}, v44")
        A(f"v_cndmask_b32 v{M+r}, v46, v47, vcc")
    A(f"""
    s_mov_b32 s42, {f2u(CSC):#x}
    s_mov_b32 s66, 0xcccccccc
    s_mov_b32 s67, 0xcccccccc
    s_mov_b32 s68, 0xaaaaaaaa
    s_mov_b32 s69, 0xaaaaaaaa
    """)
    A("v_mov_b32 v17, 0"); A("v_mov_b32 v18, 0"); A("v_mov_b32 v19, 1"); A("s_mov_b32 s76, 0")
    lds_spin(QRDY, "nz", 2)
    A(f"""
    v_lshlrev_b32 v46, 4, v{vC}
    ds_read_b128 {v4(Q)}, v46 offset:{QB}
    ds_read_b32 v16, v44 offset:{NONCE}
    s_waitcnt lgkmcnt(0)
    """)
    stamp(1)
    T = 48
    def reduce16(dest):
        for a in range(8):
            A(f"v_add_f32_dpp v{T+a}, v{T+a}, v{T+a} row_ror:8 row_mask:0xf bank_mask:0x3")
            A(f"v_add_f32_dpp v{T+a}, v{T+a+8}, v{T+a+8} row_ror:8 row_mask:0xf bank_mask:0xc")
        for a in range(4):
            A(f"v_add_f32_dpp v{T+a}, v{T+a}, v{T+a} row_half_mirror row_mask:0xf bank_mask:0x5")
            A(f"v_add_f32_dpp v{T+a}, v{T+a+4}, v{T+a+4} row_half_mirror row_mask:0xf bank_mask:0xa")
        for a in range(2):
            A(f"v_cndmask_b32 v{44+2*a}, v{T+a}, v{T+a+2}, s[66:67]")
            A(f"v_cndmask_b32 v{45+2*a}, v{T+a+2}, v{T+a}, s[66:67]")
        for a in range(2):
            A(f"v_add_f32_dpp v{T+a}, v{45+2*a}, v{44+2*a} quad_perm:[2,3,0,1] row_mask:0xf bank_mask:0xf")
        A(f"v_cndmask_b32 v44, v{T}, v{T+1}, s[68:69]")
        A(f"v_cndmask_b32 v45, v{T+1}, v{T}, s[68:69]")
        A(f"v_add_f32_dpp v{dest}, v45, v44 quad_perm:[1,0,3,2] row_mask:0xf bank_mask:0xf")
    SC = 24
    nv = 0
    for j in range(0, 128, 2):
        vq.wait(("K", j + 1))
        for r in range(4 if not opt.get("nodot") else 0):
            for jj in (j, j+1):
                t = T + (jj & 15)
                c = "0" if r == 0 else f"v{t}"
                A(f"v_dot2_f32_bf16 v{t}, v{kslot(jj)+r}, v{Q+r}, {c}")
        for jj in (j, j+1):
            if jj + WK < 128: kload(jj + WK)
            else: vload(nv); nv += 1
        if (j + 1) % 16 == 15 and not opt.get("nodot"): reduce16(SC + (j >> 4))
        ctl_step(j + 2)
        if FINE and (j + 2) % 32 == 0: stamp(1 + (j + 2) // 32)
    if not FINE: stamp(2)
    B = Asm(); _A = A
    sm = []
    class Cap:
        def __call__(self, s):
            for l in s.split("\n"):
                if l.strip(): sm.append(l.strip())
    A = Cap()
    A(f"""
    v_max3_f32 v44, v{SC}, v{SC+1}, v{SC+2}
    v_max3_f32 v44, v44, v{SC+3}, v{SC+4}
    v_max3_f32 v44, v44, v{SC+5}, v{SC+6}
    v_max_f32 v44, v44, v{SC+7}
    """)
    wavereduce("v_max_f32", 44)
    A("v_mul_f32 v46, s42, v44")
    for k in range(8): A(f"v_fma_f32 v{SC+k}, v{SC+k}, s42, -v46")
    for k in range(8): A(f"v_exp_f32 v{SC+k}, v{SC+k}")
    A(f"""
    v_add_f32 v47, v{SC}, v{SC+1}
    v_add_f32 v44, v{SC+2}, v{SC+3}
    v_add_f32 v45, v{SC+4}, v{SC+5}
    v_add_f32 v48, v{SC+6}, v{SC+7}
    v_add_f32 v47, v47, v44
    v_add_f32 v45, v45, v48
    v_add_f32 v47, v47, v45
    """)
    wavereduce("v_add_f32", 47)
    for k in range(8): A(f"v_cvt_pk_bf16_f32 v{SC+k}, v{SC+k}, v{SC+k}")
    A = _A
    extra = WV - nv
    step = max(1, len(sm) // (extra + 1)) if extra > 0 else 0
    for i, l in enumerate(sm):
        A(l)
        if extra > 0 and (i + 1) % step == 0 and nv < WV: vload(nv); nv += 1
    while nv < WV: vload(nv); nv += 1
    A(f"""
    s_lshl_b32 s8, s3, 3
    v_mov_b32 v44, s8
    v_mov_b32 v45, 1
    v_mov_b32 v48, 0
    s_mov_b64 exec, 1
    ds_write_b64 v44, v[46:47] offset:{ST}
    ds_add_u32 v48, v45 offset:{CNTK}
    s_mov_b64 exec, -1
    """)
    for r in range(4): A(f"v_mov_b32 v{4+r}, 0")
    def abuild(v, aset):
        p, jj = SC + (v >> 4), v & 15
        for q in range(4):
            A(f"v_and_b32_dpp v{aset+q}, v{p}, v{M+q} row_newbcast:{jj} row_mask:0xf bank_mask:0xf")
    abuild(0, 8)
    for v in range(128):
        if FINE and v in (32, 64, 96): stamp(5 + v // 32)
        if v == 96:
            lds_spin(SCRDY, "nz", 2)
            A(f"""
            s_lshl_b32 s8, s3, 2
            v_mov_b32 v44, s8
            ds_read_b32 v50, v44 offset:{SCALE}
            v_lshlrev_b32 v60, 5, v{vC}
            v_lshlrev_b32 v61, 4, v{vG}
            v_add_u32 v60, v60, v61
            s_lshl_b32 s8, s3, 9
            v_add_u32 v60, s8, v60
            v_lshlrev_b32 v61, 4, v1
            s_lshl_b32 s8, s7, 1
            s_add_u32 s8, s8, s6
            s_lshl_b32 s8, s8, 9
            s_add_u32 s8, s8, {OX}
            v_add_u32 v62, s8, v61
            v_add_u32 v63, {(OXA - OX) & 0xffffffff:#x}, v62
            """)
            settags(16, 20)
        if v + 1 < 128 and not opt.get("nomfma"): abuild(v + 1, 8 + 4*((v+1) & 1))
        vq.wait(("V", v))
        if not opt.get("nomfma"): mfma(4, 8 + 4*(v & 1), vslot(v), "v[4:7]")
        if v + WV < 128: vload(v + WV)
        ctl_step(128 + v + 1)
    stamp(9 if FINE else 3)
    if stamps and opt.get("clk"):
        A("s_memtime s[76:77]"); A("s_waitcnt lgkmcnt(0)"); A("s_sub_u32 s76, s76, s100")
        A("s_lshl_b32 s8, s2, 10"); A("s_lshl_b32 s9, s3, 7"); A("s_add_u32 s8, s8, s9"); A("s_add_u32 s8, s8, 0x2000000")
        A("v_mov_b32 v44, s8"); A("v_mov_b32 v45, s76"); A("s_mov_b64 exec, 1"); A("global_store_dword v44, v45, s[40:41] offset:80"); A("s_mov_b64 exec, -1")
    A("s_waitcnt lgkmcnt(0)")
    for r in range(4): A(f"v_mul_f32 v{4+r}, v{4+r}, v50")
    A(f"""
    s_mov_b32 exec_hi, 0
    ds_write_b128 v60, v[4:7] offset:{OP}
    s_waitcnt lgkmcnt(0)
    s_barrier
    s_cmp_eq_u32 s3, 0
    s_cbranch_scc0 L_sexit
    """)
    for w in range(4): A(f"ds_read_b128 {v4(128+4*w)}, v61 offset:{OP+512*w}")
    A("s_waitcnt lgkmcnt(0)")
    for k in (0, 2):
        pk(128+k, 128+k, 132+k); pk(136+k, 136+k, 140+k); pk(128+k, 128+k, 136+k)
    tag4(128, 20)
    if DUAL: A("global_store_dwordx4 v63, v[128:131], s[40:41]")
    A(f"""
    global_store_dwordx4 v62, v[128:131], s[40:41] sc1
    L_sexit:
    s_mov_b32 exec_hi, -1
    """)
    store_stamps(10 if FINE else 4)
    A("s_endpgm")

    A("L_H:")
    SELX = 24
    A(f"""
    s_setprio 3
    s_sub_u32 s71, s3, 4
    s_lshl_b32 s72, s5, 1
    s_add_u32 s72, s72, s6
    v_and_b32 v44, 1, v{vC}
    v_cmp_eq_u32 vcc, 1, v44
    v_mov_b32 v45, 0x0c0c0100
    v_mov_b32 v46, 0x01000c0c
    v_cndmask_b32 v47, v45, v46, vcc
    v_mov_b32 v45, 0x0c0c0302
    v_mov_b32 v46, 0x03020c0c
    v_cndmask_b32 v48, v45, v46, vcc
    v_bfe_u32 v44, v{vC}, 1, 2
    v_mov_b32 v45, 0x0c0c0c0c
    v_cmp_gt_u32 s[12:13], 8, v{vC}
    """)
    for r in range(4):
        A(f"v_cmp_eq_u32 vcc, {r}, v44")
        A(f"v_cndmask_b32 v{SELL+r}, v45, v47, vcc")
        A(f"v_cndmask_b32 v{SELH+r}, v45, v48, vcc")
        A(f"v_cndmask_b32 v{SELX+r}, v{SELH+r}, v{SELL+r}, s[12:13]")
    A(f"""
    s_lshr_b32 s8, s72, 1
    s_mul_i32 s8, s8, 160
    s_mul_i32 s9, s71, 40
    s_add_u32 s8, s8, s9
    v_mul_u32_u24 v44, 10, v{vG}
    v_add_u32 v44, s8, v44
    v_lshlrev_b32 v46, 1, v44
    v_lshrrev_b32 v45, 3, v{vC}
    v_add_u32 v45, v44, v45
    v_lshlrev_b32 v45, 13, v45
    v_and_b32 v47, 7, v{vC}
    v_lshlrev_b32 v47, 4, v47
    v_add_u32 v48, v45, v47
    s_waitcnt lgkmcnt(0)
    s_or_b32 s8, s2, s71
    s_cmp_eq_u32 s8, 0
    s_cbranch_scc0 L_nononce
    s_memrealtime s[8:9]
    s_waitcnt lgkmcnt(0)
    s_or_b32 s8, s8, 1
    s_mul_i32 s8, s8, 0x9e3779b1
    v_mov_b32 v44, 0
    v_mov_b32 v50, s8
    v_mov_b32 v51, 0
    s_mov_b64 exec, 1
    global_atomic_cmpswap v44, v[50:51], s[38:39]
    s_mov_b64 exec, -1
    L_nononce:
    s_mov_b32 s44, s16
    s_and_b32 s45, s17, 0xffff
    s_mov_b32 s46, 5120
    s_mov_b32 s47, 0x20000
    s_lshl_b32 s8, s4, 8
    s_and_b32 s9, s72, 1
    s_lshl_b32 s9, s9, 7
    s_add_u32 s8, s8, s9
    s_add_u32 s48, s22, s8
    s_addc_u32 s49, s23, 0
    s_and_b32 s49, s49, 0xffff
    s_sub_u32 s50, 5242880, s8
    s_mov_b32 s51, 0x20000
    """)
    XQ = 56; WQr = 80
    A(f"""
    s_mul_i32 s8, s71, 1280
    v_lshlrev_b32 v44, 4, v1
    v_add_u32 v45, s8, v44
    s_add_u32 s9, s8, {XL}
    s_mov_b32 m0, s9
    s_mov_b32 s60, s34
    s_and_b32 s61, s35, 0xffff
    s_mov_b32 s62, 1280
    s_mov_b32 s63, 0x20000
    buffer_load_dwordx4 v45, s[44:47], 0 offen lds
    s_add_u32 m0, s9, 1024
    s_mov_b32 s64, 1024
    s_mov_b64 exec, 0xffff
    buffer_load_dwordx4 v45, s[44:47], s64 offen lds
    s_mov_b64 exec, -1
    s_cmp_eq_u32 s71, 0
    s_cbranch_scc0 L_nogw
    s_mov_b32 m0, {GWL}
    s_nop 0
    buffer_load_dwordx4 v44, s[60:63], 0 offen lds
    s_mov_b32 m0, {GWL+1024}
    s_mov_b64 exec, 0xffff
    buffer_load_dwordx4 v44, s[60:63], s64 offen lds
    s_mov_b64 exec, -1
    L_nogw:
    """)
    for i in range(5):
        A(f"s_mov_b32 s64, {2*i*8192}")
        A(f"buffer_load_dwordx4 {v4(WQr+4*i)}, v48, s[48:51], s64 offen {WF}")
    A("s_waitcnt lgkmcnt(0)")
    if not EB: A("s_barrier")
    A("s_waitcnt vmcnt(5)")
    hbarrier(1)
    for b in range(4): A(f"v_add_u32 v{100+b}, {XL + 1280*b}, v46")
    for b in range(4):
        A(f"ds_read2_b32 v[{XQ+6*b}:{XQ+6*b+1}], v{100+b} offset0:0 offset1:1")
        A(f"ds_read2_b32 v[{XQ+6*b+2}:{XQ+6*b+3}], v{100+b} offset0:2 offset1:3")
        A(f"ds_read_b32 v{XQ+6*b+4}, v{100+b} offset:16")
    A(f"""
    s_cmp_eq_u32 s71, 0
    s_cbranch_scc0 L_nopoll
    v_mov_b32 v44, 0
    s_mov_b32 s73, {SPIN}
    s_mov_b64 exec, 1
    L_npoll:
    global_load_dword v45, v44, s[38:39] sc1
    s_waitcnt vmcnt(0)
    v_readfirstlane_b32 s74, v45
    s_cmp_lg_u32 s74, 0
    s_cbranch_scc1 L_ngot
    s_and_b32 s8, s73, 15
    s_cmp_eq_u32 s8, 8
    s_cbranch_scc0 L_nelect
    s_memrealtime s[8:9]
    s_waitcnt lgkmcnt(0)
    s_or_b32 s8, s8, 1
    s_mul_i32 s8, s8, 0x9e3779b1
    v_mov_b32 v50, s8
    v_mov_b32 v51, 0
    global_atomic_cmpswap v44, v[50:51], s[38:39]
    L_nelect:
    s_sub_u32 s73, s73, 1
    s_cbranch_scc0 L_npoll
    L_ngot:
    v_mov_b32 v45, s74
    ds_write_b32 v44, v45 offset:{NONCE}
    s_mov_b64 exec, -1
    L_nopoll:
    """)
    A("s_waitcnt vmcnt(0) lgkmcnt(0)")
    stamp(1)
    def xq(b, i): return XQ + 6*b + i
    DQ = [4, 48, 52, 104]
    n = 0
    for i in range(5):
        for b in range(4):
            aset = 8 + 4 * (n & 1)
            for r in range(4): A(f"v_perm_b32 v{aset+r}, v{xq(b,i)}, v{xq(b,i)}, v{SELX+r}")
            mfma(DQ[b], aset, WQr + 4*i, "0" if i == 0 else v4(DQ[b]))
            n += 1
    A(f"""
    s_lshl_b32 s8, s71, 11
    v_lshrrev_b32 v45, 1, v{vG}
    v_lshlrev_b32 v45, 8, v45
    v_and_b32 v46, 7, v{vC}
    v_lshlrev_b32 v46, 5, v46
    v_add_u32 v45, v45, v46
    v_and_b32 v46, 1, v{vG}
    v_lshlrev_b32 v46, 4, v46
    v_add_u32 v45, v45, v46
    v_add_u32 v45, s8, v45
    s_mov_b32 exec_lo, 0x00ff00ff
    s_mov_b32 exec_hi, 0xff00ff00
    """)
    for b in range(4): A(f"ds_write_b128 v45, {v4(DQ[b])} offset:{GP+512*b}")
    A("s_mov_b64 exec, -1")
    hbarrier(2)
    A(f"""
    v_mov_b32 v44, 0
    ds_read_b32 v32, v44 offset:{NONCE}
    s_lshl_b32 s8, s71, 9
    v_lshlrev_b32 v45, 4, v{vC}
    v_add_u32 v45, s8, v45
    """)
    for w in range(4):
        for rho in range(2): A(f"ds_read_b128 {v4(56+8*w+4*rho)}, v45 offset:{GP+w*2048+rho*256}")
    A(f"""
    s_lshl_b32 s10, s4, 3
    s_add_u32 s10, s10, s72
    s_lshl_b32 s10, s10, 2
    s_add_u32 s10, s10, s71
    s_lshl_b32 s10, s10, 8
    s_add_u32 s10, s10, {QX}
    v_lshlrev_b32 v46, 4, v{vC}
    v_add_u32 v46, s10, v46
    s_waitcnt lgkmcnt(0)
    v_readfirstlane_b32 s74, v32
    """)
    settags(32, TG)
    def sum_quads(regs):
        regs = list(regs)
        while len(regs) > 1:
            nx = []
            for a in range(0, len(regs) - 1, 2):
                for k in (0, 2): pk(regs[a]+k, regs[a]+k, regs[a+1]+k)
                nx.append(regs[a])
            if len(regs) % 2: nx.append(regs[-1])
            regs = nx
    sum_quads([56+4*k for k in range(8)])
    tag4(56)
    A(f"""
    s_mov_b64 exec, 0xffff
    global_store_dwordx4 v46, v[56:59], s[40:41] sc1
    s_mov_b64 exec, -1
    """)
    stamp(2)
    def rows_reduce(regs):
        for r in regs: A(f"v_mov_b32 v{r+32}, v{r}")
        for r in regs: A(f"v_permlane16_swap_b32 v{r}, v{r+32}")
        for r in regs: A(f"v_add_f32 v{r}, v{r}, v{r+32}")
        for r in regs: A(f"v_mov_b32 v{r+32}, v{r}")
        for r in regs: A(f"v_permlane32_swap_b32 v{r}, v{r+32}")
        for r in regs: A(f"v_add_f32 v{r}, v{r}, v{r+32}")
    A(f"""
    s_cmp_eq_u32 s71, 0
    s_cbranch_scc0 L_noq
    s_lshl_b32 s10, s4, 5
    s_add_u32 s10, s10, s5
    s_lshl_b32 s10, s10, 8
    s_add_u32 s10, s10, {QX}
    v_lshlrev_b32 v46, 11, v{vG}
    v_lshlrev_b32 v47, 4, v{vC}
    v_add_u32 v46, v46, v47
    v_add_u32 v46, s10, v46
    s_mov_b32 s73, {SPIN}
    s_sleep {QSLEEP}
    L_qpoll:
    global_load_dwordx4 v[56:59], v46, s[40:41] sc1
    global_load_dwordx4 v[60:63], v46, s[40:41] offset:1024 sc1
    s_waitcnt vmcnt(0)
    """)
    chk4([56, 60], "L_qok")
    A(f"""
    s_sub_u32 s73, s73, 1
    s_cbranch_scc0 L_qpoll
    L_qok:
    """)
    rows_reduce(range(56, 64))
    A(f"""
    v_cvt_pk_bf16_f32 v56, v56, v57
    v_cvt_pk_bf16_f32 v57, v58, v59
    v_cvt_pk_bf16_f32 v58, v60, v61
    v_cvt_pk_bf16_f32 v59, v62, v63
    v_lshlrev_b32 v45, 3, v{vC}
    v_mov_b32 v44, 0
    v_mov_b32 v47, 1
    s_mov_b64 exec, 0xffff
    ds_write_b64 v45, v[56:57] offset:{QB}
    ds_write_b64 v45, v[58:59] offset:{QB+128}
    s_mov_b64 exec, 1
    ds_write_b32 v44, v47 offset:{QRDY}
    s_mov_b64 exec, -1
    L_noq:
    """)
    stamp(3)
    def idle_end():
        A(f"""
        v_mov_b32 v44, 0
        v_mov_b32 v45, 1
        v_mov_b32 v46, 1.0
        ds_write_b32 v44, v46 offset:{SCALE}
        ds_write_b32 v44, v46 offset:{SCALE+4}
        ds_write_b32 v44, v46 offset:{SCALE+8}
        ds_write_b32 v44, v46 offset:{SCALE+12}
        ds_write_b32 v44, v45 offset:{SCRDY}
        s_waitcnt lgkmcnt(0)
        s_barrier
        s_branch L_hend
        """)
    HST = int(opt.get("hstop", 0))
    if opt.get("hidle"): idle_end()
    A(f"""
    s_setprio {BP}
    s_lshr_b32 s8, s2, 3
    s_and_b32 s9, s8, 3
    s_lshl_b32 s9, s9, 1
    s_add_u32 s9, s9, 1
    s_and_b32 s10, s2, 7
    s_mul_i32 s8, s8, 7
    s_add_u32 s8, s8, s10
    s_cmp_gt_u32 s10, s9
    s_cselect_b32 s11, 1, 0
    s_sub_u32 s8, s8, s11
    s_lshr_b32 s76, s8, 3
    s_and_b32 s77, s8, 7
    s_cmp_lt_u32 s8, 216
    s_cselect_b32 s75, 1, 0
    s_cmp_eq_u32 s10, s9
    s_cselect_b32 s75, 0, s75
    """)
    if opt.get("noffn"): A("s_mov_b32 s75, 0")
    blk("s72", "s66", "s67", "s68")
    blk("s77", "s65", "s69", "s70")
    A(f"""
    s_mul_i32 s8, s4, 163840
    s_add_u32 s8, s8, s66
    s_add_u32 s48, s24, s8
    s_addc_u32 s49, s25, 0
    s_and_b32 s49, s49, 0xffff
    s_sub_u32 s50, 5242880, s8
    s_mov_b32 s51, 0x20000
    v_mul_u32_u24 v46, 2560, v{vG}
    v_lshlrev_b32 v47, 4, v{vC}
    v_add_u32 v46, v46, v47
    s_mul_i32 s8, s71, {32*1280}
    v_add_u32 v46, s8, v46
    v_mov_b32 v47, 0x7ff00000
    v_cmp_gt_u32 vcc, s67, v{vC}
    v_cndmask_b32 v46, v47, v46, vcc
    s_lshl_b32 s9, s71, 13
    s_add_u32 s9, s9, {WOL}
    """)
    WOM = opt.get("wom", "dma"); HP = int(opt.get("hp", 0))
    for i in range(8 if HST != 1 else 0):
        t, s_ = i >> 1, i & 1
        if WOM == "dma":
            A(f"s_add_u32 m0, s9, {i*1024}")
            A(f"s_mov_b32 s64, {(8*t+s_)*1280}")
            if HP and i >= HP: A(f"s_waitcnt vmcnt({HP-1})")
            A(f"buffer_load_dwordx4 v46, s[48:51], s64 offen {WF} lds")
        elif WOM == "dmax":
            A("s_mov_b32 exec_lo, 0x03ff03ff"); A("s_mov_b32 exec_hi, 0x03ff03ff")
            A(f"s_add_u32 m0, s9, {i*1024}")
            A(f"s_mov_b32 s64, {(8*t+s_)*1280}")
            A(f"buffer_load_dwordx4 v46, s[48:51], s64 offen {WF} lds")
            A("s_mov_b64 exec, -1")
        else:
            A(f"s_mov_b32 s64, {(8*t+s_)*1280}")
            A(f"buffer_load_dwordx4 {v4(192+4*i)}, v46, s[48:51], s64 offen {WF}")
    W1r = 96; W2r = 120
    A("s_cmp_eq_u32 s75, 1"); A("s_cbranch_scc0 L_nobulk")
    A(f"""
    s_and_b32 s8, s77, 1
    s_cmp_eq_u32 s8, 0
    s_cselect_b32 s60, s28, s30
    s_cselect_b32 s61, s29, s31
    s_lshl_b32 s8, s76, 7
    s_add_u32 s60, s60, s8
    s_addc_u32 s61, s61, 0
    s_and_b32 s61, s61, 0xffff
    s_sub_u32 s62, {640*3456}, s8
    s_mov_b32 s63, 0x20000
    s_lshr_b32 s8, s77, 1
    s_mul_i32 s8, s8, 160
    s_mul_i32 s9, s71, 40
    s_add_u32 s8, s8, s9
    v_mul_u32_u24 v44, 10, v{vG}
    v_add_u32 v44, s8, v44
    v_lshlrev_b32 v41, 1, v44
    v_lshrrev_b32 v45, 3, v{vC}
    v_add_u32 v45, v44, v45
    v_mul_u32_u24 v45, 3456, v45
    v_and_b32 v47, 7, v{vC}
    v_lshlrev_b32 v47, 4, v47
    v_add_u32 v45, v45, v47
    """)
    for i in range(5):
        A(f"s_mov_b32 s64, {2*i*3456}")
        if HP: A(f"s_waitcnt vmcnt({HP-1})")
        A(f"buffer_load_dwordx4 {v4(W1r+4*i)}, v45, s[60:63], s64 offen {WF}")
    A(f"""
    s_lshl_b32 s8, s76, 6
    s_lshl_b32 s9, s71, 4
    s_add_u32 s8, s8, s9
    s_mul_i32 s8, s8, 1280
    s_add_u32 s8, s8, s65
    s_add_u32 s60, s32, s8
    s_addc_u32 s61, s33, 0
    s_and_b32 s61, s61, 0xffff
    s_sub_u32 s62, {1728*1280}, s8
    s_mov_b32 s63, 0x20000
    v_mul_u32_u24 v46, 2560, v{vG}
    v_lshlrev_b32 v47, 4, v{vC}
    v_add_u32 v46, v46, v47
    v_mov_b32 v47, 0x7ff00000
    v_cmp_gt_u32 vcc, s69, v{vC}
    v_cndmask_b32 v46, v47, v46, vcc
    """)
    for ts in range(4):
        A(f"s_mov_b32 s64, {(8*(ts>>1)+(ts&1))*1280}")
        if HP: A(f"s_waitcnt vmcnt({HP-1})")
        A(f"buffer_load_dwordx4 {v4(W2r+4*ts)}, v46, s[60:63], s64 offen {WF}")
    A("L_nobulk:")
    A("s_waitcnt vmcnt(0)")
    if WOM == "reg" and HST != 1:
        A(f"""
        s_lshl_b32 s9, s71, 13
        s_add_u32 s9, s9, {WOL}
        v_lshlrev_b32 v45, 4, v1
        v_add_u32 v45, s9, v45
        """)
        for i in range(8): A(f"ds_write_b128 v45, {v4(192+4*i)} offset:{1024*i}")
    A(f"""
    v_mul_u32_u24 v44, 20, v1
    s_mul_i32 s8, s71, 1280
    s_add_u32 s8, s8, {XL}
    v_add_u32 v45, s8, v44
    v_add_u32 v44, {GWL}, v44
    ds_read2_b32 v[36:37], v45 offset0:0 offset1:1
    ds_read2_b32 v[38:39], v45 offset0:2 offset1:3
    ds_read_b32 v40, v45 offset:16
    ds_read2_b32 v[48:49], v44 offset0:0 offset1:1
    ds_read2_b32 v[50:51], v44 offset0:2 offset1:3
    ds_read_b32 v52, v44 offset:16
    s_waitcnt lgkmcnt(0)
    """)
    A("v_dot2_f32_bf16 v33, v36, v48, 0")
    for t in range(1, 5): A(f"v_dot2_f32_bf16 v33, v{36+t}, v{48+t}, v33")
    wavereduce("v_add_f32", 33)
    A(f"""
    v_mul_f32 v33, {f2u(-LOG2E):#x}, v33
    v_exp_f32 v33, v33
    v_add_f32 v33, 1.0, v33
    v_rcp_f32 v33, v33
    v_sub_f32 v32, 1.0, v33
    s_setprio {int(opt.get("fp", 3))}
    """)
    hbarrier(3, 2)
    stamp(4)
    if HST in (1, 2): idle_end()
    A("s_cmp_eq_u32 s75, 1"); A("s_cbranch_scc0 L_noffn")
    for b in range(4): A(f"v_add_u32 v{100+16+b}, {XL + 1280*b}, v41")
    for b in range(4):
        A(f"ds_read2_b32 v[{XQ+6*b}:{XQ+6*b+1}], v{116+b} offset0:0 offset1:1")
        A(f"ds_read2_b32 v[{XQ+6*b+2}:{XQ+6*b+3}], v{116+b} offset0:2 offset1:3")
        A(f"ds_read_b32 v{XQ+6*b+4}, v{116+b} offset:16")
    A("s_waitcnt lgkmcnt(0)")
    DF = [4, 48, 52, 80]
    n = 0
    for i in range(5):
        for b in range(4):
            aset = 8 + 4 * (n & 1)
            for r in range(4): A(f"v_perm_b32 v{aset+r}, v{xq(b,i)}, v{xq(b,i)}, v{SELX+r}")
            mfma(DF[b], aset, W1r + 4*i, "0" if i == 0 else v4(DF[b]))
            n += 1
    A(f"""
    s_lshl_b32 s8, s71, 11
    v_lshrrev_b32 v45, 1, v{vG}
    v_lshlrev_b32 v45, 8, v45
    v_and_b32 v46, 7, v{vC}
    v_lshlrev_b32 v46, 5, v46
    v_add_u32 v45, v45, v46
    v_and_b32 v46, 1, v{vG}
    v_lshlrev_b32 v46, 4, v46
    v_add_u32 v45, v45, v46
    v_add_u32 v45, s8, v45
    s_mov_b32 exec_lo, 0x00ff00ff
    s_mov_b32 exec_hi, 0xff00ff00
    """)
    for b in range(4): A(f"ds_write_b128 v45, {v4(DF[b])} offset:{GP+512*b}")
    A("s_mov_b64 exec, -1")
    hbarrier(4)
    A(f"""
    s_lshl_b32 s8, s71, 9
    v_lshlrev_b32 v45, 4, v{vC}
    v_add_u32 v45, s8, v45
    """)
    for w in range(4):
        for rho in range(2): A(f"ds_read_b128 {v4(56+8*w+4*rho)}, v45 offset:{GP+w*2048+rho*256}")
    A(f"""
    s_lshl_b32 s10, s76, 3
    s_add_u32 s10, s10, s77
    s_lshl_b32 s10, s10, 2
    s_add_u32 s10, s10, s71
    s_lshl_b32 s10, s10, 8
    s_add_u32 s10, s10, {FX}
    v_lshlrev_b32 v46, 4, v{vC}
    v_add_u32 v46, s10, v46
    s_waitcnt lgkmcnt(0)
    """)
    sum_quads([56+4*k for k in range(8)])
    tag4(56)
    A(f"""
    s_mov_b64 exec, 0xffff
    global_store_dwordx4 v46, v[56:59], s[40:41] sc1
    s_mov_b64 exec, -1
    s_lshl_b32 s10, s76, 5
    s_add_u32 s10, s10, s71
    s_lshl_b32 s10, s10, 8
    s_add_u32 s10, s10, {FX}
    v_lshlrev_b32 v46, 11, v{vG}
    v_lshlrev_b32 v47, 4, v{vC}
    v_add_u32 v46, v46, v47
    v_add_u32 v46, s10, v46
    s_mov_b32 s73, {SPIN}
    s_sleep {FSL}
    L_fpoll:
    global_load_dwordx4 v[60:63], v46, s[40:41] offset:1024 sc1
    global_load_dwordx4 v[56:59], v46, s[40:41] sc1
    s_waitcnt vmcnt(0)
    """)
    chk4([56, 60], "L_fok")
    A(f"""
    s_sleep {FSL}
    s_sub_u32 s73, s73, 1
    s_cbranch_scc0 L_fpoll
    L_fok:
    """)
    rows_reduce(range(56, 64))
    for k in range(4): A(f"v_mul_f32 v{64+k}, {f2u(-LOG2E):#x}, v{56+k}")
    for k in range(4): A(f"v_exp_f32 v{64+k}, v{64+k}")
    for k in range(4): A(f"v_add_f32 v{64+k}, 1.0, v{64+k}")
    for k in range(4): A(f"v_rcp_f32 v{64+k}, v{64+k}")
    for k in range(4): A(f"v_mul_f32 v{56+k}, v{56+k}, v{64+k}")
    for k in range(4): A(f"v_mul_f32 v{56+k}, v{56+k}, v{60+k}")
    A(f"""
    v_cvt_pk_bf16_f32 v56, v56, v57
    v_cvt_pk_bf16_f32 v57, v58, v59
    s_lshl_b32 s8, s71, 7
    v_lshlrev_b32 v45, 3, v{vC}
    v_add_u32 v45, s8, v45
    s_mov_b64 exec, 0xffff
    ds_write_b64 v45, v[56:57] offset:{HB}
    s_mov_b64 exec, -1
    """)
    hbarrier(5)
    A(f"""
    v_lshrrev_b32 v45, 3, v{vC}
    v_lshlrev_b32 v45, 7, v45
    v_lshlrev_b32 v46, 2, v{vG}
    v_add_u32 v45, v45, v46
    s_lshl_b32 s8, s71, 5
    v_add_u32 v45, s8, v45
    ds_read_b32 v56, v45 offset:{HB}
    ds_read_b32 v57, v45 offset:{HB+16}
    ds_read_b32 v58, v45 offset:{HB+256}
    ds_read_b32 v59, v45 offset:{HB+256+16}
    s_waitcnt lgkmcnt(0)
    """)
    D2 = [4, 52]
    n = 0
    for ts in range(4):
        for p in range(2):
            aset = 8 + 4 * (n & 1)
            perms(56 + 2*p + (ts >> 1), ts & 1, aset)
            mfma(D2[p], aset, W2r + 4*ts, "0" if ts == 0 else v4(D2[p]))
            n += 1
    A(f"""
    s_lshl_b32 s8, s71, 11
    s_add_u32 s8, s8, {YP2}
    v_lshlrev_b32 v45, 4, v1
    v_add_u32 v45, s8, v45
    ds_write_b128 v45, {v4(D2[0])}
    ds_write_b128 v45, {v4(D2[1])} offset:1024
    """)
    hbarrier(6)
    A(f"""
    s_lshr_b32 s8, s71, 1
    s_lshl_b32 s8, s8, 10
    s_and_b32 s9, s71, 1
    s_lshl_b32 s9, s9, 9
    s_add_u32 s8, s8, s9
    s_add_u32 s8, s8, {YP2}
    v_and_b32 v45, 1, v1
    v_lshlrev_b32 v45, 8, v45
    v_bfe_u32 v46, v1, 1, 4
    v_lshlrev_b32 v46, 4, v46
    v_add_u32 v45, v45, v46
    v_add_u32 v45, s8, v45
    """)
    for w in range(4): A(f"ds_read_b128 {v4(56+4*w)}, v45 offset:{w*2048}")
    A(f"""
    s_lshl_b32 s10, s77, 2
    s_add_u32 s10, s10, s71
    s_mul_i32 s10, s10, 27
    s_add_u32 s10, s10, s76
    s_lshl_b32 s10, s10, 9
    s_add_u32 s10, s10, {FY}
    v_lshlrev_b32 v46, 4, v1
    v_add_u32 v46, s10, v46
    s_waitcnt lgkmcnt(0)
    """)
    sum_quads([56, 60, 64, 68])
    for k in range(4): A(f"v_mul_f32 v{56+k}, v{56+k}, v32")
    tag4(56)
    A(f"""
    s_mov_b32 exec_lo, s70
    s_mov_b32 exec_hi, 0
    global_store_dwordx4 v46, v[56:59], s[40:41] sc1
    s_mov_b64 exec, -1
    """)
    A("L_noffn:")
    stamp(5)
    if opt.get("lowprio"): A("s_setprio 0")
    WOr = 128
    A(f"""
    v_lshlrev_b32 v45, 4, v1
    v_add_u32 v45, {WOL}, v45
    """)
    for i in range(32):
        A(f"ds_read_b128 {v4(WOr+4*i)}, v45 offset:{1024*i}")
        if i % 8 == 7: A("s_waitcnt lgkmcnt(0)")
    A(f"""
    s_bfe_u32 s9, s2, 0x20003
    s_lshl_b32 s9, s9, 1
    s_add_u32 s9, s9, 1
    s_and_b32 s8, s2, 7
    s_cmp_eq_u32 s8, s9
    s_cselect_b32 s75, 1, 0
    s_lshr_b32 s76, s2, 5
    s_bfe_u32 s77, s2, 0x20003
    """)
    blk("s76", "s65", "s69", "s70")
    FSUM = 36
    M20 = 0x000fffff000fffff
    A("s_cmp_eq_u32 s75, 1"); A("s_cbranch_scc0 L_nocol")
    if not opt.get("noffn") :
        A(f"""
        s_lshl_b32 s8, s76, 2
        s_add_u32 s8, s8, s77
        s_mul_i32 s8, s8, 27
        s_add_u32 s8, s8, s71
        s_lshl_b32 s8, s8, 9
        s_add_u32 s8, s8, {FY}
        v_lshrrev_b32 v46, 5, v1
        v_lshlrev_b32 v46, 11, v46
        v_and_b32 v47, 31, v1
        v_lshlrev_b32 v47, 4, v47
        v_add_u32 v46, v46, v47
        v_add_u32 v46, s8, v46
        s_mov_b32 s73, {SPIN}
        L_cpoll:
        v_mov_b32 v48, v46
        """)
        for k in range(4):
            if k < 3: A(f"s_mov_b32 exec_lo, s70"); A("s_mov_b32 exec_hi, s70")
            else:
                A("s_cmp_lt_u32 s71, 3"); A("s_cbranch_scc0 L_cskip"); A("s_mov_b32 exec_lo, s70"); A("s_mov_b32 exec_hi, 0")
            A(f"global_load_dwordx4 {v4(56+4*k)}, v48, s[40:41] sc1")
            A("s_mov_b64 exec, -1")
            if k == 3: A("L_cskip:")
            if k < 3: A(f"v_add_u32 v48, {8*512}, v48")
        A("s_waitcnt vmcnt(0)")
        A(f"""
        v_and_b32 v44, 31, v1
        s_lshl_b32 s8, s69, 1
        v_cmp_le_u32 vcc, s8, v44
        """)
        for k in range(4):
            for r in range(4): A(f"v_cndmask_b32 v{56+4*k+r}, v{56+4*k+r}, v{TG+r}, vcc")
        A(f"""
        s_cmp_lt_u32 s71, 3
        s_cselect_b32 s8, 0xffffffff, 0
        s_mov_b32 s9, 0
        s_not_b64 vcc, s[8:9]
        """)
        for r in range(4): A(f"v_cndmask_b32 v{68+r}, v{68+r}, v{TG+r}, vcc")
        chk4([56, 60, 64, 68], "L_cok")
        A(f"""
        s_sleep 64
        s_sub_u32 s73, s73, 1
        s_cbranch_scc0 L_cpoll
        L_cok:
        """)
        sum_quads([56, 60, 64, 68])
        for r in range(4): A(f"v_mov_b32 v{60+r}, v{56+r}")
        for r in range(4): A(f"v_permlane32_swap_b32 v{56+r}, v{60+r}")
        for r in range(4): A(f"v_add_f32 v{56+r}, v{56+r}, v{60+r}")
        A(f"""
        s_lshl_b32 s8, s71, 9
        v_lshlrev_b32 v45, 4, v1
        v_add_u32 v45, s8, v45
        s_mov_b32 exec_hi, 0
        ds_write_b128 v45, v[56:59] offset:{FS}
        s_mov_b32 exec_hi, -1
        """)
        hbarrier(4)
        A(f"v_lshlrev_b32 v45, 4, v1")
        A("s_mov_b32 exec_hi, 0")
        for w in range(4): A(f"ds_read_b128 {v4(56+4*w)}, v45 offset:{FS+512*w}")
        A("s_mov_b32 exec_hi, -1")
        A("s_waitcnt lgkmcnt(0)")
        sum_quads([56, 60, 64, 68])
        for r in range(4): A(f"v_mov_b32 v{FSUM+r}, v{56+r}")
    else:
        for r in range(4): A(f"v_mov_b32 v{FSUM+r}, 0")
    A("L_nocol:")
    if CTL:
        A("s_cmp_eq_u32 s71, 1"); A("s_cbranch_scc0 L_noctl")
        A(f"""
        s_lshl_b32 s8, s2, 7
        s_add_u32 s8, s8, {PF}
        v_mov_b32 v46, s8
        v_add_u32 v47, 1, v1
        v_xor_b32 v47, s2, v47
        v_lshlrev_b32 v47, 7, v47
        v_add_u32 v47, {PF}, v47
        v_mov_b32 v44, 0
        v_mov_b32 v48, s74
        s_mov_b32 s11, 0
        L_ctl:
        s_mov_b64 exec, 1
        s_add_u32 s11, s11, 1
        s_lshl_b32 s9, s11, 2
        s_sub_u32 s9, s9, {int(opt.get("ckq", 1))}
        s_mov_b32 s73, {SPIN}
        L_ctl_w:
        ds_read_b32 v45, v44 offset:{CKC}
        s_waitcnt lgkmcnt(0)
        v_readfirstlane_b32 s8, v45
        s_cmp_ge_u32 s8, s9
        s_cbranch_scc1 L_ctl_go
        s_sleep 4
        s_sub_u32 s73, s73, 1
        s_cbranch_scc0 L_ctl_w
        L_ctl_go:
        global_store_dword v46, v48, s[40:41] sc1
        s_mov_b64 exec, {CMASK:#x}
        global_load_dword v45, v47, s[40:41] sc1
        s_waitcnt vmcnt(0)
        v_cmp_eq_u32 vcc, s74, v45
        s_bcnt1_i32_b64 s8, vcc
        s_cmp_ge_u32 s8, {CT2 if L3 else 99}
        s_cselect_b32 s9, 1, 0
        s_cmp_ge_u32 s8, {CTHR}
        s_cselect_b32 s8, 1, 0
        s_add_u32 s8, s8, s9
        s_mov_b64 exec, -1
        v_mov_b32 v45, s8
        ds_write_b32 v44, v45 offset:{MODE}
        v_add_u32 v46, 4, v46
        v_add_u32 v47, 4, v47
        s_cmp_lt_u32 s11, {len(CKS)}
        s_cbranch_scc1 L_ctl
        s_mov_b64 exec, -1
        s_branch L_B2
        L_noctl:
        """)
    lds_spin(CNTK, "ge", 8, 4)
    A("s_cmp_eq_u32 s71, 0"); A("s_cbranch_scc0 L_nostat")
    A(f"""
    v_and_b32 v44, 3, v1
    v_lshlrev_b32 v44, 3, v44
    ds_read_b64 v[46:47], v44 offset:{ST}
    s_waitcnt lgkmcnt(0)
    v_mov_b32 v48, v46
    v_max_f32_dpp v48, v48, v48 quad_perm:[2,3,0,1] row_mask:0xf bank_mask:0xf
    v_max_f32_dpp v48, v48, v48 quad_perm:[1,0,3,2] row_mask:0xf bank_mask:0xf
    v_sub_f32 v49, v46, v48
    v_exp_f32 v49, v49
    v_mul_f32 v49, v49, v47
    v_add_f32_dpp v49, v49, v49 quad_perm:[2,3,0,1] row_mask:0xf bank_mask:0xf
    v_add_f32_dpp v49, v49, v49 quad_perm:[1,0,3,2] row_mask:0xf bank_mask:0xf
    s_lshl_b32 s8, s2, 7
    s_add_u32 s8, s8, {SX}
    v_mov_b32 v44, s8
    v_mov_b32 v56, v48
    v_mov_b32 v57, s74
    v_mov_b32 v58, v49
    v_mov_b32 v59, s74
    s_mov_b64 exec, 1
    global_store_dwordx4 v44, v[56:59], s[40:41] sc1
    s_xor_b32 s8, s2, {PX_}
    s_lshl_b32 s8, s8, 7
    s_add_u32 s8, s8, {SX}
    v_mov_b32 v44, s8
    s_mov_b32 s73, {SPIN}
    L_pspin:
    global_load_dwordx4 v[60:63], v44, s[40:41] sc1
    s_waitcnt vmcnt(0)
    """)
    check_tags([61, 63], "L_pok")
    A(f"""
    s_sleep 32
    s_sub_u32 s73, s73, 1
    s_cbranch_scc0 L_pspin
    L_pok:
    v_readfirstlane_b32 s8, v60
    v_readfirstlane_b32 s9, v62
    s_mov_b64 exec, -1
    v_mov_b32 v60, s8
    v_mov_b32 v62, s9
    v_max_f32 v52, v48, v60
    v_sub_f32 v53, v48, v52
    v_sub_f32 v54, v60, v52
    v_exp_f32 v53, v53
    v_exp_f32 v54, v54
    v_mul_f32 v53, v53, v49
    v_fma_f32 v53, v54, v62, v53
    v_rcp_f32 v53, v53
    v_sub_f32 v54, v46, v52
    v_exp_f32 v54, v54
    v_mul_f32 v54, v54, v53
    v_and_b32 v44, 3, v1
    v_lshlrev_b32 v44, 2, v44
    v_mov_b32 v45, 1
    v_mov_b32 v55, 0
    s_mov_b64 exec, 15
    ds_write_b32 v44, v54 offset:{SCALE}
    s_mov_b64 exec, 1
    ds_write_b32 v55, v45 offset:{SCRDY}
    s_mov_b64 exec, -1
    L_nostat:
    """)
    A("L_B2:")
    if opt.get("lowprio"): A("s_setprio 3")
    if HST == 3: A("s_waitcnt lgkmcnt(0)"); A("s_barrier"); A("s_branch L_hend")
    A(f"""
    s_lshl_b32 s10, s71, 6
    s_lshl_b32 s9, s4, 1
    s_add_u32 s10, s10, s9
    s_lshl_b32 s10, s10, 9
    s_add_u32 s10, s10, {OX}
    v_lshlrev_b32 v46, 4, v1
    v_add_u32 v46, s10, v46
    v_lshlrev_b32 v49, 9, v1
    v_add_u32 v49, s10, v49
    v_and_b32 v47, 1, v1
    v_lshlrev_b32 v47, 7, v47
    v_bfe_u32 v48, v1, 1, 4
    v_lshlrev_b32 v48, 2, v48
    v_add_u32 v47, v47, v48
    s_lshl_b32 s8, s71, 8
    v_add_u32 v47, s8, v47
    v_add_u32 v47, {OB}, v47
    v_lshlrev_b32 v48, 6, v{vG}
    v_add_u32 v48, s8, v48
    v_lshlrev_b32 v41, 5, v{vC}
    v_lshlrev_b32 v42, 4, v{vG}
    v_add_u32 v41, v41, v42
    s_lshl_b32 s8, s71, 9
    v_add_u32 v41, s8, v41
    v_lshlrev_b32 v42, 4, v1
    v_add_u32 v42, s8, v42
    s_lshl_b32 s10, s72, 2
    s_add_u32 s10, s10, s71
    s_lshl_b32 s10, s10, 5
    s_add_u32 s10, s10, s4
    s_lshl_b32 s10, s10, 9
    s_add_u32 s10, s10, {YX}
    v_lshlrev_b32 v43, 4, v1
    v_add_u32 v43, s10, v43
    s_waitcnt lgkmcnt(0)
    s_barrier
    """)
    stamp(6)
    if DUAL:
        A(f"""
        v_add_u32 v49, {(OXA - OX) & 0xffffffff:#x}, v46
        s_mov_b32 s73, {SPIN}
        L_opoll:
        global_load_dwordx4 v[56:59], v49, s[40:41] sc1
        s_waitcnt vmcnt(0)
        """)
        chk4([56], "L_ook")
        A(f"""
        s_and_b32 s8, s73, 3
        s_cmp_eq_u32 s8, 0
        s_cbranch_scc0 L_onext
        global_load_dwordx4 v[56:59], v46, s[40:41] sc1
        s_waitcnt vmcnt(0)
        """)
        chk4([56], "L_ook")
        A(f"""
        L_onext:
        s_sub_u32 s73, s73, 1
        s_cbranch_scc0 L_opoll
        L_ook:
        """)
    elif opt.get("op2"):
        A(f"""
        s_mov_b32 s73, {SPIN}
        global_load_dwordx4 v[84:87], v46, s[40:41] sc1
        s_sleep {int(opt.get("op2"))}
        L_opoll:
        global_load_dwordx4 v[88:91], v46, s[40:41] sc1
        s_waitcnt vmcnt(1)
        """)
        chk4([84], "L_ookA")
        A(f"""
        global_load_dwordx4 v[84:87], v46, s[40:41] sc1
        s_waitcnt vmcnt(1)
        """)
        chk4([88], "L_ookB")
        A(f"""
        s_sub_u32 s73, s73, 1
        s_cbranch_scc0 L_opoll
        L_ookA:
        """)
        for r in range(4): A(f"v_mov_b32 v{56+r}, v{84+r}")
        A("s_branch L_ook")
        A("L_ookB:")
        for r in range(4): A(f"v_mov_b32 v{56+r}, v{88+r}")
        A("L_ook:")
    else:
        A(f"""
        s_mov_b32 s73, {SPIN}
        L_opoll:
        global_load_dwordx4 v[56:59], v46, s[40:41] sc1
        s_waitcnt vmcnt(0)
        """)
        chk4([56], "L_ook")
        A(f"""
        {"s_sleep " + str(OSL) if OSL else ""}
        s_sub_u32 s73, s73, 1
        s_cbranch_scc0 L_opoll
        L_ook:
        """)
    for r in range(4): A(f"v_mov_b32 v{60+r}, v{56+r}")
    for r in range(4): A(f"v_permlane32_swap_b32 v{56+r}, v{60+r}")
    for r in range(4): A(f"v_add_f32 v{56+r}, v{56+r}, v{60+r}")
    A(f"""
    v_cvt_pk_bf16_f32 v56, v56, v57
    v_cvt_pk_bf16_f32 v57, v58, v59
    s_mov_b32 exec_hi, 0
    ds_write2_b32 v47, v56, v57 offset0:{0} offset1:{16}
    s_mov_b32 exec_hi, -1
    s_waitcnt lgkmcnt(0)
    """.replace("v47, v56, v57 offset0:0 offset1:16", "v47, v56, v57 offset0:0 offset1:16"))
    XO = 64
    for k in range(4): A(f"ds_read_b128 {v4(XO+4*k)}, v48 offset:{OB+16*k}")
    A("s_waitcnt lgkmcnt(0)")
    stamp(7)
    perms(XO, 0, 8)
    for i in range(32):
        if i + 1 < 32: perms(XO + (i+1)//2, (i+1) & 1, 8 + 4*((i+1) & 1))
        mfma(4, 8 + 4*(i & 1), WOr + 4*i, "0" if i == 0 else "v[4:7]")
    A(f"""
    s_mov_b32 exec_hi, 0
    ds_write_b128 v41, v[4:7] offset:{YS}
    s_waitcnt lgkmcnt(0)
    ds_read_b128 v[56:59], v42 offset:{YS}
    s_waitcnt lgkmcnt(0)
    """)
    for k in range(4): A(f"v_mul_f32 v{56+k}, v{56+k}, v33")
    tag4(56)
    A(f"""
    s_mov_b32 exec_lo, s68
    s_mov_b32 exec_hi, 0
    global_store_dwordx4 v43, v[56:59], s[40:41] sc1
    s_mov_b64 exec, -1
    {"s_branch L_hend" if HST == 4 else ""}
    s_cmp_eq_u32 s75, 1
    s_cbranch_scc0 L_hend
    s_lshl_b32 s10, s76, 2
    s_add_u32 s10, s10, s77
    s_lshl_b32 s10, s10, 5
    s_lshl_b32 s9, s71, 3
    s_add_u32 s10, s10, s9
    s_lshl_b32 s10, s10, 9
    s_add_u32 s10, s10, {YX}
    v_lshrrev_b32 v46, 5, v1
    v_lshlrev_b32 v46, 9, v46
    v_and_b32 v47, 31, v1
    v_lshlrev_b32 v47, 4, v47
    v_add_u32 v46, v46, v47
    v_add_u32 v46, s10, v46
    v_add_u32 v47, 2048, v46
    """)
    ya = [(46, 0), (46, 1024), (47, 0), (47, 1024)]
    A(f"""
    s_mov_b32 s73, {SPIN}
    s_mov_b32 s52, s70
    s_mov_b32 s53, s70
    s_mov_b64 s[54:55], s[52:53]
    s_mov_b64 s[56:57], s[52:53]
    s_mov_b64 s[58:59], s[52:53]
    s_mov_b32 s12, 0x0c0c0400
    s_mov_b32 s13, 0x04000c0c
    L_ypoll:
    """)
    for q, (ar, off) in enumerate(ya):
        A(f"s_mov_b64 exec, s[{52+2*q}:{53+2*q}]")
        A(f"s_cbranch_execz L_ysk{q}")
        A(f"global_load_dwordx4 {v4(56+4*q)}, v{ar}, s[40:41] offset:{off} sc1")
        A(f"L_ysk{q}:")
    A("s_mov_b32 exec_lo, s70"); A("s_mov_b32 exec_hi, s70")
    A("s_waitcnt vmcnt(0)")
    for q in range(4):
        d = 56 + 4*q
        A(f"v_perm_b32 v44, v{d+1}, v{d}, s12")
        A(f"v_perm_b32 v45, v{d+3}, v{d+2}, s13")
        A(f"v_or_b32 v44, v44, v45")
        A(f"v_cmp_ne_u32 s[{52+2*q}:{53+2*q}], s74, v44")
    A(f"""
    s_or_b64 s[8:9], s[52:53], s[54:55]
    s_or_b64 s[10:11], s[56:57], s[58:59]
    s_or_b64 s[8:9], s[8:9], s[10:11]
    s_cbranch_scc0 L_yok
    {"s_sleep " + str(int(opt.get("ysl", 1))) if int(opt.get("ysl", 1)) else ""}
    s_sub_u32 s73, s73, 1
    s_cbranch_scc0 L_ypoll
    L_yok:
    s_mov_b64 exec, -1
    """)
    sum_quads([56, 60, 64, 68])
    for r in range(4): A(f"v_mov_b32 v{60+r}, v{56+r}")
    for r in range(4): A(f"v_permlane32_swap_b32 v{56+r}, v{60+r}")
    for r in range(4): A(f"v_add_f32 v{56+r}, v{56+r}, v{60+r}")
    A(f"""
    s_lshl_b32 s8, s71, 9
    v_lshlrev_b32 v45, 4, v1
    v_add_u32 v45, s8, v45
    s_mov_b32 exec_hi, 0
    ds_write_b128 v45, v[56:59] offset:{FS}
    s_mov_b32 exec_hi, -1
    s_waitcnt lgkmcnt(0)
    s_barrier
    s_cmp_eq_u32 s71, 0
    s_cbranch_scc0 L_hend
    v_lshlrev_b32 v45, 4, v1
    s_mov_b32 exec_lo, s70
    s_mov_b32 exec_hi, 0
    """)
    for w in range(4): A(f"ds_read_b128 {v4(56+4*w)}, v45 offset:{FS+512*w}")
    A(f"""
    s_mul_i32 s8, s77, 1280
    s_add_u32 s8, s8, s65
    v_lshlrev_b32 v44, 3, v1
    v_add_u32 v44, s8, v44
    s_waitcnt lgkmcnt(0)
    """)
    sum_quads([56, 60, 64, 68])
    for k in (0, 2): pk(56+k, 56+k, FSUM+k)
    A(f"""
    v_cvt_pk_bf16_f32 v56, v56, v57
    v_cvt_pk_bf16_f32 v57, v58, v59
    global_store_dwordx2 v44, v[56:57], s[36:37] {opt.get("outf", "")}
    s_mov_b64 exec, -1
    """)
    A("L_hend:")
    stamp(8)
    store_stamps(9)
    A("L_end:")
    A("s_endpgm")
    body = A.finalize()
    body += f""".section .rodata,"a"
.p2align 6
.amdhsa_kernel {NAME}_kernel
  .amdhsa_next_free_vgpr 256
  .amdhsa_next_free_sgpr 102
  .amdhsa_accum_offset 256
  .amdhsa_group_segment_fixed_size 0
  .amdhsa_kernarg_size 104
  .amdhsa_user_sgpr_count 2
  .amdhsa_user_sgpr_kernarg_segment_ptr 1
  .amdhsa_system_sgpr_workgroup_id_x 1
.end_amdhsa_kernel
"""
    return body

if __name__ == "__main__":
    out = sys.argv[1] if len(sys.argv) > 1 else f"cdna_kernels/{NAME}.s"
    opt = {}
    for a in sys.argv[2:]:
        k, v = a.split("=")
        opt[k] = {"1": True, "0": False}.get(v, v) if k in ("stamps", "fine", "noffn") else v
    open(out, "w").write(gen(opt))
    print("wrote", out)
```

```python
import sys, struct
sys.path.insert(0, "gen")
from asmb import Asm
NAME = "gated_mix__mha_block_cached__swiglu_ffn__decode"
def f2u(x): return struct.unpack("<I", struct.pack("<f", x))[0]
LOG2E = 1.4426950408889634
CSC = LOG2E / (128 ** 0.5)
CNTK = 0; CNTH = 4; SCRDY = 8; QRDY = 12; CKC = 16; MODE = 20; NONCE = 32
ST = 40; SCALE = 72
QB = 128; HB = 512; OB = 1024; YS = 2048; OP = 4096; FS = 6144
GP = 8192; WOL = 16384; YP2 = 49152
XL = 49152 + 16384
GWL = XL + 5120
LDS_BYTES = GWL + 1280
SX = 0; QX = 0x10000; FX = 0x50000; OX = 0xE0000; YX = 0x100000; OXA = 0xA0000; FY = 0x180000; PF = 0x8000
NFFN = 108; FFN0 = 20
SPIN = 200000

HEADER = """; gated_mix( mha_block_cached, swiglu_ffn ) decode step, gfx950, one launch, 256 workgroups of 8 waves (one per CU).
;   48 w_gate (640,1728) | 56 w_up (640,1728) | 64 w_down (1728,640) | 72 gate_w (640) | 80 out (4,1,640) bf16 | 88 debug (256 B, zero) | 96 ws
; Waves 0-3 (S) stream K then V of their 2048 keys straight into registers (1 KiB nontemporal loads, outstanding count
; Waves 4-7 (H) do the small GEMVs, each weight byte being read by exactly one workgroup: a 160x64 piece of wq, a
;   mantissa bytes carry a per-launch nonce (elected in the zeroed debug word), written with sc1 stores and read with sc1
; 32 finaliser workgroups sum the per-head and FFN partials of one (column block, batch) and write the bf16 output.
; A progress flag exchange among neighbouring workgroups selects between two outstanding-load bounds so that all dies finish together.
"""
class VMQ:
    def __init__(self, A): self.q = []; self.A = A
    def issue(self, tag):
        self.q.append(tag); assert len(self.q) <= 63, len(self.q)
    def pace(self, depth):
        if depth and len(self.q) >= depth:
            self.A(f"s_waitcnt vmcnt({depth-1})"); self.q = self.q[len(self.q) - (depth - 1):] if depth > 1 else []
    def wait(self, tag):
        if tag not in self.q: return
        idx = self.q.index(tag); n = len(self.q) - 1 - idx
        self.A(f"s_waitcnt vmcnt({n})"); self.q = self.q[idx + 1:]

def gen(opt=None):
    opt = opt or {}
    KVF = opt.get("kvflags", "nt"); WF = opt.get("wflags", "nt")
    stamps = opt.get("stamps", False); FINE = opt.get("fine", False)
    NSLEEP = int(opt.get("nsleep", 10)); QSLEEP = int(opt.get("qsleep", 16))
    WK = int(opt.get("wk", 32)); WV = int(opt.get("wv", 48))
    BP = int(opt.get("bp", 2))
    FSTOP = int(opt.get("fstop", 0))
    OSL = int(opt.get("osl", 1)); FSL = int(opt.get("fsl", 48))
    A = Asm()
    A(f"; @launch grid=(256,1,1) block=(512,1,1) lds={LDS_BYTES}")
    for l in HEADER.strip().split("\n"): A.lines.append(l)
    A('.amdgcn_target "amdgcn-amd-amdhsa--gfx950"')
    A(".text"); A(f".globl {NAME}_kernel"); A(".p2align 8"); A(f".type {NAME}_kernel,@function"); A(f"{NAME}_kernel:")
    vG, vC = 34, 35
    SELL, SELH = 16, 20
    M = 36; Q = 40
    uid = [0]
    def U(): uid[0] += 1; return uid[0]
    def v4(r): return f"v[{r}:{r+3}]"
    def stamp(i):
        if stamps: A(f"s_memrealtime s[{80+2*i}:{81+2*i}]")
    def store_stamps(n):
        if not stamps: return
        A("""
        s_waitcnt lgkmcnt(0)
        s_lshl_b32 s8, s2, 10
        s_lshl_b32 s9, s3, 7
        s_add_u32 s8, s8, s9
        s_add_u32 s8, s8, 0x2000000
        v_mov_b32 v44, s8
        s_mov_b64 exec, 1
        """)
        for i in range(n):
            A(f"v_mov_b32 v45, s{80+2*i}"); A(f"global_store_dword v44, v45, s[40:41] offset:{4*i}"); A("s_nop 0")
        A("s_getreg_b32 s9, hwreg(HW_REG_XCC_ID)"); A("v_mov_b32 v45, s9"); A("global_store_dword v44, v45, s[40:41] offset:120")
        A("s_mov_b64 exec, -1")
    def lds_spin(off, cond, sleep, val=None):
        t = U()
        A(f"""
        v_mov_b32 v44, 0
        s_mov_b32 s73, {SPIN}
        L_sp{t}:
        ds_read_b32 v45, v44 offset:{off}
        s_waitcnt lgkmcnt(0)
        v_readfirstlane_b32 s8, v45
        """)
        if cond == "nz": A("s_cmp_lg_u32 s8, 0")
        else: A(f"s_cmp_ge_u32 s8, {val}")
        A(f"""
        s_cbranch_scc1 L_sp{t}_ok
        s_sleep {sleep}
        s_sub_u32 s73, s73, 1
        s_cbranch_scc0 L_sp{t}
        L_sp{t}_ok:
        """)
    def hbarrier(n, sleep=1):
        A(f"""
        s_waitcnt lgkmcnt(0)
        v_mov_b32 v44, 0
        v_mov_b32 v45, 1
        s_mov_b64 exec, 1
        ds_add_u32 v44, v45 offset:{CNTH}
        s_mov_b64 exec, -1
        """)
        lds_spin(CNTH, "ge", sleep, 4 * n)
    def perms(xreg, hi, aset):
        sel = SELH if hi else SELL
        for r in range(4): A(f"v_perm_b32 v{aset+r}, v{xreg}, v{xreg}, v{sel+r}")
    def pk(d, a, b): A(f"v_pk_add_f32 v[{d}:{d+1}], v[{a}:{a+1}], v[{b}:{b+1}]")
    def mfma(d, a, b, c): A(f"v_mfma_f32_16x16x32_bf16 {v4(d)}, {v4(a)}, {v4(b)}, {c}")
    def rowreduce(op, reg):
        A(f"{op}_dpp v{reg}, v{reg}, v{reg} row_ror:8 row_mask:0xf bank_mask:0xf")
        A(f"{op}_dpp v{reg}, v{reg}, v{reg} row_ror:4 row_mask:0xf bank_mask:0xf")
        A(f"{op}_dpp v{reg}, v{reg}, v{reg} quad_perm:[2,3,0,1] row_mask:0xf bank_mask:0xf")
        A(f"{op}_dpp v{reg}, v{reg}, v{reg} quad_perm:[1,0,3,2] row_mask:0xf bank_mask:0xf")
    def wavereduce(op, reg):
        rowreduce(op, reg)
        for k in range(4): A(f"v_readlane_b32 s{8+k}, v{reg}, {16*k}")
        A(f"v_mov_b32 v{reg}, s8")
        for k in range(1, 4): A(f"{op} v{reg}, s{8+k}, v{reg}")
    def check_tags(tags, okl):
        A(f"v_cmp_ne_u32 s[78:79], s74, v{tags[0]}")
        for t in tags[1:]:
            A(f"v_cmp_ne_u32 vcc, s74, v{t}")
            A("s_or_b64 s[78:79], s[78:79], vcc")
        A("s_cmp_eq_u64 s[78:79], 0")
        A(f"s_cbranch_scc1 {okl}")
    def blk(sj, soff, snch, smask):
        A(f"""
        s_cmp_ge_u32 {sj}, 1
        s_cselect_b32 {soff}, 1, 0
        s_add_u32 {soff}, {soff}, {sj}
        s_cmp_ge_u32 {sj}, 5
        s_addc_u32 {soff}, {soff}, 0
        s_lshl_b32 {soff}, {soff}, 7
        s_and_b32 {snch}, {sj}, 3
        s_cmp_eq_u32 {snch}, 0
        s_cselect_b32 {snch}, 16, 8
        s_cselect_b32 {smask}, -1, 0xffff
        """)
    TG = 28
    def tag4(d, tg=TG):
        for k in range(4): A(f"v_and_or_b32 v{d+k}, v{d+k}, s75x, v{tg+k}".replace("s75x", "s14"))
    def settags(nonce_v, tg):
        A("s_mov_b32 s14, 0xffffff00")
        A(f"v_and_b32 v{tg}, 0xff, v{nonce_v}")
        for k in range(1, 4): A(f"v_bfe_u32 v{tg+k}, v{nonce_v}, {8*k}, 8")
    def chk4(quads, okl, tmp=44):
        A("s_mov_b32 s12, 0x0c0c0400"); A("s_mov_b32 s13, 0x04000c0c")
        for i, d in enumerate(quads):
            A(f"v_perm_b32 v{tmp}, v{d+1}, v{d}, s12")
            A(f"v_perm_b32 v{tmp+1}, v{d+3}, v{d+2}, s13")
            A(f"v_or_b32 v{tmp}, v{tmp}, v{tmp+1}")
            if i == 0: A(f"v_cmp_ne_u32 s[78:79], s74, v{tmp}")
            else:
                A(f"v_cmp_ne_u32 vcc, s74, v{tmp}"); A("s_or_b64 s[78:79], s[78:79], vcc")
        A("s_cmp_eq_u64 s[78:79], 0"); A(f"s_cbranch_scc1 {okl}")
    def probe(addr_v, mask, sleep):
        t = U()
        A(f"""
        s_mov_b32 s73, {SPIN}
        s_and_b32 s15, s74, 0xff
        s_mov_b64 exec, {mask:#x}
        L_pr{t}:
        global_load_dword v45, v{addr_v}, s[40:41] sc1
        s_waitcnt vmcnt(0)
        v_and_b32 v45, 0xff, v45
        v_cmp_ne_u32 vcc, s15, v45
        s_cmp_eq_u64 vcc, 0
        s_cbranch_scc1 L_pr{t}_ok
        s_sleep {sleep}
        s_sub_u32 s73, s73, 1
        s_cbranch_scc0 L_pr{t}
        L_pr{t}_ok:
        s_mov_b64 exec, -1
        """)

    A("""
    s_cmp_ge_u32 s2, 256
    s_cbranch_scc1 L_end
    s_load_dwordx16 s[16:31], s[0:1], 0
    s_load_dwordx8 s[32:39], s[0:1], 64
    s_load_dwordx2 s[40:41], s[0:1], 96
    """)
    stamp(0)
    if opt.get("delaywg") is not None:
        A(f"s_cmp_eq_u32 s2, {int(opt['delaywg'])}"); A("s_cbranch_scc0 L_nodelay"); A("s_mov_b32 s8, 60")
        A("L_dly:"); A("s_sleep 64"); A("s_sub_u32 s8, s8, 1"); A("s_cbranch_scc0 L_dly"); A("L_nodelay:")
    EB = opt.get("eb", "0") in ("1", True)
    EB_A = "s_barrier" if EB else ""
    DUAL = opt.get("dual", "1") in ("1", True)
    MAP = opt.get("map", "loc")
    if MAP == "loc":
        MAPCODE = """s_and_b32 s4, s2, 31
    s_lshr_b32 s5, s2, 6
    s_bfe_u32 s6, s2, 0x10005
    s_lshl_b32 s7, s5, 5
    s_add_u32 s7, s7, s4"""; PX_ = 32
    else:
        MAPCODE = """s_lshr_b32 s8, s2, 1
    s_xor_b32 s9, s8, s2
    s_and_b32 s9, s9, 1
    s_and_b32 s6, s8, 1
    s_lshr_b32 s8, s2, 2
    s_lshl_b32 s8, s8, 1
    s_add_u32 s7, s8, s9
    s_and_b32 s4, s7, 31
    s_lshr_b32 s5, s7, 5"""; PX_ = 3
    if stamps and opt.get("clk"): A("s_memtime s[100:101]")
    A(f"""
    v_lshrrev_b32 v3, 6, v0
    v_and_b32 v1, 63, v0
    v_readfirstlane_b32 s3, v3
    v_mov_b32 v4, 0
    v_mov_b32 v5, 0
    v_mov_b32 v6, 0
    v_mov_b32 v7, 0
    s_cmp_eq_u32 s3, 4
    s_cbranch_scc0 L_noz
    s_mov_b64 exec, 1
    ds_write_b128 v4, v[4:7] offset:0
    ds_write_b128 v4, v[4:7] offset:16
    s_mov_b64 exec, -1
    {"s_waitcnt lgkmcnt(0)" if EB else ""}
    L_noz:
    {"s_waitcnt lgkmcnt(0)" if False else ""}
    {EB_A}
    {MAPCODE}
    v_lshrrev_b32 v{vG}, 4, v1
    v_and_b32 v{vC}, 15, v1
    s_cmp_ge_u32 s3, 4
    s_cbranch_scc1 L_H
    """)
    A(f"""
    s_lshl_b32 s9, s3, 12
    v_lshlrev_b32 v2, 4, v1
    v_add_u32 v2, s9, v2
    s_lshl_b32 s8, s7, 20
    s_cmp_eq_u32 s6, 0
    s_cselect_b32 s64, 0, {(32 if opt.get("fwd") else 63)*16384}
    s_mov_b32 s9, 16384
    s_cselect_b32 s43, s9, {(16384 if opt.get("fwd") else -16384) & 0xffffffff:#x}
    s_waitcnt lgkmcnt(0)
    s_add_u32 s52, s18, s8
    s_addc_u32 s53, s19, 0
    s_and_b32 s53, s53, 0xffff
    s_mov_b32 s54, 0x100000
    s_mov_b32 s55, 0x20000
    s_add_u32 s56, s20, s8
    s_addc_u32 s57, s21, 0
    s_and_b32 s57, s57, 0xffff
    s_mov_b32 s58, 0x100000
    s_mov_b32 s59, 0x20000
    s_mov_b32 s65, s64
    {"" if EB else "s_barrier"}
    """)
    vq = VMQ(A)
    def slot(sl): return 128 + 4 * sl if sl < 32 else 64 + 4 * (sl - 32)
    def kslot(i): return slot(i % WK)
    RING = opt.get("ring", "0") in ("1", True)
    if RING: WV = WK
    DEPTH = int(opt.get("depth", 6))
    CTL = opt.get("ctl", "0") in ("1", True)
    DSH = int(opt.get("dsh", 5))
    CMASK = int(opt.get("cmask", "0x7f"), 0); CTHR = int(opt.get("cthr", 4))
    L3 = opt.get("l3", "0") in ("1", True); DMID = int(opt.get("dmid", 6)); CT2 = int(opt.get("ct2", 5))
    CKS = [int(x) for x in opt.get("cks", "64,96,128,160,192,224").split(",")]
    ctl_on = [False]
    cur_pos = [0]
    POS2 = int(opt.get("pos2", 999)); DSH2 = int(opt.get("dsh2", 4)); DEPTH2 = int(opt.get("depth2", 0))
    DSH_0, DEPTH_0 = DSH, DEPTH
    def pace():
        nonlocal DSH, DEPTH
        if cur_pos[0] >= POS2: DSH, DEPTH = DSH2, DEPTH2
        else: DSH, DEPTH = DSH_0, DEPTH_0
        if not (CTL and ctl_on[0]):
            vq.pace(int(opt.get("d0", DEPTH))); return
        if L3:
            t = U()
            if len(vq.q) >= DSH:
                A("s_cmp_ge_u32 s76, 2"); A(f"s_cbranch_scc1 L_pc{t}")
                if len(vq.q) >= DMID: A(f"s_waitcnt vmcnt({DMID-1})")
                A("s_cmp_ge_u32 s76, 1"); A(f"s_cbranch_scc1 L_pc{t}"); A(f"s_waitcnt vmcnt({DSH-1})"); A(f"L_pc{t}:")
        elif len(vq.q) >= DSH:
            t = U()
            A("s_cmp_lg_u32 s76, 0"); A(f"s_cbranch_scc1 L_pc{t}"); A(f"s_waitcnt vmcnt({DSH-1})"); A(f"L_pc{t}:")
        vq.pace(DEPTH)
    def ctl_step(pos):
        cur_pos[0] = pos
        if not CTL: return
        if pos in CKS:
            A("s_mov_b64 exec, 1"); A(f"ds_add_u32 v17, v19 offset:{CKC}"); A("s_mov_b64 exec, -1")
        if pos >= CKS[0] and pos % 8 == 0:
            A("s_waitcnt lgkmcnt(0)"); A("v_readfirstlane_b32 s76, v18"); A(f"ds_read_b32 v18, v17 offset:{MODE}")
            ctl_on[0] = True
    def kload(i):
        pace()
        if i % 4 == 0 and i > 0: A("s_add_u32 s65, s65, s43")
        A(f"buffer_load_dwordx4 {v4(kslot(i))}, v2, s[52:55], s65 offen offset:{(i%4)*1024} {KVF}")
        vq.issue(("K", i))
    def vslot(v): return slot((128 + v) % WK) if RING else slot(v % WV)
    def vload(v):
        pace()
        if v == 0: A("s_mov_b32 s65, s64")
        elif v % 4 == 0: A("s_add_u32 s65, s65, s43")
        A(f"buffer_load_dwordx4 {v4(vslot(v))}, v2, s[56:59], s65 offen offset:{(v%4)*1024} {KVF}")
        vq.issue(("V", v))
    for i in range(WK): kload(i)
    A(f"""
    v_and_b32 v44, 1, v{vC}
    v_cmp_eq_u32 vcc, 1, v44
    v_mov_b32 v45, 0x0000ffff
    v_mov_b32 v46, 0xffff0000
    v_cndmask_b32 v47, v45, v46, vcc
    v_bfe_u32 v44, v{vC}, 1, 2
    v_mov_b32 v46, 0
    """)
    for r in range(4):
        A(f"v_cmp_eq_u32 vcc, {r}, v44")
        A(f"v_cndmask_b32 v{M+r}, v46, v47, vcc")
    A(f"""
    s_mov_b32 s42, {f2u(CSC):#x}
    s_mov_b32 s66, 0xcccccccc
    s_mov_b32 s67, 0xcccccccc
    s_mov_b32 s68, 0xaaaaaaaa
    s_mov_b32 s69, 0xaaaaaaaa
    """)
    A("v_mov_b32 v17, 0"); A("v_mov_b32 v18, 0"); A("v_mov_b32 v19, 1"); A("s_mov_b32 s76, 0")
    lds_spin(QRDY, "nz", 2)
    A(f"""
    v_lshlrev_b32 v46, 4, v{vC}
    ds_read_b128 {v4(Q)}, v46 offset:{QB}
    ds_read_b32 v16, v44 offset:{NONCE}
    s_waitcnt lgkmcnt(0)
    """)
    stamp(1)
    T = 48
    def reduce16(dest):
        for a in range(8):
            A(f"v_add_f32_dpp v{T+a}, v{T+a}, v{T+a} row_ror:8 row_mask:0xf bank_mask:0x3")
            A(f"v_add_f32_dpp v{T+a}, v{T+a+8}, v{T+a+8} row_ror:8 row_mask:0xf bank_mask:0xc")
        for a in range(4):
            A(f"v_add_f32_dpp v{T+a}, v{T+a}, v{T+a} row_half_mirror row_mask:0xf bank_mask:0x5")
            A(f"v_add_f32_dpp v{T+a}, v{T+a+4}, v{T+a+4} row_half_mirror row_mask:0xf bank_mask:0xa")
        for a in range(2):
            A(f"v_cndmask_b32 v{44+2*a}, v{T+a}, v{T+a+2}, s[66:67]")
            A(f"v_cndmask_b32 v{45+2*a}, v{T+a+2}, v{T+a}, s[66:67]")
        for a in range(2):
            A(f"v_add_f32_dpp v{T+a}, v{45+2*a}, v{44+2*a} quad_perm:[2,3,0,1] row_mask:0xf bank_mask:0xf")
        A(f"v_cndmask_b32 v44, v{T}, v{T+1}, s[68:69]")
        A(f"v_cndmask_b32 v45, v{T+1}, v{T}, s[68:69]")
        A(f"v_add_f32_dpp v{dest}, v45, v44 quad_perm:[1,0,3,2] row_mask:0xf bank_mask:0xf")
    SC = 24
    nv = 0
    for j in range(0, 128, 2):
        vq.wait(("K", j + 1))
        for r in range(4 if not opt.get("nodot") else 0):
            for jj in (j, j+1):
                t = T + (jj & 15)
                c = "0" if r == 0 else f"v{t}"
                A(f"v_dot2_f32_bf16 v{t}, v{kslot(jj)+r}, v{Q+r}, {c}")
        for jj in (j, j+1):
            if jj + WK < 128: kload(jj + WK)
            else: vload(nv); nv += 1
        if (j + 1) % 16 == 15 and not opt.get("nodot"): reduce16(SC + (j >> 4))
        ctl_step(j + 2)
        if FINE and (j + 2) % 32 == 0: stamp(1 + (j + 2) // 32)
    if not FINE: stamp(2)
    B = Asm(); _A = A
    sm = []
    class Cap:
        def __call__(self, s):
            for l in s.split("\n"):
                if l.strip(): sm.append(l.strip())
    A = Cap()
    A(f"""
    v_max3_f32 v44, v{SC}, v{SC+1}, v{SC+2}
    v_max3_f32 v44, v44, v{SC+3}, v{SC+4}
    v_max3_f32 v44, v44, v{SC+5}, v{SC+6}
    v_max_f32 v44, v44, v{SC+7}
    """)
    wavereduce("v_max_f32", 44)
    A("v_mul_f32 v46, s42, v44")
    for k in range(8): A(f"v_fma_f32 v{SC+k}, v{SC+k}, s42, -v46")
    for k in range(8): A(f"v_exp_f32 v{SC+k}, v{SC+k}")
    A(f"""
    v_add_f32 v47, v{SC}, v{SC+1}
    v_add_f32 v44, v{SC+2}, v{SC+3}
    v_add_f32 v45, v{SC+4}, v{SC+5}
    v_add_f32 v48, v{SC+6}, v{SC+7}
    v_add_f32 v47, v47, v44
    v_add_f32 v45, v45, v48
    v_add_f32 v47, v47, v45
    """)
    wavereduce("v_add_f32", 47)
    for k in range(8): A(f"v_cvt_pk_bf16_f32 v{SC+k}, v{SC+k}, v{SC+k}")
    A = _A
    extra = WV - nv
    step = max(1, len(sm) // (extra + 1)) if extra > 0 else 0
    for i, l in enumerate(sm):
        A(l)
        if extra > 0 and (i + 1) % step == 0 and nv < WV: vload(nv); nv += 1
    while nv < WV: vload(nv); nv += 1
    A(f"""
    s_lshl_b32 s8, s3, 3
    v_mov_b32 v44, s8
    v_mov_b32 v45, 1
    v_mov_b32 v48, 0
    s_mov_b64 exec, 1
    ds_write_b64 v44, v[46:47] offset:{ST}
    ds_add_u32 v48, v45 offset:{CNTK}
    s_mov_b64 exec, -1
    """)
    A("; ----- V phase -----")
    for r in range(4): A(f"v_mov_b32 v{4+r}, 0")
    def abuild(v, aset):
        p, jj = SC + (v >> 4), v & 15
        for q in range(4):
            A(f"v_and_b32_dpp v{aset+q}, v{p}, v{M+q} row_newbcast:{jj} row_mask:0xf bank_mask:0xf")
    abuild(0, 8)
    for v in range(128):
        if FINE and v in (32, 64, 96): stamp(5 + v // 32)
        if v == 96:
            lds_spin(SCRDY, "nz", 2)
            A(f"""
            s_lshl_b32 s8, s3, 2
            v_mov_b32 v44, s8
            ds_read_b32 v50, v44 offset:{SCALE}
            v_lshlrev_b32 v60, 5, v{vC}
            v_lshlrev_b32 v61, 4, v{vG}
            v_add_u32 v60, v60, v61
            s_lshl_b32 s8, s3, 9
            v_add_u32 v60, s8, v60
            v_lshlrev_b32 v61, 4, v1
            s_lshl_b32 s8, s7, 1
            s_add_u32 s8, s8, s6
            s_lshl_b32 s8, s8, 9
            s_add_u32 s8, s8, {OX}
            v_add_u32 v62, s8, v61
            v_add_u32 v63, {(OXA - OX) & 0xffffffff:#x}, v62
            """)
            settags(16, 20)
        if v + 1 < 128 and not opt.get("nomfma"): abuild(v + 1, 8 + 4*((v+1) & 1))
        vq.wait(("V", v))
        if not opt.get("nomfma"): mfma(4, 8 + 4*(v & 1), vslot(v), "v[4:7]")
        if v + WV < 128: vload(v + WV)
        ctl_step(128 + v + 1)
    stamp(9 if FINE else 3)
    if stamps and opt.get("clk"):
        A("s_memtime s[76:77]"); A("s_waitcnt lgkmcnt(0)"); A("s_sub_u32 s76, s76, s100")
        A("s_lshl_b32 s8, s2, 10"); A("s_lshl_b32 s9, s3, 7"); A("s_add_u32 s8, s8, s9"); A("s_add_u32 s8, s8, 0x2000000")
        A("v_mov_b32 v44, s8"); A("v_mov_b32 v45, s76"); A("s_mov_b64 exec, 1"); A("global_store_dword v44, v45, s[40:41] offset:80"); A("s_mov_b64 exec, -1")
    A("s_waitcnt lgkmcnt(0)")
    for r in range(4): A(f"v_mul_f32 v{4+r}, v{4+r}, v50")
    A(f"""
    s_mov_b32 exec_hi, 0
    ds_write_b128 v60, v[4:7] offset:{OP}
    s_waitcnt lgkmcnt(0)
    s_barrier
    s_cmp_eq_u32 s3, 0
    s_cbranch_scc0 L_sexit
    """)
    for w in range(4): A(f"ds_read_b128 {v4(128+4*w)}, v61 offset:{OP+512*w}")
    A("s_waitcnt lgkmcnt(0)")
    for k in (0, 2):
        pk(128+k, 128+k, 132+k); pk(136+k, 136+k, 140+k); pk(128+k, 128+k, 136+k)
    tag4(128, 20)
    if DUAL: A("global_store_dwordx4 v63, v[128:131], s[40:41]")
    A(f"""
    global_store_dwordx4 v62, v[128:131], s[40:41] sc1
    L_sexit:
    s_mov_b32 exec_hi, -1
    """)
    store_stamps(10 if FINE else 4)
    A("s_endpgm")

    A("L_H:")
    SELX = 24
    A(f"""
    s_setprio 3
    s_sub_u32 s71, s3, 4
    s_lshl_b32 s72, s5, 1
    s_add_u32 s72, s72, s6
    v_and_b32 v44, 1, v{vC}
    v_cmp_eq_u32 vcc, 1, v44
    v_mov_b32 v45, 0x0c0c0100
    v_mov_b32 v46, 0x01000c0c
    v_cndmask_b32 v47, v45, v46, vcc
    v_mov_b32 v45, 0x0c0c0302
    v_mov_b32 v46, 0x03020c0c
    v_cndmask_b32 v48, v45, v46, vcc
    v_bfe_u32 v44, v{vC}, 1, 2
    v_mov_b32 v45, 0x0c0c0c0c
    v_cmp_gt_u32 s[12:13], 8, v{vC}
    """)
    for r in range(4):
        A(f"v_cmp_eq_u32 vcc, {r}, v44")
        A(f"v_cndmask_b32 v{SELL+r}, v45, v47, vcc")
        A(f"v_cndmask_b32 v{SELH+r}, v45, v48, vcc")
        A(f"v_cndmask_b32 v{SELX+r}, v{SELH+r}, v{SELL+r}, s[12:13]")
    A(f"""
    s_lshr_b32 s8, s72, 1
    s_mul_i32 s8, s8, 160
    s_mul_i32 s9, s71, 40
    s_add_u32 s8, s8, s9
    v_mul_u32_u24 v44, 10, v{vG}
    v_add_u32 v44, s8, v44
    v_lshlrev_b32 v46, 1, v44
    v_lshrrev_b32 v45, 3, v{vC}
    v_add_u32 v45, v44, v45
    v_lshlrev_b32 v45, 13, v45
    v_and_b32 v47, 7, v{vC}
    v_lshlrev_b32 v47, 4, v47
    v_add_u32 v48, v45, v47
    s_waitcnt lgkmcnt(0)
    s_or_b32 s8, s2, s71
    s_cmp_eq_u32 s8, 0
    s_cbranch_scc0 L_nononce
    s_memrealtime s[8:9]
    s_waitcnt lgkmcnt(0)
    s_or_b32 s8, s8, 1
    s_mul_i32 s8, s8, 0x9e3779b1
    v_mov_b32 v44, 0
    v_mov_b32 v50, s8
    v_mov_b32 v51, 0
    s_mov_b64 exec, 1
    global_atomic_cmpswap v44, v[50:51], s[38:39]
    s_mov_b64 exec, -1
    L_nononce:
    s_mov_b32 s44, s16
    s_and_b32 s45, s17, 0xffff
    s_mov_b32 s46, 5120
    s_mov_b32 s47, 0x20000
    s_lshl_b32 s8, s4, 8
    s_and_b32 s9, s72, 1
    s_lshl_b32 s9, s9, 7
    s_add_u32 s8, s8, s9
    s_add_u32 s48, s22, s8
    s_addc_u32 s49, s23, 0
    s_and_b32 s49, s49, 0xffff
    s_sub_u32 s50, 5242880, s8
    s_mov_b32 s51, 0x20000
    """)
    XQ = 56; WQr = 80
    A(f"""
    s_mul_i32 s8, s71, 1280
    v_lshlrev_b32 v44, 4, v1
    v_add_u32 v45, s8, v44
    s_add_u32 s9, s8, {XL}
    s_mov_b32 m0, s9
    s_mov_b32 s60, s34
    s_and_b32 s61, s35, 0xffff
    s_mov_b32 s62, 1280
    s_mov_b32 s63, 0x20000
    buffer_load_dwordx4 v45, s[44:47], 0 offen lds
    s_add_u32 m0, s9, 1024
    s_mov_b32 s64, 1024
    s_mov_b64 exec, 0xffff
    buffer_load_dwordx4 v45, s[44:47], s64 offen lds
    s_mov_b64 exec, -1
    s_cmp_eq_u32 s71, 0
    s_cbranch_scc0 L_nogw
    s_mov_b32 m0, {GWL}
    s_nop 0
    buffer_load_dwordx4 v44, s[60:63], 0 offen lds
    s_mov_b32 m0, {GWL+1024}
    s_mov_b64 exec, 0xffff
    buffer_load_dwordx4 v44, s[60:63], s64 offen lds
    s_mov_b64 exec, -1
    L_nogw:
    """)
    for i in range(5):
        A(f"s_mov_b32 s64, {2*i*8192}")
        A(f"buffer_load_dwordx4 {v4(WQr+4*i)}, v48, s[48:51], s64 offen {WF}")
    A("s_waitcnt lgkmcnt(0)")
    if not EB: A("s_barrier")
    A("s_waitcnt vmcnt(5)")
    hbarrier(1)
    for b in range(4): A(f"v_add_u32 v{100+b}, {XL + 1280*b}, v46")
    for b in range(4):
        A(f"ds_read2_b32 v[{XQ+6*b}:{XQ+6*b+1}], v{100+b} offset0:0 offset1:1")
        A(f"ds_read2_b32 v[{XQ+6*b+2}:{XQ+6*b+3}], v{100+b} offset0:2 offset1:3")
        A(f"ds_read_b32 v{XQ+6*b+4}, v{100+b} offset:16")
    A(f"""
    s_cmp_eq_u32 s71, 0
    s_cbranch_scc0 L_nopoll
    v_mov_b32 v44, 0
    s_mov_b32 s73, {SPIN}
    s_mov_b64 exec, 1
    L_npoll:
    global_load_dword v45, v44, s[38:39] sc1
    s_waitcnt vmcnt(0)
    v_readfirstlane_b32 s74, v45
    s_cmp_lg_u32 s74, 0
    s_cbranch_scc1 L_ngot
    s_and_b32 s8, s73, 15
    s_cmp_eq_u32 s8, 8
    s_cbranch_scc0 L_nelect
    s_memrealtime s[8:9]
    s_waitcnt lgkmcnt(0)
    s_or_b32 s8, s8, 1
    s_mul_i32 s8, s8, 0x9e3779b1
    v_mov_b32 v50, s8
    v_mov_b32 v51, 0
    global_atomic_cmpswap v44, v[50:51], s[38:39]
    L_nelect:
    s_sub_u32 s73, s73, 1
    s_cbranch_scc0 L_npoll
    L_ngot:
    v_mov_b32 v45, s74
    ds_write_b32 v44, v45 offset:{NONCE}
    s_mov_b64 exec, -1
    L_nopoll:
    """)
    A("s_waitcnt vmcnt(0) lgkmcnt(0)")
    stamp(1)
    def xq(b, i): return XQ + 6*b + i
    DQ = [4, 48, 52, 104]
    n = 0
    for i in range(5):
        for b in range(4):
            aset = 8 + 4 * (n & 1)
            for r in range(4): A(f"v_perm_b32 v{aset+r}, v{xq(b,i)}, v{xq(b,i)}, v{SELX+r}")
            mfma(DQ[b], aset, WQr + 4*i, "0" if i == 0 else v4(DQ[b]))
            n += 1
    A(f"""
    s_lshl_b32 s8, s71, 11
    v_lshrrev_b32 v45, 1, v{vG}
    v_lshlrev_b32 v45, 8, v45
    v_and_b32 v46, 7, v{vC}
    v_lshlrev_b32 v46, 5, v46
    v_add_u32 v45, v45, v46
    v_and_b32 v46, 1, v{vG}
    v_lshlrev_b32 v46, 4, v46
    v_add_u32 v45, v45, v46
    v_add_u32 v45, s8, v45
    s_mov_b32 exec_lo, 0x00ff00ff
    s_mov_b32 exec_hi, 0xff00ff00
    """)
    for b in range(4): A(f"ds_write_b128 v45, {v4(DQ[b])} offset:{GP+512*b}")
    A("s_mov_b64 exec, -1")
    hbarrier(2)
    A(f"""
    v_mov_b32 v44, 0
    ds_read_b32 v32, v44 offset:{NONCE}
    s_lshl_b32 s8, s71, 9
    v_lshlrev_b32 v45, 4, v{vC}
    v_add_u32 v45, s8, v45
    """)
    for w in range(4):
        for rho in range(2): A(f"ds_read_b128 {v4(56+8*w+4*rho)}, v45 offset:{GP+w*2048+rho*256}")
    A(f"""
    s_lshl_b32 s10, s4, 3
    s_add_u32 s10, s10, s72
    s_lshl_b32 s10, s10, 2
    s_add_u32 s10, s10, s71
    s_lshl_b32 s10, s10, 8
    s_add_u32 s10, s10, {QX}
    v_lshlrev_b32 v46, 4, v{vC}
    v_add_u32 v46, s10, v46
    s_waitcnt lgkmcnt(0)
    v_readfirstlane_b32 s74, v32
    """)
    settags(32, TG)
    def sum_quads(regs):
        regs = list(regs)
        while len(regs) > 1:
            nx = []
            for a in range(0, len(regs) - 1, 2):
                for k in (0, 2): pk(regs[a]+k, regs[a]+k, regs[a+1]+k)
                nx.append(regs[a])
            if len(regs) % 2: nx.append(regs[-1])
            regs = nx
    sum_quads([56+4*k for k in range(8)])
    tag4(56)
    A(f"""
    s_mov_b64 exec, 0xffff
    global_store_dwordx4 v46, v[56:59], s[40:41] sc1
    s_mov_b64 exec, -1
    """)
    stamp(2)
    def rows_reduce(regs):
        for r in regs: A(f"v_mov_b32 v{r+32}, v{r}")
        for r in regs: A(f"v_permlane16_swap_b32 v{r}, v{r+32}")
        for r in regs: A(f"v_add_f32 v{r}, v{r}, v{r+32}")
        for r in regs: A(f"v_mov_b32 v{r+32}, v{r}")
        for r in regs: A(f"v_permlane32_swap_b32 v{r}, v{r+32}")
        for r in regs: A(f"v_add_f32 v{r}, v{r}, v{r+32}")
    A(f"""
    s_cmp_eq_u32 s71, 0
    s_cbranch_scc0 L_noq
    s_lshl_b32 s10, s4, 5
    s_add_u32 s10, s10, s5
    s_lshl_b32 s10, s10, 8
    s_add_u32 s10, s10, {QX}
    v_lshlrev_b32 v46, 11, v{vG}
    v_lshlrev_b32 v47, 4, v{vC}
    v_add_u32 v46, v46, v47
    v_add_u32 v46, s10, v46
    s_mov_b32 s73, {SPIN}
    L_qpoll:
    {"s_sleep " + str(QSLEEP) if QSLEEP else ""}
    global_load_dwordx4 v[56:59], v46, s[40:41] sc1
    global_load_dwordx4 v[60:63], v46, s[40:41] offset:1024 sc1
    s_waitcnt vmcnt(0)
    """)
    chk4([56, 60], "L_qok")
    A(f"""
    s_sub_u32 s73, s73, 1
    s_cbranch_scc0 L_qpoll
    L_qok:
    """)
    rows_reduce(range(56, 64))
    A(f"""
    v_cvt_pk_bf16_f32 v56, v56, v57
    v_cvt_pk_bf16_f32 v57, v58, v59
    v_cvt_pk_bf16_f32 v58, v60, v61
    v_cvt_pk_bf16_f32 v59, v62, v63
    v_lshlrev_b32 v45, 3, v{vC}
    v_mov_b32 v44, 0
    v_mov_b32 v47, 1
    s_mov_b64 exec, 0xffff
    ds_write_b64 v45, v[56:57] offset:{QB}
    ds_write_b64 v45, v[58:59] offset:{QB+128}
    s_mov_b64 exec, 1
    ds_write_b32 v44, v47 offset:{QRDY}
    s_mov_b64 exec, -1
    L_noq:
    """)
    stamp(3)
    def idle_end():
        A(f"""
        v_mov_b32 v44, 0
        v_mov_b32 v45, 1
        v_mov_b32 v46, 1.0
        ds_write_b32 v44, v46 offset:{SCALE}
        ds_write_b32 v44, v46 offset:{SCALE+4}
        ds_write_b32 v44, v46 offset:{SCALE+8}
        ds_write_b32 v44, v46 offset:{SCALE+12}
        ds_write_b32 v44, v45 offset:{SCRDY}
        s_waitcnt lgkmcnt(0)
        s_barrier
        s_branch L_hend
        """)
    HST = int(opt.get("hstop", 0))
    if opt.get("hidle"): idle_end()
    A(f"""
    s_setprio {BP}
    s_lshr_b32 s8, s2, 3
    s_and_b32 s9, s8, 3
    s_lshl_b32 s9, s9, 1
    s_add_u32 s9, s9, 1
    s_and_b32 s10, s2, 7
    s_mul_i32 s8, s8, 7
    s_add_u32 s8, s8, s10
    s_cmp_gt_u32 s10, s9
    s_cselect_b32 s11, 1, 0
    s_sub_u32 s8, s8, s11
    s_lshr_b32 s76, s8, 3
    s_and_b32 s77, s8, 7
    s_cmp_lt_u32 s8, 216
    s_cselect_b32 s75, 1, 0
    s_cmp_eq_u32 s10, s9
    s_cselect_b32 s75, 0, s75
    """)
    if opt.get("noffn"): A("s_mov_b32 s75, 0")
    blk("s72", "s66", "s67", "s68")
    blk("s77", "s65", "s69", "s70")
    A(f"""
    s_mul_i32 s8, s4, 163840
    s_add_u32 s8, s8, s66
    s_add_u32 s48, s24, s8
    s_addc_u32 s49, s25, 0
    s_and_b32 s49, s49, 0xffff
    s_sub_u32 s50, 5242880, s8
    s_mov_b32 s51, 0x20000
    v_mul_u32_u24 v46, 2560, v{vG}
    v_lshlrev_b32 v47, 4, v{vC}
    v_add_u32 v46, v46, v47
    s_mul_i32 s8, s71, {32*1280}
    v_add_u32 v46, s8, v46
    v_mov_b32 v47, 0x7ff00000
    v_cmp_gt_u32 vcc, s67, v{vC}
    v_cndmask_b32 v46, v47, v46, vcc
    s_lshl_b32 s9, s71, 13
    s_add_u32 s9, s9, {WOL}
    """)
    WOM = opt.get("wom", "dma"); HP = int(opt.get("hp", 0))
    for i in range(8 if HST != 1 else 0):
        t, s_ = i >> 1, i & 1
        if WOM == "dma":
            A(f"s_add_u32 m0, s9, {i*1024}")
            A(f"s_mov_b32 s64, {(8*t+s_)*1280}")
            if HP and i >= HP: A(f"s_waitcnt vmcnt({HP-1})")
            A(f"buffer_load_dwordx4 v46, s[48:51], s64 offen {WF} lds")
        elif WOM == "dmax":
            A("s_mov_b32 exec_lo, 0x03ff03ff"); A("s_mov_b32 exec_hi, 0x03ff03ff")
            A(f"s_add_u32 m0, s9, {i*1024}")
            A(f"s_mov_b32 s64, {(8*t+s_)*1280}")
            A(f"buffer_load_dwordx4 v46, s[48:51], s64 offen {WF} lds")
            A("s_mov_b64 exec, -1")
        else:
            A(f"s_mov_b32 s64, {(8*t+s_)*1280}")
            A(f"buffer_load_dwordx4 {v4(192+4*i)}, v46, s[48:51], s64 offen {WF}")
    W1r = 96; W2r = 120
    A("s_cmp_eq_u32 s75, 1"); A("s_cbranch_scc0 L_nobulk")
    A(f"""
    s_and_b32 s8, s77, 1
    s_cmp_eq_u32 s8, 0
    s_cselect_b32 s60, s28, s30
    s_cselect_b32 s61, s29, s31
    s_lshl_b32 s8, s76, 7
    s_add_u32 s60, s60, s8
    s_addc_u32 s61, s61, 0
    s_and_b32 s61, s61, 0xffff
    s_sub_u32 s62, {640*3456}, s8
    s_mov_b32 s63, 0x20000
    s_lshr_b32 s8, s77, 1
    s_mul_i32 s8, s8, 160
    s_mul_i32 s9, s71, 40
    s_add_u32 s8, s8, s9
    v_mul_u32_u24 v44, 10, v{vG}
    v_add_u32 v44, s8, v44
    v_lshlrev_b32 v41, 1, v44
    v_lshrrev_b32 v45, 3, v{vC}
    v_add_u32 v45, v44, v45
    v_mul_u32_u24 v45, 3456, v45
    v_and_b32 v47, 7, v{vC}
    v_lshlrev_b32 v47, 4, v47
    v_add_u32 v45, v45, v47
    """)
    for i in range(5):
        A(f"s_mov_b32 s64, {2*i*3456}")
        if HP: A(f"s_waitcnt vmcnt({HP-1})")
        A(f"buffer_load_dwordx4 {v4(W1r+4*i)}, v45, s[60:63], s64 offen {WF}")
    A(f"""
    s_lshl_b32 s8, s76, 6
    s_lshl_b32 s9, s71, 4
    s_add_u32 s8, s8, s9
    s_mul_i32 s8, s8, 1280
    s_add_u32 s8, s8, s65
    s_add_u32 s60, s32, s8
    s_addc_u32 s61, s33, 0
    s_and_b32 s61, s61, 0xffff
    s_sub_u32 s62, {1728*1280}, s8
    s_mov_b32 s63, 0x20000
    v_mul_u32_u24 v46, 2560, v{vG}
    v_lshlrev_b32 v47, 4, v{vC}
    v_add_u32 v46, v46, v47
    v_mov_b32 v47, 0x7ff00000
    v_cmp_gt_u32 vcc, s69, v{vC}
    v_cndmask_b32 v46, v47, v46, vcc
    """)
    for ts in range(4):
        A(f"s_mov_b32 s64, {(8*(ts>>1)+(ts&1))*1280}")
        if HP: A(f"s_waitcnt vmcnt({HP-1})")
        A(f"buffer_load_dwordx4 {v4(W2r+4*ts)}, v46, s[60:63], s64 offen {WF}")
    A("L_nobulk:")
    A("s_waitcnt vmcnt(0)")
    if WOM == "reg" and HST != 1:
        A(f"""
        s_lshl_b32 s9, s71, 13
        s_add_u32 s9, s9, {WOL}
        v_lshlrev_b32 v45, 4, v1
        v_add_u32 v45, s9, v45
        """)
        for i in range(8): A(f"ds_write_b128 v45, {v4(192+4*i)} offset:{1024*i}")
    A(f"""
    v_mul_u32_u24 v44, 20, v1
    s_mul_i32 s8, s71, 1280
    s_add_u32 s8, s8, {XL}
    v_add_u32 v45, s8, v44
    v_add_u32 v44, {GWL}, v44
    ds_read2_b32 v[36:37], v45 offset0:0 offset1:1
    ds_read2_b32 v[38:39], v45 offset0:2 offset1:3
    ds_read_b32 v40, v45 offset:16
    ds_read2_b32 v[48:49], v44 offset0:0 offset1:1
    ds_read2_b32 v[50:51], v44 offset0:2 offset1:3
    ds_read_b32 v52, v44 offset:16
    s_waitcnt lgkmcnt(0)
    """)
    A("v_dot2_f32_bf16 v33, v36, v48, 0")
    for t in range(1, 5): A(f"v_dot2_f32_bf16 v33, v{36+t}, v{48+t}, v33")
    wavereduce("v_add_f32", 33)
    A(f"""
    v_mul_f32 v33, {f2u(-LOG2E):#x}, v33
    v_exp_f32 v33, v33
    v_add_f32 v33, 1.0, v33
    v_rcp_f32 v33, v33
    v_sub_f32 v32, 1.0, v33
    s_setprio {int(opt.get("fp", 3))}
    """)
    hbarrier(3, 2)
    stamp(4)
    if HST in (1, 2): idle_end()
    A("s_cmp_eq_u32 s75, 1"); A("s_cbranch_scc0 L_noffn")
    for b in range(4): A(f"v_add_u32 v{100+16+b}, {XL + 1280*b}, v41")
    for b in range(4):
        A(f"ds_read2_b32 v[{XQ+6*b}:{XQ+6*b+1}], v{116+b} offset0:0 offset1:1")
        A(f"ds_read2_b32 v[{XQ+6*b+2}:{XQ+6*b+3}], v{116+b} offset0:2 offset1:3")
        A(f"ds_read_b32 v{XQ+6*b+4}, v{116+b} offset:16")
    A("s_waitcnt lgkmcnt(0)")
    DF = [4, 48, 52, 80]
    n = 0
    for i in range(5):
        for b in range(4):
            aset = 8 + 4 * (n & 1)
            for r in range(4): A(f"v_perm_b32 v{aset+r}, v{xq(b,i)}, v{xq(b,i)}, v{SELX+r}")
            mfma(DF[b], aset, W1r + 4*i, "0" if i == 0 else v4(DF[b]))
            n += 1
    A(f"""
    s_lshl_b32 s8, s71, 11
    v_lshrrev_b32 v45, 1, v{vG}
    v_lshlrev_b32 v45, 8, v45
    v_and_b32 v46, 7, v{vC}
    v_lshlrev_b32 v46, 5, v46
    v_add_u32 v45, v45, v46
    v_and_b32 v46, 1, v{vG}
    v_lshlrev_b32 v46, 4, v46
    v_add_u32 v45, v45, v46
    v_add_u32 v45, s8, v45
    s_mov_b32 exec_lo, 0x00ff00ff
    s_mov_b32 exec_hi, 0xff00ff00
    """)
    for b in range(4): A(f"ds_write_b128 v45, {v4(DF[b])} offset:{GP+512*b}")
    A("s_mov_b64 exec, -1")
    hbarrier(4)
    A(f"""
    s_lshl_b32 s8, s71, 9
    v_lshlrev_b32 v45, 4, v{vC}
    v_add_u32 v45, s8, v45
    """)
    for w in range(4):
        for rho in range(2): A(f"ds_read_b128 {v4(56+8*w+4*rho)}, v45 offset:{GP+w*2048+rho*256}")
    A(f"""
    s_lshl_b32 s10, s76, 3
    s_add_u32 s10, s10, s77
    s_lshl_b32 s10, s10, 2
    s_add_u32 s10, s10, s71
    s_lshl_b32 s10, s10, 8
    s_add_u32 s10, s10, {FX}
    v_lshlrev_b32 v46, 4, v{vC}
    v_add_u32 v46, s10, v46
    s_waitcnt lgkmcnt(0)
    """)
    sum_quads([56+4*k for k in range(8)])
    tag4(56)
    A(f"""
    s_mov_b64 exec, 0xffff
    global_store_dwordx4 v46, v[56:59], s[40:41] sc1
    s_mov_b64 exec, -1
    s_lshl_b32 s10, s76, 5
    s_add_u32 s10, s10, s71
    s_lshl_b32 s10, s10, 8
    s_add_u32 s10, s10, {FX}
    v_lshlrev_b32 v46, 11, v{vG}
    v_lshlrev_b32 v47, 4, v{vC}
    v_add_u32 v46, v46, v47
    v_add_u32 v46, s10, v46
    s_mov_b32 s73, {SPIN}
    L_fpoll:
    s_sleep {FSL}
    global_load_dwordx4 v[60:63], v46, s[40:41] offset:1024 sc1
    global_load_dwordx4 v[56:59], v46, s[40:41] sc1
    s_waitcnt vmcnt(0)
    """)
    chk4([56, 60], "L_fok")
    A(f"""
    s_sub_u32 s73, s73, 1
    s_cbranch_scc0 L_fpoll
    L_fok:
    """)
    rows_reduce(range(56, 64))
    for k in range(4): A(f"v_mul_f32 v{64+k}, {f2u(-LOG2E):#x}, v{56+k}")
    for k in range(4): A(f"v_exp_f32 v{64+k}, v{64+k}")
    for k in range(4): A(f"v_add_f32 v{64+k}, 1.0, v{64+k}")
    for k in range(4): A(f"v_rcp_f32 v{64+k}, v{64+k}")
    for k in range(4): A(f"v_mul_f32 v{56+k}, v{56+k}, v{64+k}")
    for k in range(4): A(f"v_mul_f32 v{56+k}, v{56+k}, v{60+k}")
    A(f"""
    v_cvt_pk_bf16_f32 v56, v56, v57
    v_cvt_pk_bf16_f32 v57, v58, v59
    s_lshl_b32 s8, s71, 7
    v_lshlrev_b32 v45, 3, v{vC}
    v_add_u32 v45, s8, v45
    s_mov_b64 exec, 0xffff
    ds_write_b64 v45, v[56:57] offset:{HB}
    s_mov_b64 exec, -1
    """)
    hbarrier(5)
    A(f"""
    v_lshrrev_b32 v45, 3, v{vC}
    v_lshlrev_b32 v45, 7, v45
    v_lshlrev_b32 v46, 2, v{vG}
    v_add_u32 v45, v45, v46
    s_lshl_b32 s8, s71, 5
    v_add_u32 v45, s8, v45
    ds_read_b32 v56, v45 offset:{HB}
    ds_read_b32 v57, v45 offset:{HB+16}
    ds_read_b32 v58, v45 offset:{HB+256}
    ds_read_b32 v59, v45 offset:{HB+256+16}
    s_waitcnt lgkmcnt(0)
    """)
    D2 = [4, 52]
    n = 0
    for ts in range(4):
        for p in range(2):
            aset = 8 + 4 * (n & 1)
            perms(56 + 2*p + (ts >> 1), ts & 1, aset)
            mfma(D2[p], aset, W2r + 4*ts, "0" if ts == 0 else v4(D2[p]))
            n += 1
    A(f"""
    s_lshl_b32 s8, s71, 11
    s_add_u32 s8, s8, {YP2}
    v_lshlrev_b32 v45, 4, v1
    v_add_u32 v45, s8, v45
    ds_write_b128 v45, {v4(D2[0])}
    ds_write_b128 v45, {v4(D2[1])} offset:1024
    """)
    hbarrier(6)
    A(f"""
    s_lshr_b32 s8, s71, 1
    s_lshl_b32 s8, s8, 10
    s_and_b32 s9, s71, 1
    s_lshl_b32 s9, s9, 9
    s_add_u32 s8, s8, s9
    s_add_u32 s8, s8, {YP2}
    v_and_b32 v45, 1, v1
    v_lshlrev_b32 v45, 8, v45
    v_bfe_u32 v46, v1, 1, 4
    v_lshlrev_b32 v46, 4, v46
    v_add_u32 v45, v45, v46
    v_add_u32 v45, s8, v45
    """)
    for w in range(4): A(f"ds_read_b128 {v4(56+4*w)}, v45 offset:{w*2048}")
    A(f"""
    s_lshl_b32 s10, s77, 2
    s_add_u32 s10, s10, s71
    s_mul_i32 s10, s10, 27
    s_add_u32 s10, s10, s76
    s_lshl_b32 s10, s10, 9
    s_add_u32 s10, s10, {FY}
    v_lshlrev_b32 v46, 4, v1
    v_add_u32 v46, s10, v46
    s_waitcnt lgkmcnt(0)
    """)
    sum_quads([56, 60, 64, 68])
    for k in range(4): A(f"v_mul_f32 v{56+k}, v{56+k}, v32")
    tag4(56)
    A(f"""
    s_mov_b32 exec_lo, s70
    s_mov_b32 exec_hi, 0
    global_store_dwordx4 v46, v[56:59], s[40:41] sc1
    s_mov_b64 exec, -1
    """)
    A("L_noffn:")
    stamp(5)
    if opt.get("lowprio"): A("s_setprio 0")
    A("; ----- wo fragments LDS -> registers, control loop, softmax statistics exchange -----")
    WOr = 128
    A(f"""
    v_lshlrev_b32 v45, 4, v1
    v_add_u32 v45, {WOL}, v45
    """)
    for i in range(32):
        A(f"ds_read_b128 {v4(WOr+4*i)}, v45 offset:{1024*i}")
        if i % 8 == 7: A("s_waitcnt lgkmcnt(0)")
    A(f"""
    s_bfe_u32 s9, s2, 0x20003
    s_lshl_b32 s9, s9, 1
    s_add_u32 s9, s9, 1
    s_and_b32 s8, s2, 7
    s_cmp_eq_u32 s8, s9
    s_cselect_b32 s75, 1, 0
    s_lshr_b32 s76, s2, 5
    s_bfe_u32 s77, s2, 0x20003
    """)
    blk("s76", "s65", "s69", "s70")
    FSUM = 36
    M20 = 0x000fffff000fffff
    A("s_cmp_eq_u32 s75, 1"); A("s_cbranch_scc0 L_nocol")
    if not opt.get("noffn") :
        A(f"""
        s_lshl_b32 s8, s76, 2
        s_add_u32 s8, s8, s77
        s_mul_i32 s8, s8, 27
        s_add_u32 s8, s8, s71
        s_lshl_b32 s8, s8, 9
        s_add_u32 s8, s8, {FY}
        v_lshrrev_b32 v46, 5, v1
        v_lshlrev_b32 v46, 11, v46
        v_and_b32 v47, 31, v1
        v_lshlrev_b32 v47, 4, v47
        v_add_u32 v46, v46, v47
        v_add_u32 v46, s8, v46
        s_mov_b32 s73, {SPIN}
        L_cpoll:
        v_mov_b32 v48, v46
        """)
        for k in range(4):
            if k < 3: A(f"s_mov_b32 exec_lo, s70"); A("s_mov_b32 exec_hi, s70")
            else:
                A("s_cmp_lt_u32 s71, 3"); A("s_cbranch_scc0 L_cskip"); A("s_mov_b32 exec_lo, s70"); A("s_mov_b32 exec_hi, 0")
            A(f"global_load_dwordx4 {v4(56+4*k)}, v48, s[40:41] sc1")
            A("s_mov_b64 exec, -1")
            if k == 3: A("L_cskip:")
            if k < 3: A(f"v_add_u32 v48, {8*512}, v48")
        A("s_waitcnt vmcnt(0)")
        A(f"""
        v_and_b32 v44, 31, v1
        s_lshl_b32 s8, s69, 1
        v_cmp_le_u32 vcc, s8, v44
        """)
        for k in range(4):
            for r in range(4): A(f"v_cndmask_b32 v{56+4*k+r}, v{56+4*k+r}, v{TG+r}, vcc")
        A(f"""
        s_cmp_lt_u32 s71, 3
        s_cselect_b32 s8, 0xffffffff, 0
        s_mov_b32 s9, 0
        s_not_b64 vcc, s[8:9]
        """)
        for r in range(4): A(f"v_cndmask_b32 v{68+r}, v{68+r}, v{TG+r}, vcc")
        chk4([56, 60, 64, 68], "L_cok")
        A(f"""
        s_sleep 64
        s_sub_u32 s73, s73, 1
        s_cbranch_scc0 L_cpoll
        L_cok:
        """)
        sum_quads([56, 60, 64, 68])
        for r in range(4): A(f"v_mov_b32 v{60+r}, v{56+r}")
        for r in range(4): A(f"v_permlane32_swap_b32 v{56+r}, v{60+r}")
        for r in range(4): A(f"v_add_f32 v{56+r}, v{56+r}, v{60+r}")
        A(f"""
        s_lshl_b32 s8, s71, 9
        v_lshlrev_b32 v45, 4, v1
        v_add_u32 v45, s8, v45
        s_mov_b32 exec_hi, 0
        ds_write_b128 v45, v[56:59] offset:{FS}
        s_mov_b32 exec_hi, -1
        """)
        hbarrier(4)
        A(f"v_lshlrev_b32 v45, 4, v1")
        A("s_mov_b32 exec_hi, 0")
        for w in range(4): A(f"ds_read_b128 {v4(56+4*w)}, v45 offset:{FS+512*w}")
        A("s_mov_b32 exec_hi, -1")
        A("s_waitcnt lgkmcnt(0)")
        sum_quads([56, 60, 64, 68])
        for r in range(4): A(f"v_mov_b32 v{FSUM+r}, v{56+r}")
    else:
        for r in range(4): A(f"v_mov_b32 v{FSUM+r}, 0")
    A("L_nocol:")
    if CTL:
        A("s_cmp_eq_u32 s71, 1"); A("s_cbranch_scc0 L_noctl")
        A(f"""
        s_lshl_b32 s8, s2, 7
        s_add_u32 s8, s8, {PF}
        v_mov_b32 v46, s8
        v_add_u32 v47, 1, v1
        v_xor_b32 v47, s2, v47
        v_lshlrev_b32 v47, 7, v47
        v_add_u32 v47, {PF}, v47
        v_mov_b32 v44, 0
        v_mov_b32 v48, s74
        s_mov_b32 s11, 0
        L_ctl:
        s_mov_b64 exec, 1
        s_add_u32 s11, s11, 1
        s_lshl_b32 s9, s11, 2
        s_sub_u32 s9, s9, {int(opt.get("ckq", 1))}
        s_mov_b32 s73, {SPIN}
        L_ctl_w:
        ds_read_b32 v45, v44 offset:{CKC}
        s_waitcnt lgkmcnt(0)
        v_readfirstlane_b32 s8, v45
        s_cmp_ge_u32 s8, s9
        s_cbranch_scc1 L_ctl_go
        s_sleep 4
        s_sub_u32 s73, s73, 1
        s_cbranch_scc0 L_ctl_w
        L_ctl_go:
        global_store_dword v46, v48, s[40:41] sc1
        s_mov_b64 exec, {CMASK:#x}
        global_load_dword v45, v47, s[40:41] sc1
        s_waitcnt vmcnt(0)
        v_cmp_eq_u32 vcc, s74, v45
        s_bcnt1_i32_b64 s8, vcc
        s_cmp_ge_u32 s8, {CT2 if L3 else 99}
        s_cselect_b32 s9, 1, 0
        s_cmp_ge_u32 s8, {CTHR}
        s_cselect_b32 s8, 1, 0
        s_add_u32 s8, s8, s9
        s_mov_b64 exec, -1
        v_mov_b32 v45, s8
        ds_write_b32 v44, v45 offset:{MODE}
        v_add_u32 v46, 4, v46
        v_add_u32 v47, 4, v47
        s_cmp_lt_u32 s11, {len(CKS)}
        s_cbranch_scc1 L_ctl
        s_mov_b64 exec, -1
        s_branch L_B2
        L_noctl:
        """)
    lds_spin(CNTK, "ge", 8, 4)
    A("s_cmp_eq_u32 s71, 0"); A("s_cbranch_scc0 L_nostat")
    A(f"""
    v_and_b32 v44, 3, v1
    v_lshlrev_b32 v44, 3, v44
    ds_read_b64 v[46:47], v44 offset:{ST}
    s_waitcnt lgkmcnt(0)
    v_mov_b32 v48, v46
    v_max_f32_dpp v48, v48, v48 quad_perm:[2,3,0,1] row_mask:0xf bank_mask:0xf
    v_max_f32_dpp v48, v48, v48 quad_perm:[1,0,3,2] row_mask:0xf bank_mask:0xf
    v_sub_f32 v49, v46, v48
    v_exp_f32 v49, v49
    v_mul_f32 v49, v49, v47
    v_add_f32_dpp v49, v49, v49 quad_perm:[2,3,0,1] row_mask:0xf bank_mask:0xf
    v_add_f32_dpp v49, v49, v49 quad_perm:[1,0,3,2] row_mask:0xf bank_mask:0xf
    s_lshl_b32 s8, s2, 7
    s_add_u32 s8, s8, {SX}
    v_mov_b32 v44, s8
    v_mov_b32 v56, v48
    v_mov_b32 v57, s74
    v_mov_b32 v58, v49
    v_mov_b32 v59, s74
    s_mov_b64 exec, 1
    global_store_dwordx4 v44, v[56:59], s[40:41] sc1
    s_xor_b32 s8, s2, {PX_}
    s_lshl_b32 s8, s8, 7
    s_add_u32 s8, s8, {SX}
    v_mov_b32 v44, s8
    s_mov_b32 s73, {SPIN}
    L_pspin:
    global_load_dwordx4 v[60:63], v44, s[40:41] sc1
    s_waitcnt vmcnt(0)
    """)
    check_tags([61, 63], "L_pok")
    A(f"""
    s_sleep 32
    s_sub_u32 s73, s73, 1
    s_cbranch_scc0 L_pspin
    L_pok:
    v_readfirstlane_b32 s8, v60
    v_readfirstlane_b32 s9, v62
    s_mov_b64 exec, -1
    v_mov_b32 v60, s8
    v_mov_b32 v62, s9
    v_max_f32 v52, v48, v60
    v_sub_f32 v53, v48, v52
    v_sub_f32 v54, v60, v52
    v_exp_f32 v53, v53
    v_exp_f32 v54, v54
    v_mul_f32 v53, v53, v49
    v_fma_f32 v53, v54, v62, v53
    v_rcp_f32 v53, v53
    v_sub_f32 v54, v46, v52
    v_exp_f32 v54, v54
    v_mul_f32 v54, v54, v53
    v_and_b32 v44, 3, v1
    v_lshlrev_b32 v44, 2, v44
    v_mov_b32 v45, 1
    v_mov_b32 v55, 0
    s_mov_b64 exec, 15
    ds_write_b32 v44, v54 offset:{SCALE}
    s_mov_b64 exec, 1
    ds_write_b32 v55, v45 offset:{SCRDY}
    s_mov_b64 exec, -1
    L_nostat:
    """)
    A("L_B2:")
    if opt.get("lowprio"): A("s_setprio 3")
    if HST == 3: A("s_waitcnt lgkmcnt(0)"); A("s_barrier"); A("s_branch L_hend")
    A(f"""
    s_lshl_b32 s10, s71, 6
    s_lshl_b32 s9, s4, 1
    s_add_u32 s10, s10, s9
    s_lshl_b32 s10, s10, 9
    s_add_u32 s10, s10, {OX}
    v_lshlrev_b32 v46, 4, v1
    v_add_u32 v46, s10, v46
    v_lshlrev_b32 v49, 9, v1
    v_add_u32 v49, s10, v49
    v_and_b32 v47, 1, v1
    v_lshlrev_b32 v47, 7, v47
    v_bfe_u32 v48, v1, 1, 4
    v_lshlrev_b32 v48, 2, v48
    v_add_u32 v47, v47, v48
    s_lshl_b32 s8, s71, 8
    v_add_u32 v47, s8, v47
    v_add_u32 v47, {OB}, v47
    v_lshlrev_b32 v48, 6, v{vG}
    v_add_u32 v48, s8, v48
    v_lshlrev_b32 v41, 5, v{vC}
    v_lshlrev_b32 v42, 4, v{vG}
    v_add_u32 v41, v41, v42
    s_lshl_b32 s8, s71, 9
    v_add_u32 v41, s8, v41
    v_lshlrev_b32 v42, 4, v1
    v_add_u32 v42, s8, v42
    s_lshl_b32 s10, s72, 2
    s_add_u32 s10, s10, s71
    s_lshl_b32 s10, s10, 5
    s_add_u32 s10, s10, s4
    s_lshl_b32 s10, s10, 9
    s_add_u32 s10, s10, {YX}
    v_lshlrev_b32 v43, 5, v{vC}
    v_lshlrev_b32 v44, 4, v{vG}
    v_add_u32 v43, v43, v44
    v_add_u32 v43, s10, v43
    s_cmp_eq_u32 s67, 16
    s_cselect_b32 s43, -1, 0x00ff00ff
    s_waitcnt lgkmcnt(0)
    s_barrier
    """)
    stamp(6)
    if DUAL:
        A(f"""
        v_add_u32 v49, {(OXA - OX) & 0xffffffff:#x}, v46
        s_mov_b32 s73, {SPIN}
        L_opoll:
        global_load_dwordx4 v[56:59], v49, s[40:41] sc1
        s_waitcnt vmcnt(0)
        """)
        chk4([56], "L_ook")
        A(f"""
        s_and_b32 s8, s73, 3
        s_cmp_eq_u32 s8, 0
        s_cbranch_scc0 L_onext
        global_load_dwordx4 v[56:59], v46, s[40:41] sc1
        s_waitcnt vmcnt(0)
        """)
        chk4([56], "L_ook")
        A(f"""
        L_onext:
        s_sub_u32 s73, s73, 1
        s_cbranch_scc0 L_opoll
        L_ook:
        """)
    elif opt.get("op2"):
        A(f"""
        s_mov_b32 s73, {SPIN}
        global_load_dwordx4 v[84:87], v46, s[40:41] sc1
        s_sleep {int(opt.get("op2"))}
        L_opoll:
        global_load_dwordx4 v[88:91], v46, s[40:41] sc1
        s_waitcnt vmcnt(1)
        """)
        chk4([84], "L_ookA")
        A(f"""
        global_load_dwordx4 v[84:87], v46, s[40:41] sc1
        s_waitcnt vmcnt(1)
        """)
        chk4([88], "L_ookB")
        A(f"""
        s_sub_u32 s73, s73, 1
        s_cbranch_scc0 L_opoll
        L_ookA:
        """)
        for r in range(4): A(f"v_mov_b32 v{56+r}, v{84+r}")
        A("s_branch L_ook")
        A("L_ookB:")
        for r in range(4): A(f"v_mov_b32 v{56+r}, v{88+r}")
        A("L_ook:")
    else:
        A(f"""
        s_mov_b32 s73, {SPIN}
        L_opoll:
        global_load_dwordx4 v[56:59], v46, s[40:41] sc1
        s_waitcnt vmcnt(0)
        """)
        chk4([56], "L_ook")
        A(f"""
        {"s_sleep " + str(OSL) if OSL else ""}
        s_sub_u32 s73, s73, 1
        s_cbranch_scc0 L_opoll
        L_ook:
        """)
    for r in range(4): A(f"v_mov_b32 v{60+r}, v{56+r}")
    for r in range(4): A(f"v_permlane32_swap_b32 v{56+r}, v{60+r}")
    for r in range(4): A(f"v_add_f32 v{56+r}, v{56+r}, v{60+r}")
    A(f"""
    v_cvt_pk_bf16_f32 v56, v56, v57
    v_cvt_pk_bf16_f32 v57, v58, v59
    s_mov_b32 exec_hi, 0
    ds_write2_b32 v47, v56, v57 offset0:{0} offset1:{16}
    s_mov_b32 exec_hi, -1
    """.replace("v47, v56, v57 offset0:0 offset1:16", "v47, v56, v57 offset0:0 offset1:16"))
    XO = 64
    for k in range(4): A(f"ds_read_b128 {v4(XO+4*k)}, v48 offset:{OB+16*k}")
    if stamps: A("s_waitcnt lgkmcnt(0)")
    stamp(7)
    if not stamps: A("s_waitcnt lgkmcnt(3)")
    perms(XO, 0, 8)
    for i in range(32):
        if i + 1 < 32:
            if (i + 1) % 8 == 0 and not stamps: A(f"s_waitcnt lgkmcnt({3 - (i+1)//8})")
            perms(XO + (i+1)//2, (i+1) & 1, 8 + 4*((i+1) & 1))
        mfma(4, 8 + 4*(i & 1), WOr + 4*i, "0" if i == 0 else "v[4:7]")
    for k in range(4): A(f"v_mul_f32 v{4+k}, v{4+k}, v33")
    tag4(4)
    A(f"""
    s_mov_b32 exec_lo, s43
    s_mov_b32 exec_hi, 0
    global_store_dwordx4 v43, v[4:7], s[40:41] sc1
    s_mov_b64 exec, -1
    {"s_branch L_hend" if HST == 4 else ""}
    s_cmp_eq_u32 s75, 1
    s_cbranch_scc0 L_hend
    s_lshl_b32 s10, s76, 2
    s_add_u32 s10, s10, s77
    s_lshl_b32 s10, s10, 5
    s_lshl_b32 s9, s71, 3
    s_add_u32 s10, s10, s9
    s_lshl_b32 s10, s10, 9
    s_add_u32 s10, s10, {YX}
    v_lshrrev_b32 v46, 5, v1
    v_lshlrev_b32 v46, 9, v46
    v_and_b32 v47, 31, v1
    v_lshlrev_b32 v47, 4, v47
    v_add_u32 v46, v46, v47
    v_add_u32 v46, s10, v46
    v_add_u32 v47, 2048, v46
    """)
    ya = [(46, 0), (46, 1024), (47, 0), (47, 1024)]
    A(f"""
    s_mov_b32 s73, {SPIN}
    s_mov_b32 s52, s70
    s_mov_b32 s53, s70
    s_mov_b64 s[54:55], s[52:53]
    s_mov_b64 s[56:57], s[52:53]
    s_mov_b64 s[58:59], s[52:53]
    s_mov_b32 s12, 0x0c0c0400
    s_mov_b32 s13, 0x04000c0c
    L_ypoll:
    """)
    for q, (ar, off) in enumerate(ya):
        A(f"s_mov_b64 exec, s[{52+2*q}:{53+2*q}]")
        A(f"s_cbranch_execz L_ysk{q}")
        A(f"global_load_dwordx4 {v4(56+4*q)}, v{ar}, s[40:41] offset:{off} sc1")
        A(f"L_ysk{q}:")
    A("s_mov_b32 exec_lo, s70"); A("s_mov_b32 exec_hi, s70")
    A("s_waitcnt vmcnt(0)")
    for q in range(4):
        d = 56 + 4*q
        A(f"v_perm_b32 v44, v{d+1}, v{d}, s12")
        A(f"v_perm_b32 v45, v{d+3}, v{d+2}, s13")
        A(f"v_or_b32 v44, v44, v45")
        A(f"v_cmp_ne_u32 s[{52+2*q}:{53+2*q}], s74, v44")
    A(f"""
    s_or_b64 s[8:9], s[52:53], s[54:55]
    s_or_b64 s[10:11], s[56:57], s[58:59]
    s_or_b64 s[8:9], s[8:9], s[10:11]
    s_cbranch_scc0 L_yok
    {"s_sleep " + str(int(opt.get("ysl", 1))) if int(opt.get("ysl", 1)) else ""}
    s_sub_u32 s73, s73, 1
    s_cbranch_scc0 L_ypoll
    L_yok:
    s_mov_b64 exec, -1
    """)
    sum_quads([56, 60, 64, 68])
    for r in range(4): A(f"v_mov_b32 v{60+r}, v{56+r}")
    for r in range(4): A(f"v_permlane32_swap_b32 v{56+r}, v{60+r}")
    for r in range(4): A(f"v_add_f32 v{56+r}, v{56+r}, v{60+r}")
    A(f"""
    s_lshl_b32 s8, s71, 9
    v_lshlrev_b32 v45, 4, v1
    v_add_u32 v45, s8, v45
    s_mov_b32 exec_hi, 0
    ds_write_b128 v45, v[56:59] offset:{FS}
    s_mov_b32 exec_hi, -1
    s_waitcnt lgkmcnt(0)
    s_barrier
    s_cmp_eq_u32 s71, 0
    s_cbranch_scc0 L_hend
    v_lshlrev_b32 v45, 4, v1
    s_mov_b32 exec_lo, s70
    s_mov_b32 exec_hi, 0
    """)
    for w in range(4): A(f"ds_read_b128 {v4(56+4*w)}, v45 offset:{FS+512*w}")
    A(f"""
    s_mul_i32 s8, s77, 1280
    s_add_u32 s8, s8, s65
    v_lshlrev_b32 v44, 3, v1
    v_add_u32 v44, s8, v44
    s_waitcnt lgkmcnt(0)
    """)
    sum_quads([56, 60, 64, 68])
    for k in (0, 2): pk(56+k, 56+k, FSUM+k)
    A(f"""
    v_cvt_pk_bf16_f32 v56, v56, v57
    v_cvt_pk_bf16_f32 v57, v58, v59
    global_store_dwordx2 v44, v[56:57], s[36:37] {opt.get("outf", "")}
    s_mov_b64 exec, -1
    """)
    A("L_hend:")
    stamp(8)
    store_stamps(9)
    A("L_end:")
    A("s_endpgm")
    body = A.finalize()
    body += f""".section .rodata,"a"
.p2align 6
.amdhsa_kernel {NAME}_kernel
  .amdhsa_next_free_vgpr 256
  .amdhsa_next_free_sgpr 102
  .amdhsa_accum_offset 256
  .amdhsa_group_segment_fixed_size 0
  .amdhsa_kernarg_size 104
  .amdhsa_user_sgpr_count 2
  .amdhsa_user_sgpr_kernarg_segment_ptr 1
  .amdhsa_system_sgpr_workgroup_id_x 1
.end_amdhsa_kernel
"""
    return body

if __name__ == "__main__":
    out = sys.argv[1] if len(sys.argv) > 1 else f"cdna_kernels/{NAME}.s"
    opt = {}
    for a in sys.argv[2:]:
        k, v = a.split("=")
        opt[k] = {"1": True, "0": False}.get(v, v) if k in ("stamps", "fine", "noffn") else v
    open(out, "w").write(gen(opt))
    print("wrote", out)
```

```python
import sys, struct
sys.path.insert(0, "gen")
from asmb import Asm
NAME = "gated_mix__mha_block_cached__swiglu_ffn__decode"
def f2u(x): return struct.unpack("<I", struct.pack("<f", x))[0]
LOG2E = 1.4426950408889634
CSC = LOG2E / (128 ** 0.5)
CNTK = 0; CNTH = 4; SCRDY = 8; QRDY = 12; CKC = 16; MODE = 20; NONCE = 32
ST = 40; SCALE = 72
QB = 128; HB = 512; OB = 1024; YS = 2048; OP = 4096; FS = 6144
GP = 8192; WOL = 16384; YP2 = 49152
XL = 49152 + 8192
GWL = XL + 5120
LDS_BYTES = GWL + 1280
SX = 0; QX = 0x10000; FX = 0x50000; OX = 0xE0000; YX = 0x100000; OXA = 0xA0000; FY = 0x180000; PF = 0x8000
NFFN = 108; FFN0 = 20
SPIN = 200000

HEADER = """; gated_mix( mha_block_cached, swiglu_ffn ) decode step, gfx950, one launch, 256 workgroups of 8 waves (one per CU).
;   48 w_gate (640,1728) | 56 w_up (640,1728) | 64 w_down (1728,640) | 72 gate_w (640) | 80 out (4,1,640) bf16 | 88 debug (256 B, zero) | 96 ws
; Waves 0-3 (S) stream K then V of their 2048 keys straight into registers (1 KiB nontemporal loads, outstanding count
; Waves 4-7 (H) do the small GEMVs, each weight byte being read by exactly one workgroup: a 160x64 piece of wq, a
;   mantissa bytes carry a per-launch nonce (elected in the zeroed debug word), written with sc1 stores and read with sc1
; 32 finaliser workgroups sum the per-head and FFN partials of one (column block, batch) and write the bf16 output.
; A progress flag exchange among neighbouring workgroups selects between two outstanding-load bounds so that all dies finish together.
"""
class VMQ:
    def __init__(self, A): self.q = []; self.A = A
    def issue(self, tag):
        self.q.append(tag); assert len(self.q) <= 63, len(self.q)
    def pace(self, depth):
        if depth and len(self.q) >= depth:
            self.A(f"s_waitcnt vmcnt({depth-1})"); self.q = self.q[len(self.q) - (depth - 1):] if depth > 1 else []
    def wait(self, tag):
        if tag not in self.q: return
        idx = self.q.index(tag); n = len(self.q) - 1 - idx
        self.A(f"s_waitcnt vmcnt({n})"); self.q = self.q[idx + 1:]

def gen(opt=None):
    opt = opt or {}
    KVF = opt.get("kvflags", "nt"); WF = opt.get("wflags", "nt")
    stamps = opt.get("stamps", False); FINE = opt.get("fine", False)
    NSLEEP = int(opt.get("nsleep", 10)); QSLEEP = int(opt.get("qsleep", 16))
    WK = int(opt.get("wk", 32)); WV = int(opt.get("wv", 48))
    BP = int(opt.get("bp", 2))
    FSTOP = int(opt.get("fstop", 0))
    OSL = int(opt.get("osl", 1)); FSL = int(opt.get("fsl", 48))
    A = Asm()
    A(f"; @launch grid=(256,1,1) block=(512,1,1) lds={LDS_BYTES}")
    for l in HEADER.strip().split("\n"): A.lines.append(l)
    A('.amdgcn_target "amdgcn-amd-amdhsa--gfx950"')
    A(".text"); A(f".globl {NAME}_kernel"); A(".p2align 8"); A(f".type {NAME}_kernel,@function"); A(f"{NAME}_kernel:")
    vG, vC = 34, 35
    SELL, SELH = 16, 20
    M = 36; Q = 40
    uid = [0]
    def U(): uid[0] += 1; return uid[0]
    def v4(r): return f"v[{r}:{r+3}]"
    def stamp(i):
        if stamps: A(f"s_memrealtime s[{80+2*i}:{81+2*i}]")
    def store_stamps(n):
        if not stamps: return
        A("""
        s_waitcnt lgkmcnt(0)
        s_lshl_b32 s8, s2, 10
        s_lshl_b32 s9, s3, 7
        s_add_u32 s8, s8, s9
        s_add_u32 s8, s8, 0x2000000
        v_mov_b32 v44, s8
        s_mov_b64 exec, 1
        """)
        for i in range(n):
            A(f"v_mov_b32 v45, s{80+2*i}"); A(f"global_store_dword v44, v45, s[40:41] offset:{4*i}"); A("s_nop 0")
        A("s_getreg_b32 s9, hwreg(HW_REG_XCC_ID)"); A("v_mov_b32 v45, s9"); A("global_store_dword v44, v45, s[40:41] offset:120")
        A("s_mov_b64 exec, -1")
    def lds_spin(off, cond, sleep, val=None):
        t = U()
        A(f"""
        v_mov_b32 v44, 0
        s_mov_b32 s73, {SPIN}
        L_sp{t}:
        ds_read_b32 v45, v44 offset:{off}
        s_waitcnt lgkmcnt(0)
        v_readfirstlane_b32 s8, v45
        """)
        if cond == "nz": A("s_cmp_lg_u32 s8, 0")
        else: A(f"s_cmp_ge_u32 s8, {val}")
        A(f"""
        s_cbranch_scc1 L_sp{t}_ok
        s_sleep {sleep}
        s_sub_u32 s73, s73, 1
        s_cbranch_scc0 L_sp{t}
        L_sp{t}_ok:
        """)
    def hbarrier(n, sleep=1):
        A(f"""
        s_waitcnt lgkmcnt(0)
        v_mov_b32 v44, 0
        v_mov_b32 v45, 1
        s_mov_b64 exec, 1
        ds_add_u32 v44, v45 offset:{CNTH}
        s_mov_b64 exec, -1
        """)
        lds_spin(CNTH, "ge", sleep, 4 * n)
    def perms(xreg, hi, aset):
        sel = SELH if hi else SELL
        for r in range(4): A(f"v_perm_b32 v{aset+r}, v{xreg}, v{xreg}, v{sel+r}")
    def pk(d, a, b): A(f"v_pk_add_f32 v[{d}:{d+1}], v[{a}:{a+1}], v[{b}:{b+1}]")
    def mfma(d, a, b, c): A(f"v_mfma_f32_16x16x32_bf16 {v4(d)}, {v4(a)}, {v4(b)}, {c}")
    def rowreduce(op, reg):
        A(f"{op}_dpp v{reg}, v{reg}, v{reg} row_ror:8 row_mask:0xf bank_mask:0xf")
        A(f"{op}_dpp v{reg}, v{reg}, v{reg} row_ror:4 row_mask:0xf bank_mask:0xf")
        A(f"{op}_dpp v{reg}, v{reg}, v{reg} quad_perm:[2,3,0,1] row_mask:0xf bank_mask:0xf")
        A(f"{op}_dpp v{reg}, v{reg}, v{reg} quad_perm:[1,0,3,2] row_mask:0xf bank_mask:0xf")
    def wavereduce(op, reg):
        rowreduce(op, reg)
        for k in range(4): A(f"v_readlane_b32 s{8+k}, v{reg}, {16*k}")
        A(f"v_mov_b32 v{reg}, s8")
        for k in range(1, 4): A(f"{op} v{reg}, s{8+k}, v{reg}")
    def check_tags(tags, okl):
        A(f"v_cmp_ne_u32 s[78:79], s74, v{tags[0]}")
        for t in tags[1:]:
            A(f"v_cmp_ne_u32 vcc, s74, v{t}")
            A("s_or_b64 s[78:79], s[78:79], vcc")
        A("s_cmp_eq_u64 s[78:79], 0")
        A(f"s_cbranch_scc1 {okl}")
    def blk(sj, soff, snch, smask):
        A(f"""
        s_cmp_ge_u32 {sj}, 1
        s_cselect_b32 {soff}, 1, 0
        s_add_u32 {soff}, {soff}, {sj}
        s_cmp_ge_u32 {sj}, 5
        s_addc_u32 {soff}, {soff}, 0
        s_lshl_b32 {soff}, {soff}, 7
        s_and_b32 {snch}, {sj}, 3
        s_cmp_eq_u32 {snch}, 0
        s_cselect_b32 {snch}, 16, 8
        s_cselect_b32 {smask}, -1, 0xffff
        """)
    TG = 28
    def tag4(d, tg=TG):
        for k in range(4): A(f"v_and_or_b32 v{d+k}, v{d+k}, s75x, v{tg+k}".replace("s75x", "s14"))
    def settags(nonce_v, tg):
        A("s_mov_b32 s14, 0xffffff00")
        A(f"v_and_b32 v{tg}, 0xff, v{nonce_v}")
        for k in range(1, 4): A(f"v_bfe_u32 v{tg+k}, v{nonce_v}, {8*k}, 8")
    def chk4(quads, okl, tmp=44):
        A("s_mov_b32 s12, 0x0c0c0400"); A("s_mov_b32 s13, 0x04000c0c")
        for i, d in enumerate(quads):
            A(f"v_perm_b32 v{tmp}, v{d+1}, v{d}, s12")
            A(f"v_perm_b32 v{tmp+1}, v{d+3}, v{d+2}, s13")
            A(f"v_or_b32 v{tmp}, v{tmp}, v{tmp+1}")
            if i == 0: A(f"v_cmp_ne_u32 s[78:79], s74, v{tmp}")
            else:
                A(f"v_cmp_ne_u32 vcc, s74, v{tmp}"); A("s_or_b64 s[78:79], s[78:79], vcc")
        A("s_cmp_eq_u64 s[78:79], 0"); A(f"s_cbranch_scc1 {okl}")
    def probe(addr_v, mask, sleep):
        t = U()
        A(f"""
        s_mov_b32 s73, {SPIN}
        s_and_b32 s15, s74, 0xff
        s_mov_b64 exec, {mask:#x}
        L_pr{t}:
        global_load_dword v45, v{addr_v}, s[40:41] sc1
        s_waitcnt vmcnt(0)
        v_and_b32 v45, 0xff, v45
        v_cmp_ne_u32 vcc, s15, v45
        s_cmp_eq_u64 vcc, 0
        s_cbranch_scc1 L_pr{t}_ok
        s_sleep {sleep}
        s_sub_u32 s73, s73, 1
        s_cbranch_scc0 L_pr{t}
        L_pr{t}_ok:
        s_mov_b64 exec, -1
        """)

    A("""
    s_cmp_ge_u32 s2, 256
    s_cbranch_scc1 L_end
    s_load_dwordx16 s[16:31], s[0:1], 0
    s_load_dwordx8 s[32:39], s[0:1], 64
    s_load_dwordx2 s[40:41], s[0:1], 96
    """)
    stamp(0)
    if opt.get("delaywg") is not None:
        A(f"s_cmp_eq_u32 s2, {int(opt['delaywg'])}"); A("s_cbranch_scc0 L_nodelay"); A("s_mov_b32 s8, 60")
        A("L_dly:"); A("s_sleep 64"); A("s_sub_u32 s8, s8, 1"); A("s_cbranch_scc0 L_dly"); A("L_nodelay:")
    EB = opt.get("eb", "0") in ("1", True)
    EB_A = "s_barrier" if EB else ""
    DUAL = opt.get("dual", "1") in ("1", True)
    MAP = opt.get("map", "loc")
    if MAP == "loc":
        MAPCODE = """s_and_b32 s4, s2, 31
    s_lshr_b32 s5, s2, 6
    s_bfe_u32 s6, s2, 0x10005
    s_lshl_b32 s7, s5, 5
    s_add_u32 s7, s7, s4"""; PX_ = 32
    else:
        MAPCODE = """s_lshr_b32 s8, s2, 1
    s_xor_b32 s9, s8, s2
    s_and_b32 s9, s9, 1
    s_and_b32 s6, s8, 1
    s_lshr_b32 s8, s2, 2
    s_lshl_b32 s8, s8, 1
    s_add_u32 s7, s8, s9
    s_and_b32 s4, s7, 31
    s_lshr_b32 s5, s7, 5"""; PX_ = 3
    if stamps and opt.get("clk"): A("s_memtime s[100:101]")
    A(f"""
    v_lshrrev_b32 v3, 6, v0
    v_and_b32 v1, 63, v0
    v_readfirstlane_b32 s3, v3
    v_mov_b32 v4, 0
    v_mov_b32 v5, 0
    v_mov_b32 v6, 0
    v_mov_b32 v7, 0
    s_cmp_eq_u32 s3, 4
    s_cbranch_scc0 L_noz
    s_mov_b64 exec, 1
    ds_write_b128 v4, v[4:7] offset:0
    ds_write_b128 v4, v[4:7] offset:16
    s_mov_b64 exec, -1
    {"s_waitcnt lgkmcnt(0)" if EB else ""}
    L_noz:
    {"s_waitcnt lgkmcnt(0)" if False else ""}
    {EB_A}
    {MAPCODE}
    v_lshrrev_b32 v{vG}, 4, v1
    v_and_b32 v{vC}, 15, v1
    s_cmp_ge_u32 s3, 4
    s_cbranch_scc1 L_H
    """)
    A(f"""
    s_lshl_b32 s9, s3, 12
    v_lshlrev_b32 v2, 4, v1
    v_add_u32 v2, s9, v2
    s_lshl_b32 s8, s7, 20
    s_cmp_eq_u32 s6, 0
    s_cselect_b32 s64, 0, {(32 if opt.get("fwd") else 63)*16384}
    s_mov_b32 s9, 16384
    s_cselect_b32 s43, s9, {(16384 if opt.get("fwd") else -16384) & 0xffffffff:#x}
    s_waitcnt lgkmcnt(0)
    s_add_u32 s52, s18, s8
    s_addc_u32 s53, s19, 0
    s_and_b32 s53, s53, 0xffff
    s_mov_b32 s54, 0x100000
    s_mov_b32 s55, 0x20000
    s_add_u32 s56, s20, s8
    s_addc_u32 s57, s21, 0
    s_and_b32 s57, s57, 0xffff
    s_mov_b32 s58, 0x100000
    s_mov_b32 s59, 0x20000
    s_mov_b32 s65, s64
    {"" if EB else "s_barrier"}
    """)
    vq = VMQ(A)
    def slot(sl): return 128 + 4 * sl if sl < 32 else 64 + 4 * (sl - 32)
    def kslot(i): return slot(i % WK)
    RING = opt.get("ring", "0") in ("1", True)
    if RING: WV = WK
    DEPTH = int(opt.get("depth", 6))
    CTL = opt.get("ctl", "0") in ("1", True)
    DSH = int(opt.get("dsh", 5))
    CMASK = int(opt.get("cmask", "0x7f"), 0); CTHR = int(opt.get("cthr", 4))
    L3 = opt.get("l3", "0") in ("1", True); DMID = int(opt.get("dmid", 6)); CT2 = int(opt.get("ct2", 5))
    CKS = [int(x) for x in opt.get("cks", "64,96,128,160,192,224").split(",")]
    ctl_on = [False]
    cur_pos = [0]
    POS2 = int(opt.get("pos2", 999)); DSH2 = int(opt.get("dsh2", 4)); DEPTH2 = int(opt.get("depth2", 0))
    DSH_0, DEPTH_0 = DSH, DEPTH
    def pace():
        nonlocal DSH, DEPTH
        if cur_pos[0] >= POS2: DSH, DEPTH = DSH2, DEPTH2
        else: DSH, DEPTH = DSH_0, DEPTH_0
        if not (CTL and ctl_on[0]):
            vq.pace(int(opt.get("d0", DEPTH))); return
        if L3:
            t = U()
            if len(vq.q) >= DSH:
                A("s_cmp_ge_u32 s76, 2"); A(f"s_cbranch_scc1 L_pc{t}")
                if len(vq.q) >= DMID: A(f"s_waitcnt vmcnt({DMID-1})")
                A("s_cmp_ge_u32 s76, 1"); A(f"s_cbranch_scc1 L_pc{t}"); A(f"s_waitcnt vmcnt({DSH-1})"); A(f"L_pc{t}:")
        elif len(vq.q) >= DSH:
            t = U()
            A("s_cmp_lg_u32 s76, 0"); A(f"s_cbranch_scc1 L_pc{t}"); A(f"s_waitcnt vmcnt({DSH-1})"); A(f"L_pc{t}:")
        vq.pace(DEPTH)
    def ctl_step(pos):
        cur_pos[0] = pos
        if not CTL: return
        if pos in CKS:
            A("s_mov_b64 exec, 1"); A(f"ds_add_u32 v17, v19 offset:{CKC}"); A("s_mov_b64 exec, -1")
        if pos >= CKS[0] and pos % 8 == 0:
            A("s_waitcnt lgkmcnt(0)"); A("v_readfirstlane_b32 s76, v18"); A(f"ds_read_b32 v18, v17 offset:{MODE}")
            ctl_on[0] = True
    def kload(i):
        pace()
        if i % 4 == 0 and i > 0: A("s_add_u32 s65, s65, s43")
        A(f"buffer_load_dwordx4 {v4(kslot(i))}, v2, s[52:55], s65 offen offset:{(i%4)*1024} {KVF}")
        vq.issue(("K", i))
    def vslot(v): return slot((128 + v) % WK) if RING else slot(v % WV)
    def vload(v):
        pace()
        if v == 0: A("s_mov_b32 s65, s64")
        elif v % 4 == 0: A("s_add_u32 s65, s65, s43")
        A(f"buffer_load_dwordx4 {v4(vslot(v))}, v2, s[56:59], s65 offen offset:{(v%4)*1024} {KVF}")
        vq.issue(("V", v))
    for i in range(WK): kload(i)
    A(f"""
    v_and_b32 v44, 1, v{vC}
    v_cmp_eq_u32 vcc, 1, v44
    v_mov_b32 v45, 0x0000ffff
    v_mov_b32 v46, 0xffff0000
    v_cndmask_b32 v47, v45, v46, vcc
    v_bfe_u32 v44, v{vC}, 1, 2
    v_mov_b32 v46, 0
    """)
    for r in range(4):
        A(f"v_cmp_eq_u32 vcc, {r}, v44")
        A(f"v_cndmask_b32 v{M+r}, v46, v47, vcc")
    A(f"""
    s_mov_b32 s42, {f2u(CSC):#x}
    s_mov_b32 s66, 0xcccccccc
    s_mov_b32 s67, 0xcccccccc
    s_mov_b32 s68, 0xaaaaaaaa
    s_mov_b32 s69, 0xaaaaaaaa
    """)
    A("v_mov_b32 v17, 0"); A("v_mov_b32 v18, 0"); A("v_mov_b32 v19, 1"); A("s_mov_b32 s76, 0")
    lds_spin(QRDY, "nz", 2)
    A(f"""
    v_lshlrev_b32 v46, 4, v{vC}
    ds_read_b128 {v4(Q)}, v46 offset:{QB}
    ds_read_b32 v16, v44 offset:{NONCE}
    s_waitcnt lgkmcnt(0)
    """)
    stamp(1)
    T = 48
    def reduce16(dest):
        for a in range(8):
            A(f"v_add_f32_dpp v{T+a}, v{T+a}, v{T+a} row_ror:8 row_mask:0xf bank_mask:0x3")
            A(f"v_add_f32_dpp v{T+a}, v{T+a+8}, v{T+a+8} row_ror:8 row_mask:0xf bank_mask:0xc")
        for a in range(4):
            A(f"v_add_f32_dpp v{T+a}, v{T+a}, v{T+a} row_half_mirror row_mask:0xf bank_mask:0x5")
            A(f"v_add_f32_dpp v{T+a}, v{T+a+4}, v{T+a+4} row_half_mirror row_mask:0xf bank_mask:0xa")
        for a in range(2):
            A(f"v_cndmask_b32 v{44+2*a}, v{T+a}, v{T+a+2}, s[66:67]")
            A(f"v_cndmask_b32 v{45+2*a}, v{T+a+2}, v{T+a}, s[66:67]")
        for a in range(2):
            A(f"v_add_f32_dpp v{T+a}, v{45+2*a}, v{44+2*a} quad_perm:[2,3,0,1] row_mask:0xf bank_mask:0xf")
        A(f"v_cndmask_b32 v44, v{T}, v{T+1}, s[68:69]")
        A(f"v_cndmask_b32 v45, v{T+1}, v{T}, s[68:69]")
        A(f"v_add_f32_dpp v{dest}, v45, v44 quad_perm:[1,0,3,2] row_mask:0xf bank_mask:0xf")
    SC = 24
    nv = 0
    for j in range(0, 128, 2):
        vq.wait(("K", j + 1))
        for r in range(4 if not opt.get("nodot") else 0):
            for jj in (j, j+1):
                t = T + (jj & 15)
                c = "0" if r == 0 else f"v{t}"
                A(f"v_dot2_f32_bf16 v{t}, v{kslot(jj)+r}, v{Q+r}, {c}")
        for jj in (j, j+1):
            if jj + WK < 128: kload(jj + WK)
            else: vload(nv); nv += 1
        if (j + 1) % 16 == 15 and not opt.get("nodot"): reduce16(SC + (j >> 4))
        ctl_step(j + 2)
        if FINE and (j + 2) % 32 == 0: stamp(1 + (j + 2) // 32)
    if not FINE: stamp(2)
    B = Asm(); _A = A
    sm = []
    class Cap:
        def __call__(self, s):
            for l in s.split("\n"):
                if l.strip(): sm.append(l.strip())
    A = Cap()
    A(f"""
    v_max3_f32 v44, v{SC}, v{SC+1}, v{SC+2}
    v_max3_f32 v44, v44, v{SC+3}, v{SC+4}
    v_max3_f32 v44, v44, v{SC+5}, v{SC+6}
    v_max_f32 v44, v44, v{SC+7}
    """)
    wavereduce("v_max_f32", 44)
    A("v_mul_f32 v46, s42, v44")
    for k in range(8): A(f"v_fma_f32 v{SC+k}, v{SC+k}, s42, -v46")
    for k in range(8): A(f"v_exp_f32 v{SC+k}, v{SC+k}")
    A(f"""
    v_add_f32 v47, v{SC}, v{SC+1}
    v_add_f32 v44, v{SC+2}, v{SC+3}
    v_add_f32 v45, v{SC+4}, v{SC+5}
    v_add_f32 v48, v{SC+6}, v{SC+7}
    v_add_f32 v47, v47, v44
    v_add_f32 v45, v45, v48
    v_add_f32 v47, v47, v45
    """)
    wavereduce("v_add_f32", 47)
    for k in range(8): A(f"v_cvt_pk_bf16_f32 v{SC+k}, v{SC+k}, v{SC+k}")
    A = _A
    extra = WV - nv
    step = max(1, len(sm) // (extra + 1)) if extra > 0 else 0
    for i, l in enumerate(sm):
        A(l)
        if extra > 0 and (i + 1) % step == 0 and nv < WV: vload(nv); nv += 1
    while nv < WV: vload(nv); nv += 1
    A(f"""
    s_lshl_b32 s8, s3, 3
    v_mov_b32 v44, s8
    v_mov_b32 v45, 1
    v_mov_b32 v48, 0
    s_mov_b64 exec, 1
    ds_write_b64 v44, v[46:47] offset:{ST}
    ds_add_u32 v48, v45 offset:{CNTK}
    s_mov_b64 exec, -1
    """)
    A("; ----- V phase -----")
    for r in range(4): A(f"v_mov_b32 v{4+r}, 0")
    def abuild(v, aset):
        p, jj = SC + (v >> 4), v & 15
        for q in range(4):
            A(f"v_and_b32_dpp v{aset+q}, v{p}, v{M+q} row_newbcast:{jj} row_mask:0xf bank_mask:0xf")
    abuild(0, 8)
    for v in range(128):
        if FINE and v in (32, 64, 96): stamp(5 + v // 32)
        if v == 96:
            lds_spin(SCRDY, "nz", 2)
            A(f"""
            s_lshl_b32 s8, s3, 2
            v_mov_b32 v44, s8
            ds_read_b32 v50, v44 offset:{SCALE}
            v_lshlrev_b32 v60, 5, v{vC}
            v_lshlrev_b32 v61, 4, v{vG}
            v_add_u32 v60, v60, v61
            s_lshl_b32 s8, s3, 9
            v_add_u32 v60, s8, v60
            v_lshlrev_b32 v61, 4, v1
            s_lshl_b32 s8, s7, 1
            s_add_u32 s8, s8, s6
            s_lshl_b32 s8, s8, 9
            s_add_u32 s8, s8, {OX}
            v_add_u32 v62, s8, v61
            v_add_u32 v63, {(OXA - OX) & 0xffffffff:#x}, v62
            """)
            settags(16, 20)
        if v + 1 < 128 and not opt.get("nomfma"): abuild(v + 1, 8 + 4*((v+1) & 1))
        vq.wait(("V", v))
        if not opt.get("nomfma"): mfma(4, 8 + 4*(v & 1), vslot(v), "v[4:7]")
        if v + WV < 128: vload(v + WV)
        ctl_step(128 + v + 1)
    stamp(9 if FINE else 3)
    if stamps and opt.get("clk"):
        A("s_memtime s[76:77]"); A("s_waitcnt lgkmcnt(0)"); A("s_sub_u32 s76, s76, s100")
        A("s_lshl_b32 s8, s2, 10"); A("s_lshl_b32 s9, s3, 7"); A("s_add_u32 s8, s8, s9"); A("s_add_u32 s8, s8, 0x2000000")
        A("v_mov_b32 v44, s8"); A("v_mov_b32 v45, s76"); A("s_mov_b64 exec, 1"); A("global_store_dword v44, v45, s[40:41] offset:80"); A("s_mov_b64 exec, -1")
    A("s_waitcnt lgkmcnt(0)")
    for r in range(4): A(f"v_mul_f32 v{4+r}, v{4+r}, v50")
    A(f"""
    s_mov_b32 exec_hi, 0
    ds_write_b128 v60, v[4:7] offset:{OP}
    s_waitcnt lgkmcnt(0)
    s_barrier
    s_cmp_eq_u32 s3, 0
    s_cbranch_scc0 L_sexit
    """)
    for w in range(4): A(f"ds_read_b128 {v4(128+4*w)}, v61 offset:{OP+512*w}")
    A("s_waitcnt lgkmcnt(0)")
    for k in (0, 2):
        pk(128+k, 128+k, 132+k); pk(136+k, 136+k, 140+k); pk(128+k, 128+k, 136+k)
    tag4(128, 20)
    if DUAL: A("global_store_dwordx4 v63, v[128:131], s[40:41]")
    A(f"""
    global_store_dwordx4 v62, v[128:131], s[40:41] sc1
    L_sexit:
    s_mov_b32 exec_hi, -1
    """)
    store_stamps(10 if FINE else 4)
    A("s_endpgm")

    A("L_H:")
    SELX = 24
    A(f"""
    s_setprio 3
    s_sub_u32 s71, s3, 4
    s_lshl_b32 s72, s5, 1
    s_add_u32 s72, s72, s6
    v_and_b32 v44, 1, v{vC}
    v_cmp_eq_u32 vcc, 1, v44
    v_mov_b32 v45, 0x0c0c0100
    v_mov_b32 v46, 0x01000c0c
    v_cndmask_b32 v47, v45, v46, vcc
    v_mov_b32 v45, 0x0c0c0302
    v_mov_b32 v46, 0x03020c0c
    v_cndmask_b32 v48, v45, v46, vcc
    v_bfe_u32 v44, v{vC}, 1, 2
    v_mov_b32 v45, 0x0c0c0c0c
    v_cmp_gt_u32 s[12:13], 8, v{vC}
    """)
    for r in range(4):
        A(f"v_cmp_eq_u32 vcc, {r}, v44")
        A(f"v_cndmask_b32 v{SELL+r}, v45, v47, vcc")
        A(f"v_cndmask_b32 v{SELH+r}, v45, v48, vcc")
        A(f"v_cndmask_b32 v{SELX+r}, v{SELH+r}, v{SELL+r}, s[12:13]")
    A(f"""
    s_lshr_b32 s8, s72, 1
    s_mul_i32 s8, s8, 160
    s_mul_i32 s9, s71, 40
    s_add_u32 s8, s8, s9
    v_mul_u32_u24 v44, 10, v{vG}
    v_add_u32 v44, s8, v44
    v_lshlrev_b32 v46, 1, v44
    v_lshrrev_b32 v45, 3, v{vC}
    v_add_u32 v45, v44, v45
    v_lshlrev_b32 v45, 13, v45
    v_and_b32 v47, 7, v{vC}
    v_lshlrev_b32 v47, 4, v47
    v_add_u32 v48, v45, v47
    s_waitcnt lgkmcnt(0)
    s_or_b32 s8, s2, s71
    s_cmp_eq_u32 s8, 0
    s_cbranch_scc0 L_nononce
    s_memrealtime s[8:9]
    s_waitcnt lgkmcnt(0)
    s_or_b32 s8, s8, 1
    s_mul_i32 s8, s8, 0x9e3779b1
    v_mov_b32 v44, 0
    v_mov_b32 v50, s8
    v_mov_b32 v51, 0
    s_mov_b64 exec, 1
    global_atomic_cmpswap v44, v[50:51], s[38:39]
    s_mov_b64 exec, -1
    L_nononce:
    s_mov_b32 s44, s16
    s_and_b32 s45, s17, 0xffff
    s_mov_b32 s46, 5120
    s_mov_b32 s47, 0x20000
    s_lshl_b32 s8, s4, 8
    s_and_b32 s9, s72, 1
    s_lshl_b32 s9, s9, 7
    s_add_u32 s8, s8, s9
    s_add_u32 s48, s22, s8
    s_addc_u32 s49, s23, 0
    s_and_b32 s49, s49, 0xffff
    s_sub_u32 s50, 5242880, s8
    s_mov_b32 s51, 0x20000
    """)
    XQ = 56; WQr = 80
    A(f"""
    s_mul_i32 s8, s71, 1280
    v_lshlrev_b32 v44, 4, v1
    v_add_u32 v45, s8, v44
    s_add_u32 s9, s8, {XL}
    s_mov_b32 m0, s9
    s_mov_b32 s60, s34
    s_and_b32 s61, s35, 0xffff
    s_mov_b32 s62, 1280
    s_mov_b32 s63, 0x20000
    buffer_load_dwordx4 v45, s[44:47], 0 offen lds
    s_add_u32 m0, s9, 1024
    s_mov_b32 s64, 1024
    s_mov_b64 exec, 0xffff
    buffer_load_dwordx4 v45, s[44:47], s64 offen lds
    s_mov_b64 exec, -1
    s_cmp_eq_u32 s71, 0
    s_cbranch_scc0 L_nogw
    s_mov_b32 m0, {GWL}
    s_nop 0
    buffer_load_dwordx4 v44, s[60:63], 0 offen lds
    s_mov_b32 m0, {GWL+1024}
    s_mov_b64 exec, 0xffff
    buffer_load_dwordx4 v44, s[60:63], s64 offen lds
    s_mov_b64 exec, -1
    L_nogw:
    """)
    for i in range(5):
        A(f"s_mov_b32 s64, {2*i*8192}")
        A(f"buffer_load_dwordx4 {v4(WQr+4*i)}, v48, s[48:51], s64 offen {WF}")
    A("s_waitcnt lgkmcnt(0)")
    if not EB: A("s_barrier")
    A("s_waitcnt vmcnt(5)")
    hbarrier(1)
    for b in range(4): A(f"v_add_u32 v{100+b}, {XL + 1280*b}, v46")
    for b in range(4):
        A(f"ds_read2_b32 v[{XQ+6*b}:{XQ+6*b+1}], v{100+b} offset0:0 offset1:1")
        A(f"ds_read2_b32 v[{XQ+6*b+2}:{XQ+6*b+3}], v{100+b} offset0:2 offset1:3")
        A(f"ds_read_b32 v{XQ+6*b+4}, v{100+b} offset:16")
    A(f"""
    s_cmp_eq_u32 s71, 0
    s_cbranch_scc0 L_nopoll
    v_mov_b32 v44, 0
    s_mov_b32 s73, {SPIN}
    s_mov_b64 exec, 1
    L_npoll:
    global_load_dword v45, v44, s[38:39] sc1
    s_waitcnt vmcnt(0)
    v_readfirstlane_b32 s74, v45
    s_cmp_lg_u32 s74, 0
    s_cbranch_scc1 L_ngot
    s_and_b32 s8, s73, 15
    s_cmp_eq_u32 s8, 8
    s_cbranch_scc0 L_nelect
    s_memrealtime s[8:9]
    s_waitcnt lgkmcnt(0)
    s_or_b32 s8, s8, 1
    s_mul_i32 s8, s8, 0x9e3779b1
    v_mov_b32 v50, s8
    v_mov_b32 v51, 0
    global_atomic_cmpswap v44, v[50:51], s[38:39]
    L_nelect:
    s_sub_u32 s73, s73, 1
    s_cbranch_scc0 L_npoll
    L_ngot:
    v_mov_b32 v45, s74
    ds_write_b32 v44, v45 offset:{NONCE}
    s_mov_b64 exec, -1
    L_nopoll:
    """)
    A("s_waitcnt vmcnt(0) lgkmcnt(0)")
    stamp(1)
    def xq(b, i): return XQ + 6*b + i
    DQ = [4, 48, 52, 104]
    n = 0
    for i in range(5):
        for b in range(4):
            aset = 8 + 4 * (n & 1)
            for r in range(4): A(f"v_perm_b32 v{aset+r}, v{xq(b,i)}, v{xq(b,i)}, v{SELX+r}")
            mfma(DQ[b], aset, WQr + 4*i, "0" if i == 0 else v4(DQ[b]))
            n += 1
    A(f"""
    s_lshl_b32 s8, s71, 11
    v_lshrrev_b32 v45, 1, v{vG}
    v_lshlrev_b32 v45, 8, v45
    v_and_b32 v46, 7, v{vC}
    v_lshlrev_b32 v46, 5, v46
    v_add_u32 v45, v45, v46
    v_and_b32 v46, 1, v{vG}
    v_lshlrev_b32 v46, 4, v46
    v_add_u32 v45, v45, v46
    v_add_u32 v45, s8, v45
    s_mov_b32 exec_lo, 0x00ff00ff
    s_mov_b32 exec_hi, 0xff00ff00
    """)
    for b in range(4): A(f"ds_write_b128 v45, {v4(DQ[b])} offset:{GP+512*b}")
    A("s_mov_b64 exec, -1")
    hbarrier(2)
    A(f"""
    v_mov_b32 v44, 0
    ds_read_b32 v32, v44 offset:{NONCE}
    s_lshl_b32 s8, s71, 9
    v_lshlrev_b32 v45, 4, v{vC}
    v_add_u32 v45, s8, v45
    """)
    for w in range(4):
        for rho in range(2): A(f"ds_read_b128 {v4(56+8*w+4*rho)}, v45 offset:{GP+w*2048+rho*256}")
    A(f"""
    s_lshl_b32 s10, s4, 3
    s_add_u32 s10, s10, s72
    s_lshl_b32 s10, s10, 2
    s_add_u32 s10, s10, s71
    s_lshl_b32 s10, s10, 8
    s_add_u32 s10, s10, {QX}
    v_lshlrev_b32 v46, 4, v{vC}
    v_add_u32 v46, s10, v46
    s_waitcnt lgkmcnt(0)
    v_readfirstlane_b32 s74, v32
    """)
    settags(32, TG)
    def sum_quads(regs):
        regs = list(regs)
        while len(regs) > 1:
            nx = []
            for a in range(0, len(regs) - 1, 2):
                for k in (0, 2): pk(regs[a]+k, regs[a]+k, regs[a+1]+k)
                nx.append(regs[a])
            if len(regs) % 2: nx.append(regs[-1])
            regs = nx
    sum_quads([56+4*k for k in range(8)])
    tag4(56)
    A(f"""
    s_mov_b64 exec, 0xffff
    global_store_dwordx4 v46, v[56:59], s[40:41] sc1
    s_mov_b64 exec, -1
    """)
    stamp(2)
    def rows_reduce(regs):
        for r in regs: A(f"v_mov_b32 v{r+32}, v{r}")
        for r in regs: A(f"v_permlane16_swap_b32 v{r}, v{r+32}")
        for r in regs: A(f"v_add_f32 v{r}, v{r}, v{r+32}")
        for r in regs: A(f"v_mov_b32 v{r+32}, v{r}")
        for r in regs: A(f"v_permlane32_swap_b32 v{r}, v{r+32}")
        for r in regs: A(f"v_add_f32 v{r}, v{r}, v{r+32}")
    A(f"""
    s_cmp_eq_u32 s71, 0
    s_cbranch_scc0 L_noq
    s_lshl_b32 s10, s4, 5
    s_add_u32 s10, s10, s5
    s_lshl_b32 s10, s10, 8
    s_add_u32 s10, s10, {QX}
    v_lshlrev_b32 v46, 11, v{vG}
    v_lshlrev_b32 v47, 4, v{vC}
    v_add_u32 v46, v46, v47
    v_add_u32 v46, s10, v46
    s_mov_b32 s73, {SPIN}
    L_qpoll:
    {"s_sleep " + str(QSLEEP) if QSLEEP else ""}
    global_load_dwordx4 v[56:59], v46, s[40:41] sc1
    global_load_dwordx4 v[60:63], v46, s[40:41] offset:1024 sc1
    s_waitcnt vmcnt(0)
    """)
    chk4([56, 60], "L_qok")
    A(f"""
    s_sub_u32 s73, s73, 1
    s_cbranch_scc0 L_qpoll
    L_qok:
    """)
    rows_reduce(range(56, 64))
    A(f"""
    v_cvt_pk_bf16_f32 v56, v56, v57
    v_cvt_pk_bf16_f32 v57, v58, v59
    v_cvt_pk_bf16_f32 v58, v60, v61
    v_cvt_pk_bf16_f32 v59, v62, v63
    v_lshlrev_b32 v45, 3, v{vC}
    v_mov_b32 v44, 0
    v_mov_b32 v47, 1
    s_mov_b64 exec, 0xffff
    ds_write_b64 v45, v[56:57] offset:{QB}
    ds_write_b64 v45, v[58:59] offset:{QB+128}
    s_mov_b64 exec, 1
    ds_write_b32 v44, v47 offset:{QRDY}
    s_mov_b64 exec, -1
    L_noq:
    """)
    stamp(3)
    def idle_end():
        A(f"""
        v_mov_b32 v44, 0
        v_mov_b32 v45, 1
        v_mov_b32 v46, 1.0
        ds_write_b32 v44, v46 offset:{SCALE}
        ds_write_b32 v44, v46 offset:{SCALE+4}
        ds_write_b32 v44, v46 offset:{SCALE+8}
        ds_write_b32 v44, v46 offset:{SCALE+12}
        ds_write_b32 v44, v45 offset:{SCRDY}
        s_waitcnt lgkmcnt(0)
        s_barrier
        s_branch L_hend
        """)
    HST = int(opt.get("hstop", 0))
    if opt.get("hidle"): idle_end()
    A(f"""
    s_setprio {BP}
    s_lshr_b32 s8, s2, 3
    s_and_b32 s9, s8, 3
    s_lshl_b32 s9, s9, 1
    s_add_u32 s9, s9, 1
    s_and_b32 s10, s2, 7
    s_mul_i32 s8, s8, 7
    s_add_u32 s8, s8, s10
    s_cmp_gt_u32 s10, s9
    s_cselect_b32 s11, 1, 0
    s_sub_u32 s8, s8, s11
    s_lshr_b32 s76, s8, 3
    s_and_b32 s77, s8, 7
    s_cmp_lt_u32 s8, 216
    s_cselect_b32 s75, 1, 0
    s_cmp_eq_u32 s10, s9
    s_cselect_b32 s75, 0, s75
    """)
    if opt.get("noffn"): A("s_mov_b32 s75, 0")
    blk("s72", "s66", "s67", "s68")
    blk("s77", "s65", "s69", "s70")
    A(f"""
    s_mul_i32 s8, s4, 163840
    s_add_u32 s8, s8, s66
    s_add_u32 s48, s24, s8
    s_addc_u32 s49, s25, 0
    s_and_b32 s49, s49, 0xffff
    s_sub_u32 s50, 5242880, s8
    s_mov_b32 s51, 0x20000
    v_mul_u32_u24 v46, 2560, v{vG}
    v_lshlrev_b32 v47, 4, v{vC}
    v_add_u32 v46, v46, v47
    s_mul_i32 s8, s71, {32*1280}
    v_add_u32 v46, s8, v46
    v_mov_b32 v47, 0x7ff00000
    v_cmp_gt_u32 vcc, s67, v{vC}
    v_cndmask_b32 v46, v47, v46, vcc
    s_lshl_b32 s9, s71, 13
    s_add_u32 s9, s9, {WOL}
    """)
    WOM = opt.get("wom", "dma"); HP = int(opt.get("hp", 0))
    for i in range(8 if HST != 1 else 0):
        t, s_ = i >> 1, i & 1
        if WOM == "dma":
            A(f"s_add_u32 m0, s9, {i*1024}")
            A(f"s_mov_b32 s64, {(8*t+s_)*1280}")
            if HP and i >= HP: A(f"s_waitcnt vmcnt({HP-1})")
            A(f"buffer_load_dwordx4 v46, s[48:51], s64 offen {WF} lds")
        elif WOM == "dmax":
            A("s_mov_b32 exec_lo, 0x03ff03ff"); A("s_mov_b32 exec_hi, 0x03ff03ff")
            A(f"s_add_u32 m0, s9, {i*1024}")
            A(f"s_mov_b32 s64, {(8*t+s_)*1280}")
            A(f"buffer_load_dwordx4 v46, s[48:51], s64 offen {WF} lds")
            A("s_mov_b64 exec, -1")
        else:
            A(f"s_mov_b32 s64, {(8*t+s_)*1280}")
            A(f"buffer_load_dwordx4 {v4(192+4*i)}, v46, s[48:51], s64 offen {WF}")
    W1r = 96; W2r = 120
    A("s_cmp_eq_u32 s75, 1"); A("s_cbranch_scc0 L_nobulk")
    A(f"""
    s_and_b32 s8, s77, 1
    s_cmp_eq_u32 s8, 0
    s_cselect_b32 s60, s28, s30
    s_cselect_b32 s61, s29, s31
    s_lshl_b32 s8, s76, 7
    s_add_u32 s60, s60, s8
    s_addc_u32 s61, s61, 0
    s_and_b32 s61, s61, 0xffff
    s_sub_u32 s62, {640*3456}, s8
    s_mov_b32 s63, 0x20000
    s_lshr_b32 s8, s77, 1
    s_mul_i32 s8, s8, 160
    s_mul_i32 s9, s71, 40
    s_add_u32 s8, s8, s9
    v_mul_u32_u24 v44, 10, v{vG}
    v_add_u32 v44, s8, v44
    v_lshlrev_b32 v41, 1, v44
    v_lshrrev_b32 v45, 3, v{vC}
    v_add_u32 v45, v44, v45
    v_mul_u32_u24 v45, 3456, v45
    v_and_b32 v47, 7, v{vC}
    v_lshlrev_b32 v47, 4, v47
    v_add_u32 v45, v45, v47
    """)
    for i in range(5):
        A(f"s_mov_b32 s64, {2*i*3456}")
        if HP: A(f"s_waitcnt vmcnt({HP-1})")
        A(f"buffer_load_dwordx4 {v4(W1r+4*i)}, v45, s[60:63], s64 offen {WF}")
    A(f"""
    s_lshl_b32 s8, s76, 6
    s_lshl_b32 s9, s71, 4
    s_add_u32 s8, s8, s9
    s_mul_i32 s8, s8, 1280
    s_add_u32 s8, s8, s65
    s_add_u32 s60, s32, s8
    s_addc_u32 s61, s33, 0
    s_and_b32 s61, s61, 0xffff
    s_sub_u32 s62, {1728*1280}, s8
    s_mov_b32 s63, 0x20000
    v_mul_u32_u24 v46, 2560, v{vG}
    v_lshlrev_b32 v47, 4, v{vC}
    v_add_u32 v46, v46, v47
    v_mov_b32 v47, 0x7ff00000
    v_cmp_gt_u32 vcc, s69, v{vC}
    v_cndmask_b32 v46, v47, v46, vcc
    """)
    for ts in range(4):
        A(f"s_mov_b32 s64, {(8*(ts>>1)+(ts&1))*1280}")
        if HP: A(f"s_waitcnt vmcnt({HP-1})")
        A(f"buffer_load_dwordx4 {v4(W2r+4*ts)}, v46, s[60:63], s64 offen {WF}")
    A("L_nobulk:")
    A("s_waitcnt vmcnt(0)")
    if WOM == "reg" and HST != 1:
        A(f"""
        s_lshl_b32 s9, s71, 13
        s_add_u32 s9, s9, {WOL}
        v_lshlrev_b32 v45, 4, v1
        v_add_u32 v45, s9, v45
        """)
        for i in range(8): A(f"ds_write_b128 v45, {v4(192+4*i)} offset:{1024*i}")
    A(f"""
    v_mul_u32_u24 v44, 20, v1
    s_mul_i32 s8, s71, 1280
    s_add_u32 s8, s8, {XL}
    v_add_u32 v45, s8, v44
    v_add_u32 v44, {GWL}, v44
    ds_read2_b32 v[36:37], v45 offset0:0 offset1:1
    ds_read2_b32 v[38:39], v45 offset0:2 offset1:3
    ds_read_b32 v40, v45 offset:16
    ds_read2_b32 v[48:49], v44 offset0:0 offset1:1
    ds_read2_b32 v[50:51], v44 offset0:2 offset1:3
    ds_read_b32 v52, v44 offset:16
    s_waitcnt lgkmcnt(0)
    """)
    A("v_dot2_f32_bf16 v33, v36, v48, 0")
    for t in range(1, 5): A(f"v_dot2_f32_bf16 v33, v{36+t}, v{48+t}, v33")
    wavereduce("v_add_f32", 33)
    A(f"""
    v_mul_f32 v33, {f2u(-LOG2E):#x}, v33
    v_exp_f32 v33, v33
    v_add_f32 v33, 1.0, v33
    v_rcp_f32 v33, v33
    v_sub_f32 v32, 1.0, v33
    s_setprio {int(opt.get("fp", 3))}
    """)
    hbarrier(3, 2)
    stamp(4)
    if HST in (1, 2): idle_end()
    A("s_cmp_eq_u32 s75, 1"); A("s_cbranch_scc0 L_noffn")
    for b in range(4): A(f"v_add_u32 v{100+16+b}, {XL + 1280*b}, v41")
    for b in range(4):
        A(f"ds_read2_b32 v[{XQ+6*b}:{XQ+6*b+1}], v{116+b} offset0:0 offset1:1")
        A(f"ds_read2_b32 v[{XQ+6*b+2}:{XQ+6*b+3}], v{116+b} offset0:2 offset1:3")
        A(f"ds_read_b32 v{XQ+6*b+4}, v{116+b} offset:16")
    A("s_waitcnt lgkmcnt(0)")
    DF = [4, 48, 52, 80]
    n = 0
    for i in range(5):
        for b in range(4):
            aset = 8 + 4 * (n & 1)
            for r in range(4): A(f"v_perm_b32 v{aset+r}, v{xq(b,i)}, v{xq(b,i)}, v{SELX+r}")
            mfma(DF[b], aset, W1r + 4*i, "0" if i == 0 else v4(DF[b]))
            n += 1
    A(f"""
    s_lshl_b32 s8, s71, 11
    v_lshrrev_b32 v45, 1, v{vG}
    v_lshlrev_b32 v45, 8, v45
    v_and_b32 v46, 7, v{vC}
    v_lshlrev_b32 v46, 5, v46
    v_add_u32 v45, v45, v46
    v_and_b32 v46, 1, v{vG}
    v_lshlrev_b32 v46, 4, v46
    v_add_u32 v45, v45, v46
    v_add_u32 v45, s8, v45
    s_mov_b32 exec_lo, 0x00ff00ff
    s_mov_b32 exec_hi, 0xff00ff00
    """)
    for b in range(4): A(f"ds_write_b128 v45, {v4(DF[b])} offset:{GP+512*b}")
    A("s_mov_b64 exec, -1")
    hbarrier(4)
    A(f"""
    s_lshl_b32 s8, s71, 9
    v_lshlrev_b32 v45, 4, v{vC}
    v_add_u32 v45, s8, v45
    """)
    for w in range(4):
        for rho in range(2): A(f"ds_read_b128 {v4(56+8*w+4*rho)}, v45 offset:{GP+w*2048+rho*256}")
    A(f"""
    s_lshl_b32 s10, s76, 3
    s_add_u32 s10, s10, s77
    s_lshl_b32 s10, s10, 2
    s_add_u32 s10, s10, s71
    s_lshl_b32 s10, s10, 8
    s_add_u32 s10, s10, {FX}
    v_lshlrev_b32 v46, 4, v{vC}
    v_add_u32 v46, s10, v46
    s_waitcnt lgkmcnt(0)
    """)
    sum_quads([56+4*k for k in range(8)])
    tag4(56)
    A(f"""
    s_mov_b64 exec, 0xffff
    global_store_dwordx4 v46, v[56:59], s[40:41] sc1
    s_mov_b64 exec, -1
    s_lshl_b32 s10, s76, 5
    s_add_u32 s10, s10, s71
    s_lshl_b32 s10, s10, 8
    s_add_u32 s10, s10, {FX}
    v_lshlrev_b32 v46, 11, v{vG}
    v_lshlrev_b32 v47, 4, v{vC}
    v_add_u32 v46, v46, v47
    v_add_u32 v46, s10, v46
    s_mov_b32 s73, {SPIN}
    L_fpoll:
    s_sleep {FSL}
    global_load_dwordx4 v[60:63], v46, s[40:41] offset:1024 sc1
    global_load_dwordx4 v[56:59], v46, s[40:41] sc1
    s_waitcnt vmcnt(0)
    """)
    chk4([56, 60], "L_fok")
    A(f"""
    s_sub_u32 s73, s73, 1
    s_cbranch_scc0 L_fpoll
    L_fok:
    """)
    rows_reduce(range(56, 64))
    for k in range(4): A(f"v_mul_f32 v{64+k}, {f2u(-LOG2E):#x}, v{56+k}")
    for k in range(4): A(f"v_exp_f32 v{64+k}, v{64+k}")
    for k in range(4): A(f"v_add_f32 v{64+k}, 1.0, v{64+k}")
    for k in range(4): A(f"v_rcp_f32 v{64+k}, v{64+k}")
    for k in range(4): A(f"v_mul_f32 v{56+k}, v{56+k}, v{64+k}")
    for k in range(4): A(f"v_mul_f32 v{56+k}, v{56+k}, v{60+k}")
    A(f"""
    v_cvt_pk_bf16_f32 v56, v56, v57
    v_cvt_pk_bf16_f32 v57, v58, v59
    s_lshl_b32 s8, s71, 7
    v_lshlrev_b32 v45, 3, v{vC}
    v_add_u32 v45, s8, v45
    s_mov_b64 exec, 0xffff
    ds_write_b64 v45, v[56:57] offset:{HB}
    s_mov_b64 exec, -1
    """)
    hbarrier(5)
    A(f"""
    v_lshrrev_b32 v45, 3, v{vC}
    v_lshlrev_b32 v45, 7, v45
    v_lshlrev_b32 v46, 2, v{vG}
    v_add_u32 v45, v45, v46
    s_lshl_b32 s8, s71, 5
    v_add_u32 v45, s8, v45
    ds_read_b32 v56, v45 offset:{HB}
    ds_read_b32 v57, v45 offset:{HB+16}
    ds_read_b32 v58, v45 offset:{HB+256}
    ds_read_b32 v59, v45 offset:{HB+256+16}
    s_waitcnt lgkmcnt(0)
    """)
    D2 = [4, 52]
    n = 0
    for ts in range(4):
        for p in range(2):
            aset = 8 + 4 * (n & 1)
            perms(56 + 2*p + (ts >> 1), ts & 1, aset)
            mfma(D2[p], aset, W2r + 4*ts, "0" if ts == 0 else v4(D2[p]))
            n += 1
    A(f"""
    s_lshl_b32 s8, s71, 11
    s_add_u32 s8, s8, {YP2}
    v_lshlrev_b32 v45, 4, v1
    v_add_u32 v45, s8, v45
    ds_write_b128 v45, {v4(D2[0])}
    ds_write_b128 v45, {v4(D2[1])} offset:1024
    """)
    hbarrier(6)
    A(f"""
    s_lshr_b32 s8, s71, 1
    s_lshl_b32 s8, s8, 10
    s_and_b32 s9, s71, 1
    s_lshl_b32 s9, s9, 9
    s_add_u32 s8, s8, s9
    s_add_u32 s8, s8, {YP2}
    v_and_b32 v45, 1, v1
    v_lshlrev_b32 v45, 8, v45
    v_bfe_u32 v46, v1, 1, 4
    v_lshlrev_b32 v46, 4, v46
    v_add_u32 v45, v45, v46
    v_add_u32 v45, s8, v45
    """)
    for w in range(4): A(f"ds_read_b128 {v4(56+4*w)}, v45 offset:{w*2048}")
    A(f"""
    s_lshl_b32 s10, s77, 2
    s_add_u32 s10, s10, s71
    s_mul_i32 s10, s10, 27
    s_add_u32 s10, s10, s76
    s_lshl_b32 s10, s10, 9
    s_add_u32 s10, s10, {FY}
    v_lshlrev_b32 v46, 4, v1
    v_add_u32 v46, s10, v46
    s_waitcnt lgkmcnt(0)
    """)
    sum_quads([56, 60, 64, 68])
    for k in range(4): A(f"v_mul_f32 v{56+k}, v{56+k}, v32")
    tag4(56)
    A(f"""
    s_mov_b32 exec_lo, s70
    s_mov_b32 exec_hi, 0
    global_store_dwordx4 v46, v[56:59], s[40:41] sc1
    s_mov_b64 exec, -1
    """)
    A("L_noffn:")
    stamp(5)
    if opt.get("lowprio"): A("s_setprio 0")
    A("; ----- wo fragments LDS -> registers, control loop, softmax statistics exchange -----")
    WOr = 128
    A(f"""
    v_lshlrev_b32 v45, 4, v1
    v_add_u32 v45, {WOL}, v45
    """)
    for i in range(32):
        A(f"ds_read_b128 {v4(WOr+4*i)}, v45 offset:{1024*i}")
        if i % 8 == 7: A("s_waitcnt lgkmcnt(0)")
    A(f"""
    s_bfe_u32 s9, s2, 0x20003
    s_lshl_b32 s9, s9, 1
    s_add_u32 s9, s9, 1
    s_and_b32 s8, s2, 7
    s_cmp_eq_u32 s8, s9
    s_cselect_b32 s75, 1, 0
    s_lshr_b32 s76, s2, 5
    s_bfe_u32 s77, s2, 0x20003
    """)
    blk("s76", "s65", "s69", "s70")
    FSUM = 36
    M20 = 0x000fffff000fffff
    A("s_cmp_eq_u32 s75, 1"); A("s_cbranch_scc0 L_nocol")
    if not opt.get("noffn") :
        A(f"""
        s_lshl_b32 s8, s76, 2
        s_add_u32 s8, s8, s77
        s_mul_i32 s8, s8, 27
        s_add_u32 s8, s8, s71
        s_lshl_b32 s8, s8, 9
        s_add_u32 s8, s8, {FY}
        v_lshrrev_b32 v46, 5, v1
        v_lshlrev_b32 v46, 11, v46
        v_and_b32 v47, 31, v1
        v_lshlrev_b32 v47, 4, v47
        v_add_u32 v46, v46, v47
        v_add_u32 v46, s8, v46
        s_mov_b32 s73, {SPIN}
        L_cpoll:
        v_mov_b32 v48, v46
        """)
        for k in range(4):
            if k < 3: A(f"s_mov_b32 exec_lo, s70"); A("s_mov_b32 exec_hi, s70")
            else:
                A("s_cmp_lt_u32 s71, 3"); A("s_cbranch_scc0 L_cskip"); A("s_mov_b32 exec_lo, s70"); A("s_mov_b32 exec_hi, 0")
            A(f"global_load_dwordx4 {v4(56+4*k)}, v48, s[40:41] sc1")
            A("s_mov_b64 exec, -1")
            if k == 3: A("L_cskip:")
            if k < 3: A(f"v_add_u32 v48, {8*512}, v48")
        A("s_waitcnt vmcnt(0)")
        A(f"""
        v_and_b32 v44, 31, v1
        s_lshl_b32 s8, s69, 1
        v_cmp_le_u32 vcc, s8, v44
        """)
        for k in range(4):
            for r in range(4): A(f"v_cndmask_b32 v{56+4*k+r}, v{56+4*k+r}, v{TG+r}, vcc")
        A(f"""
        s_cmp_lt_u32 s71, 3
        s_cselect_b32 s8, 0xffffffff, 0
        s_mov_b32 s9, 0
        s_not_b64 vcc, s[8:9]
        """)
        for r in range(4): A(f"v_cndmask_b32 v{68+r}, v{68+r}, v{TG+r}, vcc")
        chk4([56, 60, 64, 68], "L_cok")
        A(f"""
        s_sleep 64
        s_sub_u32 s73, s73, 1
        s_cbranch_scc0 L_cpoll
        L_cok:
        """)
        sum_quads([56, 60, 64, 68])
        for r in range(4): A(f"v_mov_b32 v{60+r}, v{56+r}")
        for r in range(4): A(f"v_permlane32_swap_b32 v{56+r}, v{60+r}")
        for r in range(4): A(f"v_add_f32 v{56+r}, v{56+r}, v{60+r}")
        A(f"""
        s_lshl_b32 s8, s71, 9
        v_lshlrev_b32 v45, 4, v1
        v_add_u32 v45, s8, v45
        s_mov_b32 exec_hi, 0
        ds_write_b128 v45, v[56:59] offset:{FS}
        s_mov_b32 exec_hi, -1
        """)
        hbarrier(4)
        A(f"v_lshlrev_b32 v45, 4, v1")
        A("s_mov_b32 exec_hi, 0")
        for w in range(4): A(f"ds_read_b128 {v4(56+4*w)}, v45 offset:{FS+512*w}")
        A("s_mov_b32 exec_hi, -1")
        A("s_waitcnt lgkmcnt(0)")
        sum_quads([56, 60, 64, 68])
        for r in range(4): A(f"v_mov_b32 v{FSUM+r}, v{56+r}")
    else:
        for r in range(4): A(f"v_mov_b32 v{FSUM+r}, 0")
    A("L_nocol:")
    if CTL:
        A("s_cmp_eq_u32 s71, 1"); A("s_cbranch_scc0 L_noctl")
        A(f"""
        s_lshl_b32 s8, s2, 7
        s_add_u32 s8, s8, {PF}
        v_mov_b32 v46, s8
        v_add_u32 v47, 1, v1
        v_xor_b32 v47, s2, v47
        v_lshlrev_b32 v47, 7, v47
        v_add_u32 v47, {PF}, v47
        v_mov_b32 v44, 0
        v_mov_b32 v48, s74
        s_mov_b32 s11, 0
        L_ctl:
        s_mov_b64 exec, 1
        s_add_u32 s11, s11, 1
        s_lshl_b32 s9, s11, 2
        s_sub_u32 s9, s9, {int(opt.get("ckq", 1))}
        s_mov_b32 s73, {SPIN}
        L_ctl_w:
        ds_read_b32 v45, v44 offset:{CKC}
        s_waitcnt lgkmcnt(0)
        v_readfirstlane_b32 s8, v45
        s_cmp_ge_u32 s8, s9
        s_cbranch_scc1 L_ctl_go
        s_sleep 4
        s_sub_u32 s73, s73, 1
        s_cbranch_scc0 L_ctl_w
        L_ctl_go:
        global_store_dword v46, v48, s[40:41] sc1
        s_mov_b64 exec, {CMASK:#x}
        global_load_dword v45, v47, s[40:41] sc1
        s_waitcnt vmcnt(0)
        v_cmp_eq_u32 vcc, s74, v45
        s_bcnt1_i32_b64 s8, vcc
        s_cmp_ge_u32 s8, {CT2 if L3 else 99}
        s_cselect_b32 s9, 1, 0
        s_cmp_ge_u32 s8, {CTHR}
        s_cselect_b32 s8, 1, 0
        s_add_u32 s8, s8, s9
        s_mov_b64 exec, -1
        v_mov_b32 v45, s8
        ds_write_b32 v44, v45 offset:{MODE}
        v_add_u32 v46, 4, v46
        v_add_u32 v47, 4, v47
        s_cmp_lt_u32 s11, {len(CKS)}
        s_cbranch_scc1 L_ctl
        s_mov_b64 exec, -1
        s_branch L_B2
        L_noctl:
        """)
    lds_spin(CNTK, "ge", 8, 4)
    A("s_cmp_eq_u32 s71, 0"); A("s_cbranch_scc0 L_nostat")
    A(f"""
    v_and_b32 v44, 3, v1
    v_lshlrev_b32 v44, 3, v44
    ds_read_b64 v[46:47], v44 offset:{ST}
    s_waitcnt lgkmcnt(0)
    v_mov_b32 v48, v46
    v_max_f32_dpp v48, v48, v48 quad_perm:[2,3,0,1] row_mask:0xf bank_mask:0xf
    v_max_f32_dpp v48, v48, v48 quad_perm:[1,0,3,2] row_mask:0xf bank_mask:0xf
    v_sub_f32 v49, v46, v48
    v_exp_f32 v49, v49
    v_mul_f32 v49, v49, v47
    v_add_f32_dpp v49, v49, v49 quad_perm:[2,3,0,1] row_mask:0xf bank_mask:0xf
    v_add_f32_dpp v49, v49, v49 quad_perm:[1,0,3,2] row_mask:0xf bank_mask:0xf
    s_lshl_b32 s8, s2, 7
    s_add_u32 s8, s8, {SX}
    v_mov_b32 v44, s8
    v_mov_b32 v56, v48
    v_mov_b32 v57, s74
    v_mov_b32 v58, v49
    v_mov_b32 v59, s74
    s_mov_b64 exec, 1
    global_store_dwordx4 v44, v[56:59], s[40:41] sc1
    s_xor_b32 s8, s2, {PX_}
    s_lshl_b32 s8, s8, 7
    s_add_u32 s8, s8, {SX}
    v_mov_b32 v44, s8
    s_mov_b32 s73, {SPIN}
    L_pspin:
    global_load_dwordx4 v[60:63], v44, s[40:41] sc1
    s_waitcnt vmcnt(0)
    """)
    check_tags([61, 63], "L_pok")
    A(f"""
    s_sleep 32
    s_sub_u32 s73, s73, 1
    s_cbranch_scc0 L_pspin
    L_pok:
    v_readfirstlane_b32 s8, v60
    v_readfirstlane_b32 s9, v62
    s_mov_b64 exec, -1
    v_mov_b32 v60, s8
    v_mov_b32 v62, s9
    v_max_f32 v52, v48, v60
    v_sub_f32 v53, v48, v52
    v_sub_f32 v54, v60, v52
    v_exp_f32 v53, v53
    v_exp_f32 v54, v54
    v_mul_f32 v53, v53, v49
    v_fma_f32 v53, v54, v62, v53
    v_rcp_f32 v53, v53
    v_sub_f32 v54, v46, v52
    v_exp_f32 v54, v54
    v_mul_f32 v54, v54, v53
    v_and_b32 v44, 3, v1
    v_lshlrev_b32 v44, 2, v44
    v_mov_b32 v45, 1
    v_mov_b32 v55, 0
    s_mov_b64 exec, 15
    ds_write_b32 v44, v54 offset:{SCALE}
    s_mov_b64 exec, 1
    ds_write_b32 v55, v45 offset:{SCRDY}
    s_mov_b64 exec, -1
    L_nostat:
    """)
    A("L_B2:")
    if opt.get("lowprio"): A("s_setprio 3")
    if HST == 3: A("s_waitcnt lgkmcnt(0)"); A("s_barrier"); A("s_branch L_hend")
    A(f"""
    s_lshl_b32 s10, s71, 6
    s_lshl_b32 s9, s4, 1
    s_add_u32 s10, s10, s9
    s_lshl_b32 s10, s10, 9
    s_add_u32 s10, s10, {OX}
    v_lshlrev_b32 v46, 4, v1
    v_add_u32 v46, s10, v46
    v_lshlrev_b32 v49, 9, v1
    v_add_u32 v49, s10, v49
    v_and_b32 v47, 1, v1
    v_lshlrev_b32 v47, 7, v47
    v_bfe_u32 v48, v1, 1, 4
    v_lshlrev_b32 v48, 2, v48
    v_add_u32 v47, v47, v48
    s_lshl_b32 s8, s71, 8
    v_add_u32 v47, s8, v47
    v_add_u32 v47, {OB}, v47
    v_lshlrev_b32 v48, 6, v{vG}
    v_add_u32 v48, s8, v48
    v_lshlrev_b32 v41, 5, v{vC}
    v_lshlrev_b32 v42, 4, v{vG}
    v_add_u32 v41, v41, v42
    s_lshl_b32 s8, s71, 9
    v_add_u32 v41, s8, v41
    v_lshlrev_b32 v42, 4, v1
    v_add_u32 v42, s8, v42
    s_lshl_b32 s10, s72, 2
    s_add_u32 s10, s10, s71
    s_lshl_b32 s10, s10, 5
    s_add_u32 s10, s10, s4
    s_lshl_b32 s10, s10, 9
    s_add_u32 s10, s10, {YX}
    v_lshlrev_b32 v43, 5, v{vC}
    v_lshlrev_b32 v44, 4, v{vG}
    v_add_u32 v43, v43, v44
    v_add_u32 v43, s10, v43
    s_cmp_eq_u32 s67, 16
    s_cselect_b32 s43, -1, 0x00ff00ff
    s_waitcnt lgkmcnt(0)
    s_barrier
    """)
    stamp(6)
    if DUAL:
        A(f"""
        v_add_u32 v49, {(OXA - OX) & 0xffffffff:#x}, v46
        s_mov_b32 s73, {SPIN}
        L_opoll:
        global_load_dwordx4 v[56:59], v49, s[40:41] sc1
        s_waitcnt vmcnt(0)
        """)
        chk4([56], "L_ook")
        A(f"""
        s_and_b32 s8, s73, 3
        s_cmp_eq_u32 s8, 0
        s_cbranch_scc0 L_onext
        global_load_dwordx4 v[56:59], v46, s[40:41] sc1
        s_waitcnt vmcnt(0)
        """)
        chk4([56], "L_ook")
        A(f"""
        L_onext:
        s_sub_u32 s73, s73, 1
        s_cbranch_scc0 L_opoll
        L_ook:
        """)
    elif opt.get("op2"):
        A(f"""
        s_mov_b32 s73, {SPIN}
        global_load_dwordx4 v[84:87], v46, s[40:41] sc1
        s_sleep {int(opt.get("op2"))}
        L_opoll:
        global_load_dwordx4 v[88:91], v46, s[40:41] sc1
        s_waitcnt vmcnt(1)
        """)
        chk4([84], "L_ookA")
        A(f"""
        global_load_dwordx4 v[84:87], v46, s[40:41] sc1
        s_waitcnt vmcnt(1)
        """)
        chk4([88], "L_ookB")
        A(f"""
        s_sub_u32 s73, s73, 1
        s_cbranch_scc0 L_opoll
        L_ookA:
        """)
        for r in range(4): A(f"v_mov_b32 v{56+r}, v{84+r}")
        A("s_branch L_ook")
        A("L_ookB:")
        for r in range(4): A(f"v_mov_b32 v{56+r}, v{88+r}")
        A("L_ook:")
    else:
        A(f"""
        s_mov_b32 s73, {SPIN}
        L_opoll:
        global_load_dwordx4 v[56:59], v46, s[40:41] sc1
        s_waitcnt vmcnt(0)
        """)
        chk4([56], "L_ook")
        A(f"""
        {"s_sleep " + str(OSL) if OSL else ""}
        s_sub_u32 s73, s73, 1
        s_cbranch_scc0 L_opoll
        L_ook:
        """)
    for r in range(4): A(f"v_mov_b32 v{60+r}, v{56+r}")
    for r in range(4): A(f"v_permlane32_swap_b32 v{56+r}, v{60+r}")
    for r in range(4): A(f"v_add_f32 v{56+r}, v{56+r}, v{60+r}")
    A(f"""
    v_cvt_pk_bf16_f32 v56, v56, v57
    v_cvt_pk_bf16_f32 v57, v58, v59
    s_mov_b32 exec_hi, 0
    ds_write2_b32 v47, v56, v57 offset0:{0} offset1:{16}
    s_mov_b32 exec_hi, -1
    """.replace("v47, v56, v57 offset0:0 offset1:16", "v47, v56, v57 offset0:0 offset1:16"))
    XO = 64
    for k in range(4): A(f"ds_read_b128 {v4(XO+4*k)}, v48 offset:{OB+16*k}")
    if stamps: A("s_waitcnt lgkmcnt(0)")
    stamp(7)
    if not stamps: A("s_waitcnt lgkmcnt(3)")
    perms(XO, 0, 8)
    for i in range(32):
        if i + 1 < 32:
            if (i + 1) % 8 == 0 and not stamps: A(f"s_waitcnt lgkmcnt({3 - (i+1)//8})")
            perms(XO + (i+1)//2, (i+1) & 1, 8 + 4*((i+1) & 1))
        mfma(4, 8 + 4*(i & 1), WOr + 4*i, "0" if i == 0 else "v[4:7]")
    for k in range(4): A(f"v_mul_f32 v{4+k}, v{4+k}, v33")
    tag4(4)
    A(f"""
    s_mov_b32 exec_lo, s43
    s_mov_b32 exec_hi, 0
    global_store_dwordx4 v43, v[4:7], s[40:41] sc1
    s_mov_b64 exec, -1
    {"s_branch L_hend" if HST == 4 else ""}
    s_cmp_eq_u32 s75, 1
    s_cbranch_scc0 L_hend
    s_lshl_b32 s10, s76, 2
    s_add_u32 s10, s10, s77
    s_lshl_b32 s10, s10, 5
    s_lshl_b32 s9, s71, 3
    s_add_u32 s10, s10, s9
    s_lshl_b32 s10, s10, 9
    s_add_u32 s10, s10, {YX}
    v_lshrrev_b32 v46, 5, v1
    v_lshlrev_b32 v46, 9, v46
    v_and_b32 v47, 31, v1
    v_lshlrev_b32 v47, 4, v47
    v_add_u32 v46, v46, v47
    v_add_u32 v46, s10, v46
    v_add_u32 v47, 2048, v46
    """)
    ya = [(46, 0), (46, 1024), (47, 0), (47, 1024)]
    A(f"""
    s_mov_b32 s73, {SPIN}
    s_mov_b32 s52, s70
    s_mov_b32 s53, s70
    s_mov_b64 s[54:55], s[52:53]
    s_mov_b64 s[56:57], s[52:53]
    s_mov_b64 s[58:59], s[52:53]
    s_mov_b32 s12, 0x0c0c0400
    s_mov_b32 s13, 0x04000c0c
    L_ypoll:
    """)
    for q, (ar, off) in enumerate(ya):
        A(f"s_mov_b64 exec, s[{52+2*q}:{53+2*q}]")
        A(f"s_cbranch_execz L_ysk{q}")
        A(f"global_load_dwordx4 {v4(56+4*q)}, v{ar}, s[40:41] offset:{off} sc1")
        A(f"L_ysk{q}:")
    A("s_mov_b32 exec_lo, s70"); A("s_mov_b32 exec_hi, s70")
    A("s_waitcnt vmcnt(0)")
    for q in range(4):
        d = 56 + 4*q
        A(f"v_perm_b32 v44, v{d+1}, v{d}, s12")
        A(f"v_perm_b32 v45, v{d+3}, v{d+2}, s13")
        A(f"v_or_b32 v44, v44, v45")
        A(f"v_cmp_ne_u32 s[{52+2*q}:{53+2*q}], s74, v44")
    A(f"""
    s_or_b64 s[8:9], s[52:53], s[54:55]
    s_or_b64 s[10:11], s[56:57], s[58:59]
    s_or_b64 s[8:9], s[8:9], s[10:11]
    s_cbranch_scc0 L_yok
    {"s_sleep " + str(int(opt.get("ysl", 1))) if int(opt.get("ysl", 1)) else ""}
    s_sub_u32 s73, s73, 1
    s_cbranch_scc0 L_ypoll
    L_yok:
    s_mov_b64 exec, -1
    """)
    sum_quads([56, 60, 64, 68])
    for r in range(4): A(f"v_mov_b32 v{60+r}, v{56+r}")
    for r in range(4): A(f"v_permlane32_swap_b32 v{56+r}, v{60+r}")
    for r in range(4): A(f"v_add_f32 v{56+r}, v{56+r}, v{60+r}")
    A(f"""
    s_lshl_b32 s8, s71, 9
    v_lshlrev_b32 v45, 4, v1
    v_add_u32 v45, s8, v45
    s_mov_b32 exec_hi, 0
    ds_write_b128 v45, v[56:59] offset:{FS}
    s_mov_b32 exec_hi, -1
    s_waitcnt lgkmcnt(0)
    s_barrier
    s_cmp_eq_u32 s71, 0
    s_cbranch_scc0 L_hend
    v_lshlrev_b32 v45, 4, v1
    s_mov_b32 exec_lo, s70
    s_mov_b32 exec_hi, 0
    """)
    for w in range(4): A(f"ds_read_b128 {v4(56+4*w)}, v45 offset:{FS+512*w}")
    A(f"""
    s_mul_i32 s8, s77, 1280
    s_add_u32 s8, s8, s65
    v_lshlrev_b32 v44, 3, v1
    v_add_u32 v44, s8, v44
    s_waitcnt lgkmcnt(0)
    """)
    sum_quads([56, 60, 64, 68])
    for k in (0, 2): pk(56+k, 56+k, FSUM+k)
    A(f"""
    v_cvt_pk_bf16_f32 v56, v56, v57
    v_cvt_pk_bf16_f32 v57, v58, v59
    global_store_dwordx2 v44, v[56:57], s[36:37] {opt.get("outf", "")}
    s_mov_b64 exec, -1
    """)
    A("L_hend:")
    stamp(8)
    store_stamps(9)
    A("L_end:")
    A("s_endpgm")
    body = A.finalize()
    body += f""".section .rodata,"a"
.p2align 6
.amdhsa_kernel {NAME}_kernel
  .amdhsa_next_free_vgpr 256
  .amdhsa_next_free_sgpr 102
  .amdhsa_accum_offset 256
  .amdhsa_group_segment_fixed_size 0
  .amdhsa_kernarg_size 104
  .amdhsa_user_sgpr_count 2
  .amdhsa_user_sgpr_kernarg_segment_ptr 1
  .amdhsa_system_sgpr_workgroup_id_x 1
.end_amdhsa_kernel
"""
    return body

if __name__ == "__main__":
    out = sys.argv[1] if len(sys.argv) > 1 else f"cdna_kernels/{NAME}.s"
    opt = {}
    for a in sys.argv[2:]:
        k, v = a.split("=")
        opt[k] = {"1": True, "0": False}.get(v, v) if k in ("stamps", "fine", "noffn") else v
    open(out, "w").write(gen(opt))
    print("wrote", out)
```

```python
import sys, struct
sys.path.insert(0, "gen")
from asmb import Asm
NAME = "gated_mix__mha_block_cached__swiglu_ffn__decode"
def f2u(x): return struct.unpack("<I", struct.pack("<f", x))[0]
LOG2E = 1.4426950408889634
CSC = LOG2E / (128 ** 0.5)
CNTK = 0; CNTH = 4; SCRDY = 8; QRDY = 12; CKC = 16; MODE = 20; NONCE = 32
ST = 40; SCALE = 72
QB = 128; HB = 512; OB = 1024; YS = 2048; OP = 4096; FS = 6144
GP = 8192; WOL = 16384; YP2 = 49152
XL = 49152 + 8192
GWL = XL + 5120
LDS_BYTES = GWL + 1280
SX = 0; QX = 0x10000; FX = 0x50000; OX = 0xE0000; YX = 0x100000; OXA = 0xA0000; FY = 0x180000; PF = 0x8000
NFFN = 108; FFN0 = 20
SPIN = 200000

HEADER = """; gated_mix( mha_block_cached, swiglu_ffn ) decode step, gfx950, one launch, 256 workgroups of 8 waves (one per CU).
;   48 w_gate (640,1728) | 56 w_up (640,1728) | 64 w_down (1728,640) | 72 gate_w (640) | 80 out (4,1,640) bf16 | 88 debug (256 B, zero) | 96 ws
; Waves 0-3 (S) stream K then V of their 2048 keys straight into registers (1 KiB nontemporal loads, outstanding count
; Waves 4-7 (H) do the small GEMVs, each weight byte being read by exactly one workgroup: a 160x64 piece of wq, a
;   160x64 piece of w_gate / w_up, a 64 x (64|128) piece of w_down and a 128 x (64|128) piece of wo, all through the same
;   mantissa bytes carry a per-launch nonce (elected in the zeroed debug word), written with sc1 stores and read with sc1
;   loads; no atomics on data, nothing depends on placement or on what ws held before.
; 32 finaliser workgroups sum the per-head and FFN partials of one (column block, batch) and write the bf16 output.
; A progress flag exchange among neighbouring workgroups selects between two outstanding-load bounds so that all dies finish together.
"""
class VMQ:
    def __init__(self, A): self.q = []; self.A = A
    def issue(self, tag):
        self.q.append(tag); assert len(self.q) <= 63, len(self.q)
    def pace(self, depth):
        if depth and len(self.q) >= depth:
            self.A(f"s_waitcnt vmcnt({depth-1})"); self.q = self.q[len(self.q) - (depth - 1):] if depth > 1 else []
    def wait(self, tag):
        if tag not in self.q: return
        idx = self.q.index(tag); n = len(self.q) - 1 - idx
        self.A(f"s_waitcnt vmcnt({n})"); self.q = self.q[idx + 1:]

def gen(opt=None):
    opt = opt or {}
    KVF = opt.get("kvflags", "nt"); WF = opt.get("wflags", "nt")
    stamps = opt.get("stamps", False); FINE = opt.get("fine", False)
    NSLEEP = int(opt.get("nsleep", 10)); QSLEEP = int(opt.get("qsleep", 16))
    WK = int(opt.get("wk", 32)); WV = int(opt.get("wv", 48))
    BP = int(opt.get("bp", 2))
    FSTOP = int(opt.get("fstop", 0))
    OSL = int(opt.get("osl", 1)); FSL = int(opt.get("fsl", 48))
    A = Asm()
    A(f"; @launch grid=(256,1,1) block=(512,1,1) lds={LDS_BYTES}")
    for l in HEADER.strip().split("\n"): A.lines.append(l)
    A('.amdgcn_target "amdgcn-amd-amdhsa--gfx950"')
    A(".text"); A(f".globl {NAME}_kernel"); A(".p2align 8"); A(f".type {NAME}_kernel,@function"); A(f"{NAME}_kernel:")
    vG, vC = 34, 35
    SELL, SELH = 16, 20
    M = 36; Q = 40
    uid = [0]
    def U(): uid[0] += 1; return uid[0]
    def v4(r): return f"v[{r}:{r+3}]"
    def stamp(i):
        if stamps: A(f"s_memrealtime s[{80+2*i}:{81+2*i}]")
    def store_stamps(n):
        if not stamps: return
        A("""
        s_waitcnt lgkmcnt(0)
        s_lshl_b32 s8, s2, 10
        s_lshl_b32 s9, s3, 7
        s_add_u32 s8, s8, s9
        s_add_u32 s8, s8, 0x2000000
        v_mov_b32 v44, s8
        s_mov_b64 exec, 1
        """)
        for i in range(n):
            A(f"v_mov_b32 v45, s{80+2*i}"); A(f"global_store_dword v44, v45, s[40:41] offset:{4*i}"); A("s_nop 0")
        A("s_getreg_b32 s9, hwreg(HW_REG_XCC_ID)"); A("v_mov_b32 v45, s9"); A("global_store_dword v44, v45, s[40:41] offset:120")
        A("s_mov_b64 exec, -1")
    def lds_spin(off, cond, sleep, val=None):
        t = U()
        A(f"""
        v_mov_b32 v44, 0
        s_mov_b32 s73, {SPIN}
        L_sp{t}:
        ds_read_b32 v45, v44 offset:{off}
        s_waitcnt lgkmcnt(0)
        v_readfirstlane_b32 s8, v45
        """)
        if cond == "nz": A("s_cmp_lg_u32 s8, 0")
        else: A(f"s_cmp_ge_u32 s8, {val}")
        A(f"""
        s_cbranch_scc1 L_sp{t}_ok
        s_sleep {sleep}
        s_sub_u32 s73, s73, 1
        s_cbranch_scc0 L_sp{t}
        L_sp{t}_ok:
        """)
    def hbarrier(n, sleep=1):
        A(f"""
        s_waitcnt lgkmcnt(0)
        v_mov_b32 v44, 0
        v_mov_b32 v45, 1
        s_mov_b64 exec, 1
        ds_add_u32 v44, v45 offset:{CNTH}
        s_mov_b64 exec, -1
        """)
        lds_spin(CNTH, "ge", sleep, 4 * n)
    def perms(xreg, hi, aset):
        sel = SELH if hi else SELL
        for r in range(4): A(f"v_perm_b32 v{aset+r}, v{xreg}, v{xreg}, v{sel+r}")
    def pk(d, a, b): A(f"v_pk_add_f32 v[{d}:{d+1}], v[{a}:{a+1}], v[{b}:{b+1}]")
    def mfma(d, a, b, c): A(f"v_mfma_f32_16x16x32_bf16 {v4(d)}, {v4(a)}, {v4(b)}, {c}")
    def rowreduce(op, reg):
        A(f"{op}_dpp v{reg}, v{reg}, v{reg} row_ror:8 row_mask:0xf bank_mask:0xf")
        A(f"{op}_dpp v{reg}, v{reg}, v{reg} row_ror:4 row_mask:0xf bank_mask:0xf")
        A(f"{op}_dpp v{reg}, v{reg}, v{reg} quad_perm:[2,3,0,1] row_mask:0xf bank_mask:0xf")
        A(f"{op}_dpp v{reg}, v{reg}, v{reg} quad_perm:[1,0,3,2] row_mask:0xf bank_mask:0xf")
    def wavereduce(op, reg):
        rowreduce(op, reg)
        for k in range(4): A(f"v_readlane_b32 s{8+k}, v{reg}, {16*k}")
        A(f"v_mov_b32 v{reg}, s8")
        for k in range(1, 4): A(f"{op} v{reg}, s{8+k}, v{reg}")
    def check_tags(tags, okl):
        A(f"v_cmp_ne_u32 s[78:79], s74, v{tags[0]}")
        for t in tags[1:]:
            A(f"v_cmp_ne_u32 vcc, s74, v{t}")
            A("s_or_b64 s[78:79], s[78:79], vcc")
        A("s_cmp_eq_u64 s[78:79], 0")
        A(f"s_cbranch_scc1 {okl}")
    def blk(sj, soff, snch, smask):
        A(f"""
        s_cmp_ge_u32 {sj}, 1
        s_cselect_b32 {soff}, 1, 0
        s_add_u32 {soff}, {soff}, {sj}
        s_cmp_ge_u32 {sj}, 5
        s_addc_u32 {soff}, {soff}, 0
        s_lshl_b32 {soff}, {soff}, 7
        s_and_b32 {snch}, {sj}, 3
        s_cmp_eq_u32 {snch}, 0
        s_cselect_b32 {snch}, 16, 8
        s_cselect_b32 {smask}, -1, 0xffff
        """)
    TG = 28
    def tag4(d, tg=TG):
        for k in range(4): A(f"v_and_or_b32 v{d+k}, v{d+k}, s75x, v{tg+k}".replace("s75x", "s14"))
    def settags(nonce_v, tg):
        A("s_mov_b32 s14, 0xffffff00")
        A(f"v_and_b32 v{tg}, 0xff, v{nonce_v}")
        for k in range(1, 4): A(f"v_bfe_u32 v{tg+k}, v{nonce_v}, {8*k}, 8")
    def chk4(quads, okl, tmp=44):
        A("s_mov_b32 s12, 0x0c0c0400"); A("s_mov_b32 s13, 0x04000c0c")
        for i, d in enumerate(quads):
            A(f"v_perm_b32 v{tmp}, v{d+1}, v{d}, s12")
            A(f"v_perm_b32 v{tmp+1}, v{d+3}, v{d+2}, s13")
            A(f"v_or_b32 v{tmp}, v{tmp}, v{tmp+1}")
            if i == 0: A(f"v_cmp_ne_u32 s[78:79], s74, v{tmp}")
            else:
                A(f"v_cmp_ne_u32 vcc, s74, v{tmp}"); A("s_or_b64 s[78:79], s[78:79], vcc")
        A("s_cmp_eq_u64 s[78:79], 0"); A(f"s_cbranch_scc1 {okl}")
    def probe(addr_v, mask, sleep):
        t = U()
        A(f"""
        s_mov_b32 s73, {SPIN}
        s_and_b32 s15, s74, 0xff
        s_mov_b64 exec, {mask:#x}
        L_pr{t}:
        global_load_dword v45, v{addr_v}, s[40:41] sc1
        s_waitcnt vmcnt(0)
        v_and_b32 v45, 0xff, v45
        v_cmp_ne_u32 vcc, s15, v45
        s_cmp_eq_u64 vcc, 0
        s_cbranch_scc1 L_pr{t}_ok
        s_sleep {sleep}
        s_sub_u32 s73, s73, 1
        s_cbranch_scc0 L_pr{t}
        L_pr{t}_ok:
        s_mov_b64 exec, -1
        """)

    A("""
    s_cmp_ge_u32 s2, 256
    s_cbranch_scc1 L_end
    s_load_dwordx16 s[16:31], s[0:1], 0
    s_load_dwordx8 s[32:39], s[0:1], 64
    s_load_dwordx2 s[40:41], s[0:1], 96
    """)
    stamp(0)
    if opt.get("delaywg") is not None:
        A(f"s_cmp_eq_u32 s2, {int(opt['delaywg'])}"); A("s_cbranch_scc0 L_nodelay"); A("s_mov_b32 s8, 60")
        A("L_dly:"); A("s_sleep 64"); A("s_sub_u32 s8, s8, 1"); A("s_cbranch_scc0 L_dly"); A("L_nodelay:")
    EB = opt.get("eb", "0") in ("1", True)
    EB_A = "s_barrier" if EB else ""
    DUAL = opt.get("dual", "1") in ("1", True)
    MAP = opt.get("map", "loc")
    if MAP == "loc":
        MAPCODE = """s_and_b32 s4, s2, 31
    s_lshr_b32 s5, s2, 6
    s_bfe_u32 s6, s2, 0x10005
    s_lshl_b32 s7, s5, 5
    s_add_u32 s7, s7, s4"""; PX_ = 32
    else:
        MAPCODE = """s_lshr_b32 s8, s2, 1
    s_xor_b32 s9, s8, s2
    s_and_b32 s9, s9, 1
    s_and_b32 s6, s8, 1
    s_lshr_b32 s8, s2, 2
    s_lshl_b32 s8, s8, 1
    s_add_u32 s7, s8, s9
    s_and_b32 s4, s7, 31
    s_lshr_b32 s5, s7, 5"""; PX_ = 3
    if stamps and opt.get("clk"): A("s_memtime s[100:101]")
    A(f"""
    v_lshrrev_b32 v3, 6, v0
    v_and_b32 v1, 63, v0
    v_readfirstlane_b32 s3, v3
    v_mov_b32 v4, 0
    v_mov_b32 v5, 0
    v_mov_b32 v6, 0
    v_mov_b32 v7, 0
    s_cmp_eq_u32 s3, 4
    s_cbranch_scc0 L_noz
    s_mov_b64 exec, 1
    ds_write_b128 v4, v[4:7] offset:0
    ds_write_b128 v4, v[4:7] offset:16
    s_mov_b64 exec, -1
    {"s_waitcnt lgkmcnt(0)" if EB else ""}
    L_noz:
    {"s_waitcnt lgkmcnt(0)" if False else ""}
    {EB_A}
    {MAPCODE}
    v_lshrrev_b32 v{vG}, 4, v1
    v_and_b32 v{vC}, 15, v1
    s_cmp_ge_u32 s3, 4
    s_cbranch_scc1 L_H
    """)
    A(f"""
    s_lshl_b32 s9, s3, 12
    v_lshlrev_b32 v2, 4, v1
    v_add_u32 v2, s9, v2
    s_lshl_b32 s8, s7, 20
    s_cmp_eq_u32 s6, 0
    s_cselect_b32 s64, 0, {(32 if opt.get("fwd") else 63)*16384}
    s_mov_b32 s9, 16384
    s_cselect_b32 s43, s9, {(16384 if opt.get("fwd") else -16384) & 0xffffffff:#x}
    s_waitcnt lgkmcnt(0)
    s_add_u32 s52, s18, s8
    s_addc_u32 s53, s19, 0
    s_and_b32 s53, s53, 0xffff
    s_mov_b32 s54, 0x100000
    s_mov_b32 s55, 0x20000
    s_add_u32 s56, s20, s8
    s_addc_u32 s57, s21, 0
    s_and_b32 s57, s57, 0xffff
    s_mov_b32 s58, 0x100000
    s_mov_b32 s59, 0x20000
    s_mov_b32 s65, s64
    {"" if EB else "s_barrier"}
    """)
    vq = VMQ(A)
    def slot(sl): return 128 + 4 * sl if sl < 32 else 64 + 4 * (sl - 32)
    def kslot(i): return slot(i % WK)
    RING = opt.get("ring", "0") in ("1", True)
    if RING: WV = WK
    DEPTH = int(opt.get("depth", 6))
    CTL = opt.get("ctl", "0") in ("1", True)
    DSH = int(opt.get("dsh", 5))
    CMASK = int(opt.get("cmask", "0x7f"), 0); CTHR = int(opt.get("cthr", 4))
    L3 = opt.get("l3", "0") in ("1", True); DMID = int(opt.get("dmid", 6)); CT2 = int(opt.get("ct2", 5))
    CKS = [int(x) for x in opt.get("cks", "64,96,128,160,192,224").split(",")]
    ctl_on = [False]
    cur_pos = [0]
    POS2 = int(opt.get("pos2", 999)); DSH2 = int(opt.get("dsh2", 4)); DEPTH2 = int(opt.get("depth2", 0))
    DSH_0, DEPTH_0 = DSH, DEPTH
    def pace():
        nonlocal DSH, DEPTH
        if cur_pos[0] >= POS2: DSH, DEPTH = DSH2, DEPTH2
        else: DSH, DEPTH = DSH_0, DEPTH_0
        if not (CTL and ctl_on[0]):
            vq.pace(int(opt.get("d0", DEPTH))); return
        if L3:
            t = U()
            if len(vq.q) >= DSH:
                A("s_cmp_ge_u32 s76, 2"); A(f"s_cbranch_scc1 L_pc{t}")
                if len(vq.q) >= DMID: A(f"s_waitcnt vmcnt({DMID-1})")
                A("s_cmp_ge_u32 s76, 1"); A(f"s_cbranch_scc1 L_pc{t}"); A(f"s_waitcnt vmcnt({DSH-1})"); A(f"L_pc{t}:")
        elif len(vq.q) >= DSH:
            t = U()
            A("s_cmp_lg_u32 s76, 0"); A(f"s_cbranch_scc1 L_pc{t}"); A(f"s_waitcnt vmcnt({DSH-1})"); A(f"L_pc{t}:")
        vq.pace(DEPTH)
    def ctl_step(pos):
        cur_pos[0] = pos
        if not CTL: return
        if pos in CKS:
            A("s_mov_b64 exec, 1"); A(f"ds_add_u32 v17, v19 offset:{CKC}"); A("s_mov_b64 exec, -1")
        if pos >= CKS[0] and pos % 8 == 0:
            A("s_waitcnt lgkmcnt(0)"); A("v_readfirstlane_b32 s76, v18"); A(f"ds_read_b32 v18, v17 offset:{MODE}")
            ctl_on[0] = True
    def kload(i):
        pace()
        if i % 4 == 0 and i > 0: A("s_add_u32 s65, s65, s43")
        A(f"buffer_load_dwordx4 {v4(kslot(i))}, v2, s[52:55], s65 offen offset:{(i%4)*1024} {KVF}")
        vq.issue(("K", i))
    def vslot(v): return slot((128 + v) % WK) if RING else slot(v % WV)
    def vload(v):
        pace()
        if v == 0: A("s_mov_b32 s65, s64")
        elif v % 4 == 0: A("s_add_u32 s65, s65, s43")
        A(f"buffer_load_dwordx4 {v4(vslot(v))}, v2, s[56:59], s65 offen offset:{(v%4)*1024} {KVF}")
        vq.issue(("V", v))
    if opt.get("vpre"):
        A(f"buffer_load_dword v3, v2, s[56:59], s64 offen {KVF}")
        vq.issue("PT")
    for i in range(WK): kload(i)
    A(f"""
    v_and_b32 v44, 1, v{vC}
    v_cmp_eq_u32 vcc, 1, v44
    v_mov_b32 v45, 0x0000ffff
    v_mov_b32 v46, 0xffff0000
    v_cndmask_b32 v47, v45, v46, vcc
    v_bfe_u32 v44, v{vC}, 1, 2
    v_mov_b32 v46, 0
    """)
    for r in range(4):
        A(f"v_cmp_eq_u32 vcc, {r}, v44")
        A(f"v_cndmask_b32 v{M+r}, v46, v47, vcc")
    A(f"""
    s_mov_b32 s42, {f2u(CSC):#x}
    s_mov_b32 s66, 0xcccccccc
    s_mov_b32 s67, 0xcccccccc
    s_mov_b32 s68, 0xaaaaaaaa
    s_mov_b32 s69, 0xaaaaaaaa
    """)
    A("v_mov_b32 v17, 0"); A("v_mov_b32 v18, 0"); A("v_mov_b32 v19, 1"); A("s_mov_b32 s76, 0")
    lds_spin(QRDY, "nz", 2)
    A(f"""
    v_lshlrev_b32 v46, 4, v{vC}
    ds_read_b128 {v4(Q)}, v46 offset:{QB}
    ds_read_b32 v16, v44 offset:{NONCE}
    s_waitcnt lgkmcnt(0)
    """)
    stamp(1)
    T = 48
    def reduce16(dest):
        for a in range(8):
            A(f"v_add_f32_dpp v{T+a}, v{T+a}, v{T+a} row_ror:8 row_mask:0xf bank_mask:0x3")
            A(f"v_add_f32_dpp v{T+a}, v{T+a+8}, v{T+a+8} row_ror:8 row_mask:0xf bank_mask:0xc")
        for a in range(4):
            A(f"v_add_f32_dpp v{T+a}, v{T+a}, v{T+a} row_half_mirror row_mask:0xf bank_mask:0x5")
            A(f"v_add_f32_dpp v{T+a}, v{T+a+4}, v{T+a+4} row_half_mirror row_mask:0xf bank_mask:0xa")
        for a in range(2):
            A(f"v_cndmask_b32 v{44+2*a}, v{T+a}, v{T+a+2}, s[66:67]")
            A(f"v_cndmask_b32 v{45+2*a}, v{T+a+2}, v{T+a}, s[66:67]")
        for a in range(2):
            A(f"v_add_f32_dpp v{T+a}, v{45+2*a}, v{44+2*a} quad_perm:[2,3,0,1] row_mask:0xf bank_mask:0xf")
        A(f"v_cndmask_b32 v44, v{T}, v{T+1}, s[68:69]")
        A(f"v_cndmask_b32 v45, v{T+1}, v{T}, s[68:69]")
        A(f"v_add_f32_dpp v{dest}, v45, v44 quad_perm:[1,0,3,2] row_mask:0xf bank_mask:0xf")
    SC = 24
    nv = 0
    for j in range(0, 128, 2):
        vq.wait(("K", j + 1))
        for r in range(4 if not opt.get("nodot") else 0):
            for jj in (j, j+1):
                t = T + (jj & 15)
                c = "0" if r == 0 else f"v{t}"
                A(f"v_dot2_f32_bf16 v{t}, v{kslot(jj)+r}, v{Q+r}, {c}")
        for jj in (j, j+1):
            if jj + WK < 128: kload(jj + WK)
            else: vload(nv); nv += 1
        if (j + 1) % 16 == 15 and not opt.get("nodot"): reduce16(SC + (j >> 4))
        ctl_step(j + 2)
        if FINE and (j + 2) % 32 == 0: stamp(1 + (j + 2) // 32)
    if not FINE: stamp(2)
    B = Asm(); _A = A
    sm = []
    class Cap:
        def __call__(self, s):
            for l in s.split("\n"):
                if l.strip(): sm.append(l.strip())
    A = Cap()
    A(f"""
    v_max3_f32 v44, v{SC}, v{SC+1}, v{SC+2}
    v_max3_f32 v44, v44, v{SC+3}, v{SC+4}
    v_max3_f32 v44, v44, v{SC+5}, v{SC+6}
    v_max_f32 v44, v44, v{SC+7}
    """)
    wavereduce("v_max_f32", 44)
    A("v_mul_f32 v46, s42, v44")
    for k in range(8): A(f"v_fma_f32 v{SC+k}, v{SC+k}, s42, -v46")
    for k in range(8): A(f"v_exp_f32 v{SC+k}, v{SC+k}")
    A(f"""
    v_add_f32 v47, v{SC}, v{SC+1}
    v_add_f32 v44, v{SC+2}, v{SC+3}
    v_add_f32 v45, v{SC+4}, v{SC+5}
    v_add_f32 v48, v{SC+6}, v{SC+7}
    v_add_f32 v47, v47, v44
    v_add_f32 v45, v45, v48
    v_add_f32 v47, v47, v45
    """)
    wavereduce("v_add_f32", 47)
    for k in range(8): A(f"v_cvt_pk_bf16_f32 v{SC+k}, v{SC+k}, v{SC+k}")
    A = _A
    extra = WV - nv
    step = max(1, len(sm) // (extra + 1)) if extra > 0 else 0
    for i, l in enumerate(sm):
        A(l)
        if extra > 0 and (i + 1) % step == 0 and nv < WV: vload(nv); nv += 1
    while nv < WV: vload(nv); nv += 1
    A(f"""
    s_lshl_b32 s8, s3, 3
    v_mov_b32 v44, s8
    v_mov_b32 v45, 1
    v_mov_b32 v48, 0
    s_mov_b64 exec, 1
    ds_write_b64 v44, v[46:47] offset:{ST}
    ds_add_u32 v48, v45 offset:{CNTK}
    s_mov_b64 exec, -1
    """)
    A("; ----- V phase -----")
    for r in range(4): A(f"v_mov_b32 v{4+r}, 0")
    def abuild(v, aset):
        p, jj = SC + (v >> 4), v & 15
        for q in range(4):
            A(f"v_and_b32_dpp v{aset+q}, v{p}, v{M+q} row_newbcast:{jj} row_mask:0xf bank_mask:0xf")
    abuild(0, 8)
    for v in range(128):
        if FINE and v in (32, 64, 96): stamp(5 + v // 32)
        if v == 96:
            lds_spin(SCRDY, "nz", 2)
            A(f"""
            s_lshl_b32 s8, s3, 2
            v_mov_b32 v44, s8
            ds_read_b32 v50, v44 offset:{SCALE}
            v_lshlrev_b32 v60, 5, v{vC}
            v_lshlrev_b32 v61, 4, v{vG}
            v_add_u32 v60, v60, v61
            s_lshl_b32 s8, s3, 9
            v_add_u32 v60, s8, v60
            v_lshlrev_b32 v61, 4, v1
            s_lshl_b32 s8, s7, 1
            s_add_u32 s8, s8, s6
            s_lshl_b32 s8, s8, 9
            s_add_u32 s8, s8, {OX}
            v_add_u32 v62, s8, v61
            v_add_u32 v63, {(OXA - OX) & 0xffffffff:#x}, v62
            """)
            settags(16, 20)
        if v + 1 < 128 and not opt.get("nomfma"): abuild(v + 1, 8 + 4*((v+1) & 1))
        vq.wait(("V", v))
        if not opt.get("nomfma"): mfma(4, 8 + 4*(v & 1), vslot(v), "v[4:7]")
        if v + WV < 128: vload(v + WV)
        ctl_step(128 + v + 1)
    stamp(9 if FINE else 3)
    if stamps and opt.get("clk"):
        A("s_memtime s[76:77]"); A("s_waitcnt lgkmcnt(0)"); A("s_sub_u32 s76, s76, s100")
        A("s_lshl_b32 s8, s2, 10"); A("s_lshl_b32 s9, s3, 7"); A("s_add_u32 s8, s8, s9"); A("s_add_u32 s8, s8, 0x2000000")
        A("v_mov_b32 v44, s8"); A("v_mov_b32 v45, s76"); A("s_mov_b64 exec, 1"); A("global_store_dword v44, v45, s[40:41] offset:80"); A("s_mov_b64 exec, -1")
    A("s_waitcnt lgkmcnt(0)")
    for r in range(4): A(f"v_mul_f32 v{4+r}, v{4+r}, v50")
    A(f"""
    s_mov_b32 exec_hi, 0
    ds_write_b128 v60, v[4:7] offset:{OP}
    s_waitcnt lgkmcnt(0)
    s_barrier
    s_cmp_eq_u32 s3, 0
    s_cbranch_scc0 L_sexit
    """)
    for w in range(4): A(f"ds_read_b128 {v4(128+4*w)}, v61 offset:{OP+512*w}")
    A("s_waitcnt lgkmcnt(0)")
    for k in (0, 2):
        pk(128+k, 128+k, 132+k); pk(136+k, 136+k, 140+k); pk(128+k, 128+k, 136+k)
    tag4(128, 20)
    if DUAL: A("global_store_dwordx4 v63, v[128:131], s[40:41]")
    A(f"""
    global_store_dwordx4 v62, v[128:131], s[40:41] sc1
    L_sexit:
    s_mov_b32 exec_hi, -1
    """)
    store_stamps(10 if FINE else 4)
    A("s_endpgm")

    A("L_H:")
    SELX = 24
    A(f"""
    s_setprio 3
    s_sub_u32 s71, s3, 4
    s_lshl_b32 s72, s5, 1
    s_add_u32 s72, s72, s6
    v_and_b32 v44, 1, v{vC}
    v_cmp_eq_u32 vcc, 1, v44
    v_mov_b32 v45, 0x0c0c0100
    v_mov_b32 v46, 0x01000c0c
    v_cndmask_b32 v47, v45, v46, vcc
    v_mov_b32 v45, 0x0c0c0302
    v_mov_b32 v46, 0x03020c0c
    v_cndmask_b32 v48, v45, v46, vcc
    v_bfe_u32 v44, v{vC}, 1, 2
    v_mov_b32 v45, 0x0c0c0c0c
    v_cmp_gt_u32 s[12:13], 8, v{vC}
    """)
    for r in range(4):
        A(f"v_cmp_eq_u32 vcc, {r}, v44")
        A(f"v_cndmask_b32 v{SELL+r}, v45, v47, vcc")
        A(f"v_cndmask_b32 v{SELH+r}, v45, v48, vcc")
        A(f"v_cndmask_b32 v{SELX+r}, v{SELH+r}, v{SELL+r}, s[12:13]")
    A(f"""
    s_lshr_b32 s8, s72, 1
    s_mul_i32 s8, s8, 160
    s_mul_i32 s9, s71, 40
    s_add_u32 s8, s8, s9
    v_mul_u32_u24 v44, 10, v{vG}
    v_add_u32 v44, s8, v44
    v_lshlrev_b32 v46, 1, v44
    v_lshrrev_b32 v45, 3, v{vC}
    v_add_u32 v45, v44, v45
    v_lshlrev_b32 v45, 13, v45
    v_and_b32 v47, 7, v{vC}
    v_lshlrev_b32 v47, 4, v47
    v_add_u32 v48, v45, v47
    s_waitcnt lgkmcnt(0)
    s_or_b32 s8, s2, s71
    s_cmp_eq_u32 s8, 0
    s_cbranch_scc0 L_nononce
    s_memrealtime s[8:9]
    s_waitcnt lgkmcnt(0)
    s_or_b32 s8, s8, 1
    s_mul_i32 s8, s8, 0x9e3779b1
    v_mov_b32 v44, 0
    v_mov_b32 v50, s8
    v_mov_b32 v51, 0
    s_mov_b64 exec, 1
    global_atomic_cmpswap v44, v[50:51], s[38:39]
    s_mov_b64 exec, -1
    L_nononce:
    s_mov_b32 s44, s16
    s_and_b32 s45, s17, 0xffff
    s_mov_b32 s46, 5120
    s_mov_b32 s47, 0x20000
    s_lshl_b32 s8, s4, 8
    s_and_b32 s9, s72, 1
    s_lshl_b32 s9, s9, 7
    s_add_u32 s8, s8, s9
    s_add_u32 s48, s22, s8
    s_addc_u32 s49, s23, 0
    s_and_b32 s49, s49, 0xffff
    s_sub_u32 s50, 5242880, s8
    s_mov_b32 s51, 0x20000
    """)
    XQ = 56; WQr = 80
    A(f"""
    s_mul_i32 s8, s71, 1280
    v_lshlrev_b32 v44, 4, v1
    v_add_u32 v45, s8, v44
    s_add_u32 s9, s8, {XL}
    s_mov_b32 m0, s9
    s_mov_b32 s60, s34
    s_and_b32 s61, s35, 0xffff
    s_mov_b32 s62, 1280
    s_mov_b32 s63, 0x20000
    buffer_load_dwordx4 v45, s[44:47], 0 offen lds
    s_add_u32 m0, s9, 1024
    s_mov_b32 s64, 1024
    s_mov_b64 exec, 0xffff
    buffer_load_dwordx4 v45, s[44:47], s64 offen lds
    s_mov_b64 exec, -1
    s_cmp_eq_u32 s71, 0
    s_cbranch_scc0 L_nogw
    s_mov_b32 m0, {GWL}
    s_nop 0
    buffer_load_dwordx4 v44, s[60:63], 0 offen lds
    s_mov_b32 m0, {GWL+1024}
    s_mov_b64 exec, 0xffff
    buffer_load_dwordx4 v44, s[60:63], s64 offen lds
    s_mov_b64 exec, -1
    L_nogw:
    """)
    for i in range(5):
        A(f"s_mov_b32 s64, {2*i*8192}")
        A(f"buffer_load_dwordx4 {v4(WQr+4*i)}, v48, s[48:51], s64 offen {WF}")
    A("s_waitcnt lgkmcnt(0)")
    if not EB: A("s_barrier")
    A("s_waitcnt vmcnt(5)")
    hbarrier(1)
    for b in range(4): A(f"v_add_u32 v{100+b}, {XL + 1280*b}, v46")
    for b in range(4):
        A(f"ds_read2_b32 v[{XQ+6*b}:{XQ+6*b+1}], v{100+b} offset0:0 offset1:1")
        A(f"ds_read2_b32 v[{XQ+6*b+2}:{XQ+6*b+3}], v{100+b} offset0:2 offset1:3")
        A(f"ds_read_b32 v{XQ+6*b+4}, v{100+b} offset:16")
    A(f"""
    s_cmp_eq_u32 s71, 0
    s_cbranch_scc0 L_nopoll
    v_mov_b32 v44, 0
    s_mov_b32 s73, {SPIN}
    s_mov_b64 exec, 1
    L_npoll:
    global_load_dword v45, v44, s[38:39] sc1
    s_waitcnt vmcnt(0)
    v_readfirstlane_b32 s74, v45
    s_cmp_lg_u32 s74, 0
    s_cbranch_scc1 L_ngot
    s_and_b32 s8, s73, 15
    s_cmp_eq_u32 s8, 8
    s_cbranch_scc0 L_nelect
    s_memrealtime s[8:9]
    s_waitcnt lgkmcnt(0)
    s_or_b32 s8, s8, 1
    s_mul_i32 s8, s8, 0x9e3779b1
    v_mov_b32 v50, s8
    v_mov_b32 v51, 0
    global_atomic_cmpswap v44, v[50:51], s[38:39]
    L_nelect:
    s_sub_u32 s73, s73, 1
    s_cbranch_scc0 L_npoll
    L_ngot:
    v_mov_b32 v45, s74
    ds_write_b32 v44, v45 offset:{NONCE}
    s_mov_b64 exec, -1
    L_nopoll:
    """)
    A("s_waitcnt vmcnt(0) lgkmcnt(0)")
    stamp(1)
    def xq(b, i): return XQ + 6*b + i
    DQ = [4, 48, 52, 104]
    n = 0
    for i in range(5):
        for b in range(4):
            aset = 8 + 4 * (n & 1)
            for r in range(4): A(f"v_perm_b32 v{aset+r}, v{xq(b,i)}, v{xq(b,i)}, v{SELX+r}")
            mfma(DQ[b], aset, WQr + 4*i, "0" if i == 0 else v4(DQ[b]))
            n += 1
    A(f"""
    s_lshl_b32 s8, s71, 11
    v_lshrrev_b32 v45, 1, v{vG}
    v_lshlrev_b32 v45, 8, v45
    v_and_b32 v46, 7, v{vC}
    v_lshlrev_b32 v46, 5, v46
    v_add_u32 v45, v45, v46
    v_and_b32 v46, 1, v{vG}
    v_lshlrev_b32 v46, 4, v46
    v_add_u32 v45, v45, v46
    v_add_u32 v45, s8, v45
    s_mov_b32 exec_lo, 0x00ff00ff
    s_mov_b32 exec_hi, 0xff00ff00
    """)
    for b in range(4): A(f"ds_write_b128 v45, {v4(DQ[b])} offset:{GP+512*b}")
    A("s_mov_b64 exec, -1")
    hbarrier(2)
    A(f"""
    v_mov_b32 v44, 0
    ds_read_b32 v32, v44 offset:{NONCE}
    s_lshl_b32 s8, s71, 9
    v_lshlrev_b32 v45, 4, v{vC}
    v_add_u32 v45, s8, v45
    """)
    for w in range(4):
        for rho in range(2): A(f"ds_read_b128 {v4(56+8*w+4*rho)}, v45 offset:{GP+w*2048+rho*256}")
    A(f"""
    s_lshl_b32 s10, s4, 3
    s_add_u32 s10, s10, s72
    s_lshl_b32 s10, s10, 2
    s_add_u32 s10, s10, s71
    s_lshl_b32 s10, s10, 8
    s_add_u32 s10, s10, {QX}
    v_lshlrev_b32 v46, 4, v{vC}
    v_add_u32 v46, s10, v46
    s_waitcnt lgkmcnt(0)
    v_readfirstlane_b32 s74, v32
    """)
    settags(32, TG)
    def sum_quads(regs):
        regs = list(regs)
        while len(regs) > 1:
            nx = []
            for a in range(0, len(regs) - 1, 2):
                for k in (0, 2): pk(regs[a]+k, regs[a]+k, regs[a+1]+k)
                nx.append(regs[a])
            if len(regs) % 2: nx.append(regs[-1])
            regs = nx
    sum_quads([56+4*k for k in range(8)])
    tag4(56)
    A(f"""
    s_mov_b64 exec, 0xffff
    global_store_dwordx4 v46, v[56:59], s[40:41] sc1
    s_mov_b64 exec, -1
    """)
    stamp(2)
    def rows_reduce(regs):
        for r in regs: A(f"v_mov_b32 v{r+32}, v{r}")
        for r in regs: A(f"v_permlane16_swap_b32 v{r}, v{r+32}")
        for r in regs: A(f"v_add_f32 v{r}, v{r}, v{r+32}")
        for r in regs: A(f"v_mov_b32 v{r+32}, v{r}")
        for r in regs: A(f"v_permlane32_swap_b32 v{r}, v{r+32}")
        for r in regs: A(f"v_add_f32 v{r}, v{r}, v{r+32}")
    A(f"""
    s_cmp_eq_u32 s71, 0
    s_cbranch_scc0 L_noq
    s_lshl_b32 s10, s4, 5
    s_add_u32 s10, s10, s5
    s_lshl_b32 s10, s10, 8
    s_add_u32 s10, s10, {QX}
    v_lshlrev_b32 v46, 11, v{vG}
    v_lshlrev_b32 v47, 4, v{vC}
    v_add_u32 v46, v46, v47
    v_add_u32 v46, s10, v46
    s_mov_b32 s73, {SPIN}
    L_qpoll:
    {"s_sleep " + str(QSLEEP) if QSLEEP else ""}
    global_load_dwordx4 v[56:59], v46, s[40:41] sc1
    global_load_dwordx4 v[60:63], v46, s[40:41] offset:1024 sc1
    s_waitcnt vmcnt(0)
    """)
    chk4([56, 60], "L_qok")
    A(f"""
    s_sub_u32 s73, s73, 1
    s_cbranch_scc0 L_qpoll
    L_qok:
    """)
    rows_reduce(range(56, 64))
    A(f"""
    v_cvt_pk_bf16_f32 v56, v56, v57
    v_cvt_pk_bf16_f32 v57, v58, v59
    v_cvt_pk_bf16_f32 v58, v60, v61
    v_cvt_pk_bf16_f32 v59, v62, v63
    v_lshlrev_b32 v45, 3, v{vC}
    v_mov_b32 v44, 0
    v_mov_b32 v47, 1
    s_mov_b64 exec, 0xffff
    ds_write_b64 v45, v[56:57] offset:{QB}
    ds_write_b64 v45, v[58:59] offset:{QB+128}
    s_mov_b64 exec, 1
    ds_write_b32 v44, v47 offset:{QRDY}
    s_mov_b64 exec, -1
    L_noq:
    """)
    stamp(3)
    def idle_end():
        A(f"""
        v_mov_b32 v44, 0
        v_mov_b32 v45, 1
        v_mov_b32 v46, 1.0
        ds_write_b32 v44, v46 offset:{SCALE}
        ds_write_b32 v44, v46 offset:{SCALE+4}
        ds_write_b32 v44, v46 offset:{SCALE+8}
        ds_write_b32 v44, v46 offset:{SCALE+12}
        ds_write_b32 v44, v45 offset:{SCRDY}
        s_waitcnt lgkmcnt(0)
        s_barrier
        s_branch L_hend
        """)
    HST = int(opt.get("hstop", 0))
    if opt.get("hidle"): idle_end()
    A(f"""
    s_setprio {BP}
    s_lshr_b32 s8, s2, 3
    s_and_b32 s9, s8, 3
    s_lshl_b32 s9, s9, 1
    s_add_u32 s9, s9, 1
    s_and_b32 s10, s2, 7
    s_mul_i32 s8, s8, 7
    s_add_u32 s8, s8, s10
    s_cmp_gt_u32 s10, s9
    s_cselect_b32 s11, 1, 0
    s_sub_u32 s8, s8, s11
    s_lshr_b32 s76, s8, 3
    s_and_b32 s77, s8, 7
    s_cmp_lt_u32 s8, 216
    s_cselect_b32 s75, 1, 0
    s_cmp_eq_u32 s10, s9
    s_cselect_b32 s75, 0, s75
    """)
    if opt.get("noffn"): A("s_mov_b32 s75, 0")
    blk("s72", "s66", "s67", "s68")
    blk("s77", "s65", "s69", "s70")
    A(f"""
    s_mul_i32 s8, s4, 163840
    s_add_u32 s8, s8, s66
    s_add_u32 s48, s24, s8
    s_addc_u32 s49, s25, 0
    s_and_b32 s49, s49, 0xffff
    s_sub_u32 s50, 5242880, s8
    s_mov_b32 s51, 0x20000
    v_mul_u32_u24 v46, 2560, v{vG}
    v_lshlrev_b32 v47, 4, v{vC}
    v_add_u32 v46, v46, v47
    s_mul_i32 s8, s71, {32*1280}
    v_add_u32 v46, s8, v46
    v_mov_b32 v47, 0x7ff00000
    v_cmp_gt_u32 vcc, s67, v{vC}
    v_cndmask_b32 v46, v47, v46, vcc
    s_lshl_b32 s9, s71, 13
    s_add_u32 s9, s9, {WOL}
    """)
    WOM = opt.get("wom", "dma"); HP = int(opt.get("hp", 0))
    for i in range(8 if HST != 1 else 0):
        t, s_ = i >> 1, i & 1
        if WOM == "dma":
            A(f"s_add_u32 m0, s9, {i*1024}")
            A(f"s_mov_b32 s64, {(8*t+s_)*1280}")
            if HP and i >= HP: A(f"s_waitcnt vmcnt({HP-1})")
            A(f"buffer_load_dwordx4 v46, s[48:51], s64 offen {WF} lds")
        elif WOM == "dmax":
            A("s_mov_b32 exec_lo, 0x03ff03ff"); A("s_mov_b32 exec_hi, 0x03ff03ff")
            A(f"s_add_u32 m0, s9, {i*1024}")
            A(f"s_mov_b32 s64, {(8*t+s_)*1280}")
            A(f"buffer_load_dwordx4 v46, s[48:51], s64 offen {WF} lds")
            A("s_mov_b64 exec, -1")
        else:
            A(f"s_mov_b32 s64, {(8*t+s_)*1280}")
            A(f"buffer_load_dwordx4 {v4(192+4*i)}, v46, s[48:51], s64 offen {WF}")
    W1r = 96; W2r = 120
    A("s_cmp_eq_u32 s75, 1"); A("s_cbranch_scc0 L_nobulk")
    A(f"""
    s_and_b32 s8, s77, 1
    s_cmp_eq_u32 s8, 0
    s_cselect_b32 s60, s28, s30
    s_cselect_b32 s61, s29, s31
    s_lshl_b32 s8, s76, 7
    s_add_u32 s60, s60, s8
    s_addc_u32 s61, s61, 0
    s_and_b32 s61, s61, 0xffff
    s_sub_u32 s62, {640*3456}, s8
    s_mov_b32 s63, 0x20000
    s_lshr_b32 s8, s77, 1
    s_mul_i32 s8, s8, 160
    s_mul_i32 s9, s71, 40
    s_add_u32 s8, s8, s9
    v_mul_u32_u24 v44, 10, v{vG}
    v_add_u32 v44, s8, v44
    v_lshlrev_b32 v41, 1, v44
    v_lshrrev_b32 v45, 3, v{vC}
    v_add_u32 v45, v44, v45
    v_mul_u32_u24 v45, 3456, v45
    v_and_b32 v47, 7, v{vC}
    v_lshlrev_b32 v47, 4, v47
    v_add_u32 v45, v45, v47
    """)
    for i in range(5):
        A(f"s_mov_b32 s64, {2*i*3456}")
        if HP: A(f"s_waitcnt vmcnt({HP-1})")
        A(f"buffer_load_dwordx4 {v4(W1r+4*i)}, v45, s[60:63], s64 offen {WF}")
    A(f"""
    s_lshl_b32 s8, s76, 6
    s_lshl_b32 s9, s71, 4
    s_add_u32 s8, s8, s9
    s_mul_i32 s8, s8, 1280
    s_add_u32 s8, s8, s65
    s_add_u32 s60, s32, s8
    s_addc_u32 s61, s33, 0
    s_and_b32 s61, s61, 0xffff
    s_sub_u32 s62, {1728*1280}, s8
    s_mov_b32 s63, 0x20000
    v_mul_u32_u24 v46, 2560, v{vG}
    v_lshlrev_b32 v47, 4, v{vC}
    v_add_u32 v46, v46, v47
    v_mov_b32 v47, 0x7ff00000
    v_cmp_gt_u32 vcc, s69, v{vC}
    v_cndmask_b32 v46, v47, v46, vcc
    """)
    for ts in range(4):
        A(f"s_mov_b32 s64, {(8*(ts>>1)+(ts&1))*1280}")
        if HP: A(f"s_waitcnt vmcnt({HP-1})")
        A(f"buffer_load_dwordx4 {v4(W2r+4*ts)}, v46, s[60:63], s64 offen {WF}")
    A("L_nobulk:")
    A("s_waitcnt vmcnt(0)")
    if WOM == "reg" and HST != 1:
        A(f"""
        s_lshl_b32 s9, s71, 13
        s_add_u32 s9, s9, {WOL}
        v_lshlrev_b32 v45, 4, v1
        v_add_u32 v45, s9, v45
        """)
        for i in range(8): A(f"ds_write_b128 v45, {v4(192+4*i)} offset:{1024*i}")
    A(f"""
    v_mul_u32_u24 v44, 20, v1
    s_mul_i32 s8, s71, 1280
    s_add_u32 s8, s8, {XL}
    v_add_u32 v45, s8, v44
    v_add_u32 v44, {GWL}, v44
    ds_read2_b32 v[36:37], v45 offset0:0 offset1:1
    ds_read2_b32 v[38:39], v45 offset0:2 offset1:3
    ds_read_b32 v40, v45 offset:16
    ds_read2_b32 v[48:49], v44 offset0:0 offset1:1
    ds_read2_b32 v[50:51], v44 offset0:2 offset1:3
    ds_read_b32 v52, v44 offset:16
    s_waitcnt lgkmcnt(0)
    """)
    A("v_dot2_f32_bf16 v33, v36, v48, 0")
    for t in range(1, 5): A(f"v_dot2_f32_bf16 v33, v{36+t}, v{48+t}, v33")
    wavereduce("v_add_f32", 33)
    A(f"""
    v_mul_f32 v33, {f2u(-LOG2E):#x}, v33
    v_exp_f32 v33, v33
    v_add_f32 v33, 1.0, v33
    v_rcp_f32 v33, v33
    v_sub_f32 v32, 1.0, v33
    s_setprio {int(opt.get("fp", 3))}
    """)
    hbarrier(3, 2)
    stamp(4)
    if HST in (1, 2): idle_end()
    A("s_cmp_eq_u32 s75, 1"); A("s_cbranch_scc0 L_noffn")
    FM = opt.get("fm", "all")
    if FM == "loads": A("s_branch L_noffn")
    for b in range(4): A(f"v_add_u32 v{100+16+b}, {XL + 1280*b}, v41")
    for b in range(4):
        A(f"ds_read2_b32 v[{XQ+6*b}:{XQ+6*b+1}], v{116+b} offset0:0 offset1:1")
        A(f"ds_read2_b32 v[{XQ+6*b+2}:{XQ+6*b+3}], v{116+b} offset0:2 offset1:3")
        A(f"ds_read_b32 v{XQ+6*b+4}, v{116+b} offset:16")
    A("s_waitcnt lgkmcnt(0)")
    DF = [4, 48, 52, 80]
    n = 0
    for i in range(5):
        for b in range(4):
            aset = 8 + 4 * (n & 1)
            for r in range(4): A(f"v_perm_b32 v{aset+r}, v{xq(b,i)}, v{xq(b,i)}, v{SELX+r}")
            mfma(DF[b], aset, W1r + 4*i, "0" if i == 0 else v4(DF[b]))
            n += 1
    A(f"""
    s_lshl_b32 s8, s71, 11
    v_lshrrev_b32 v45, 1, v{vG}
    v_lshlrev_b32 v45, 8, v45
    v_and_b32 v46, 7, v{vC}
    v_lshlrev_b32 v46, 5, v46
    v_add_u32 v45, v45, v46
    v_and_b32 v46, 1, v{vG}
    v_lshlrev_b32 v46, 4, v46
    v_add_u32 v45, v45, v46
    v_add_u32 v45, s8, v45
    s_mov_b32 exec_lo, 0x00ff00ff
    s_mov_b32 exec_hi, 0xff00ff00
    """)
    for b in range(4): A(f"ds_write_b128 v45, {v4(DF[b])} offset:{GP+512*b}")
    A("s_mov_b64 exec, -1")
    hbarrier(4)
    A(f"""
    s_lshl_b32 s8, s71, 9
    v_lshlrev_b32 v45, 4, v{vC}
    v_add_u32 v45, s8, v45
    """)
    for w in range(4):
        for rho in range(2): A(f"ds_read_b128 {v4(56+8*w+4*rho)}, v45 offset:{GP+w*2048+rho*256}")
    A(f"""
    s_lshl_b32 s10, s76, 3
    s_add_u32 s10, s10, s77
    s_lshl_b32 s10, s10, 2
    s_add_u32 s10, s10, s71
    s_lshl_b32 s10, s10, 8
    s_add_u32 s10, s10, {FX}
    v_lshlrev_b32 v46, 4, v{vC}
    v_add_u32 v46, s10, v46
    s_waitcnt lgkmcnt(0)
    """)
    sum_quads([56+4*k for k in range(8)])
    tag4(56)
    A(f"""
    s_mov_b64 exec, 0xffff
    global_store_dwordx4 v46, v[56:59], s[40:41] sc1
    s_mov_b64 exec, -1
    {"s_branch L_noffn" if FM == "pub1" else ""}
    s_lshl_b32 s10, s76, 5
    s_add_u32 s10, s10, s71
    s_lshl_b32 s10, s10, 8
    s_add_u32 s10, s10, {FX}
    v_lshlrev_b32 v46, 11, v{vG}
    v_lshlrev_b32 v47, 4, v{vC}
    v_add_u32 v46, v46, v47
    v_add_u32 v46, s10, v46
    s_mov_b32 s73, {SPIN}
    L_fpoll:
    s_sleep {FSL}
    global_load_dwordx4 v[60:63], v46, s[40:41] offset:1024 sc1
    global_load_dwordx4 v[56:59], v46, s[40:41] sc1
    s_waitcnt vmcnt(0)
    """)
    chk4([56, 60], "L_fok")
    A(f"""
    s_sub_u32 s73, s73, 1
    s_cbranch_scc0 L_fpoll
    L_fok:
    """)
    rows_reduce(range(56, 64))
    for k in range(4): A(f"v_mul_f32 v{64+k}, {f2u(-LOG2E):#x}, v{56+k}")
    for k in range(4): A(f"v_exp_f32 v{64+k}, v{64+k}")
    for k in range(4): A(f"v_add_f32 v{64+k}, 1.0, v{64+k}")
    for k in range(4): A(f"v_rcp_f32 v{64+k}, v{64+k}")
    for k in range(4): A(f"v_mul_f32 v{56+k}, v{56+k}, v{64+k}")
    for k in range(4): A(f"v_mul_f32 v{56+k}, v{56+k}, v{60+k}")
    A(f"""
    v_cvt_pk_bf16_f32 v56, v56, v57
    v_cvt_pk_bf16_f32 v57, v58, v59
    s_lshl_b32 s8, s71, 7
    v_lshlrev_b32 v45, 3, v{vC}
    v_add_u32 v45, s8, v45
    s_mov_b64 exec, 0xffff
    ds_write_b64 v45, v[56:57] offset:{HB}
    s_mov_b64 exec, -1
    """)
    if FM == "gat": A("s_branch L_noffn")
    hbarrier(5)
    A(f"""
    v_lshrrev_b32 v45, 3, v{vC}
    v_lshlrev_b32 v45, 7, v45
    v_lshlrev_b32 v46, 2, v{vG}
    v_add_u32 v45, v45, v46
    s_lshl_b32 s8, s71, 5
    v_add_u32 v45, s8, v45
    ds_read_b32 v56, v45 offset:{HB}
    ds_read_b32 v57, v45 offset:{HB+16}
    ds_read_b32 v58, v45 offset:{HB+256}
    ds_read_b32 v59, v45 offset:{HB+256+16}
    s_waitcnt lgkmcnt(0)
    """)
    D2 = [4, 52]
    n = 0
    for ts in range(4):
        for p in range(2):
            aset = 8 + 4 * (n & 1)
            perms(56 + 2*p + (ts >> 1), ts & 1, aset)
            mfma(D2[p], aset, W2r + 4*ts, "0" if ts == 0 else v4(D2[p]))
            n += 1
    A(f"""
    s_lshl_b32 s8, s71, 11
    s_add_u32 s8, s8, {YP2}
    v_lshlrev_b32 v45, 4, v1
    v_add_u32 v45, s8, v45
    ds_write_b128 v45, {v4(D2[0])}
    ds_write_b128 v45, {v4(D2[1])} offset:1024
    """)
    hbarrier(6)
    A(f"""
    s_lshr_b32 s8, s71, 1
    s_lshl_b32 s8, s8, 10
    s_and_b32 s9, s71, 1
    s_lshl_b32 s9, s9, 9
    s_add_u32 s8, s8, s9
    s_add_u32 s8, s8, {YP2}
    v_and_b32 v45, 1, v1
    v_lshlrev_b32 v45, 8, v45
    v_bfe_u32 v46, v1, 1, 4
    v_lshlrev_b32 v46, 4, v46
    v_add_u32 v45, v45, v46
    v_add_u32 v45, s8, v45
    """)
    for w in range(4): A(f"ds_read_b128 {v4(56+4*w)}, v45 offset:{w*2048}")
    A(f"""
    s_lshl_b32 s10, s77, 2
    s_add_u32 s10, s10, s71
    s_mul_i32 s10, s10, 27
    s_add_u32 s10, s10, s76
    s_lshl_b32 s10, s10, 9
    s_add_u32 s10, s10, {FY}
    v_lshlrev_b32 v46, 4, v1
    v_add_u32 v46, s10, v46
    s_waitcnt lgkmcnt(0)
    """)
    sum_quads([56, 60, 64, 68])
    for k in range(4): A(f"v_mul_f32 v{56+k}, v{56+k}, v32")
    tag4(56)
    A(f"""
    s_mov_b32 exec_lo, s70
    s_mov_b32 exec_hi, 0
    global_store_dwordx4 v46, v[56:59], s[40:41] sc1
    s_mov_b64 exec, -1
    """)
    A("L_noffn:")
    stamp(5)
    if opt.get("lowprio"): A("s_setprio 0")
    A("; ----- wo fragments LDS -> registers, control loop, softmax statistics exchange -----")
    WOr = 128
    A(f"""
    v_lshlrev_b32 v45, 4, v1
    v_add_u32 v45, {WOL}, v45
    """)
    for i in range(32):
        A(f"ds_read_b128 {v4(WOr+4*i)}, v45 offset:{1024*i}")
        if i % 8 == 7: A("s_waitcnt lgkmcnt(0)")
    A(f"""
    s_bfe_u32 s9, s2, 0x20003
    s_lshl_b32 s9, s9, 1
    s_add_u32 s9, s9, 1
    s_and_b32 s8, s2, 7
    s_cmp_eq_u32 s8, s9
    s_cselect_b32 s75, 1, 0
    s_lshr_b32 s76, s2, 5
    s_bfe_u32 s77, s2, 0x20003
    """)
    blk("s76", "s65", "s69", "s70")
    FSUM = 36
    M20 = 0x000fffff000fffff
    A("s_cmp_eq_u32 s75, 1"); A("s_cbranch_scc0 L_nocol")
    if not opt.get("noffn") and opt.get("fm", "all") == "all":
        A(f"""
        s_lshl_b32 s8, s76, 2
        s_add_u32 s8, s8, s77
        s_mul_i32 s8, s8, 27
        s_add_u32 s8, s8, s71
        s_lshl_b32 s8, s8, 9
        s_add_u32 s8, s8, {FY}
        v_lshrrev_b32 v46, 5, v1
        v_lshlrev_b32 v46, 11, v46
        v_and_b32 v47, 31, v1
        v_lshlrev_b32 v47, 4, v47
        v_add_u32 v46, v46, v47
        v_add_u32 v46, s8, v46
        s_mov_b32 s73, {SPIN}
        L_cpoll:
        v_mov_b32 v48, v46
        """)
        for k in range(4):
            if k < 3: A(f"s_mov_b32 exec_lo, s70"); A("s_mov_b32 exec_hi, s70")
            else:
                A("s_cmp_lt_u32 s71, 3"); A("s_cbranch_scc0 L_cskip"); A("s_mov_b32 exec_lo, s70"); A("s_mov_b32 exec_hi, 0")
            A(f"global_load_dwordx4 {v4(56+4*k)}, v48, s[40:41] sc1")
            A("s_mov_b64 exec, -1")
            if k == 3: A("L_cskip:")
            if k < 3: A(f"v_add_u32 v48, {8*512}, v48")
        A("s_waitcnt vmcnt(0)")
        A(f"""
        v_and_b32 v44, 31, v1
        s_lshl_b32 s8, s69, 1
        v_cmp_le_u32 vcc, s8, v44
        """)
        for k in range(4):
            for r in range(4): A(f"v_cndmask_b32 v{56+4*k+r}, v{56+4*k+r}, v{TG+r}, vcc")
        A(f"""
        s_cmp_lt_u32 s71, 3
        s_cselect_b32 s8, 0xffffffff, 0
        s_mov_b32 s9, 0
        s_not_b64 vcc, s[8:9]
        """)
        for r in range(4): A(f"v_cndmask_b32 v{68+r}, v{68+r}, v{TG+r}, vcc")
        chk4([56, 60, 64, 68], "L_cok")
        A(f"""
        s_sleep 64
        s_sub_u32 s73, s73, 1
        s_cbranch_scc0 L_cpoll
        L_cok:
        """)
        sum_quads([56, 60, 64, 68])
        for r in range(4): A(f"v_mov_b32 v{60+r}, v{56+r}")
        for r in range(4): A(f"v_permlane32_swap_b32 v{56+r}, v{60+r}")
        for r in range(4): A(f"v_add_f32 v{56+r}, v{56+r}, v{60+r}")
        A(f"""
        s_lshl_b32 s8, s71, 9
        v_lshlrev_b32 v45, 4, v1
        v_add_u32 v45, s8, v45
        s_mov_b32 exec_hi, 0
        ds_write_b128 v45, v[56:59] offset:{FS}
        s_mov_b32 exec_hi, -1
        """)
        hbarrier(4)
        A(f"v_lshlrev_b32 v45, 4, v1")
        A("s_mov_b32 exec_hi, 0")
        for w in range(4): A(f"ds_read_b128 {v4(56+4*w)}, v45 offset:{FS+512*w}")
        A("s_mov_b32 exec_hi, -1")
        A("s_waitcnt lgkmcnt(0)")
        sum_quads([56, 60, 64, 68])
        for r in range(4): A(f"v_mov_b32 v{FSUM+r}, v{56+r}")
    else:
        for r in range(4): A(f"v_mov_b32 v{FSUM+r}, 0")
    A("L_nocol:")
    if CTL:
        A("s_cmp_eq_u32 s71, 1"); A("s_cbranch_scc0 L_noctl")
        A(f"""
        s_lshl_b32 s8, s2, 7
        s_add_u32 s8, s8, {PF}
        v_mov_b32 v46, s8
        v_add_u32 v47, 1, v1
        v_xor_b32 v47, s2, v47
        v_lshlrev_b32 v47, 7, v47
        v_add_u32 v47, {PF}, v47
        v_mov_b32 v44, 0
        v_mov_b32 v48, s74
        s_mov_b32 s11, 0
        L_ctl:
        s_mov_b64 exec, 1
        s_add_u32 s11, s11, 1
        s_lshl_b32 s9, s11, 2
        s_sub_u32 s9, s9, {int(opt.get("ckq", 1))}
        s_mov_b32 s73, {SPIN}
        L_ctl_w:
        ds_read_b32 v45, v44 offset:{CKC}
        s_waitcnt lgkmcnt(0)
        v_readfirstlane_b32 s8, v45
        s_cmp_ge_u32 s8, s9
        s_cbranch_scc1 L_ctl_go
        s_sleep 4
        s_sub_u32 s73, s73, 1
        s_cbranch_scc0 L_ctl_w
        L_ctl_go:
        global_store_dword v46, v48, s[40:41] sc1
        s_mov_b64 exec, {CMASK:#x}
        global_load_dword v45, v47, s[40:41] sc1
        s_waitcnt vmcnt(0)
        v_cmp_eq_u32 vcc, s74, v45
        s_bcnt1_i32_b64 s8, vcc
        s_cmp_ge_u32 s8, {CT2 if L3 else 99}
        s_cselect_b32 s9, 1, 0
        s_cmp_ge_u32 s8, {CTHR}
        s_cselect_b32 s8, 1, 0
        s_add_u32 s8, s8, s9
        s_mov_b64 exec, -1
        v_mov_b32 v45, s8
        ds_write_b32 v44, v45 offset:{MODE}
        v_add_u32 v46, 4, v46
        v_add_u32 v47, 4, v47
        s_cmp_lt_u32 s11, {len(CKS)}
        s_cbranch_scc1 L_ctl
        s_mov_b64 exec, -1
        s_branch L_B2
        L_noctl:
        """)
    lds_spin(CNTK, "ge", 8, 4)
    A("s_cmp_eq_u32 s71, 0"); A("s_cbranch_scc0 L_nostat")
    A(f"""
    v_and_b32 v44, 3, v1
    v_lshlrev_b32 v44, 3, v44
    ds_read_b64 v[46:47], v44 offset:{ST}
    s_waitcnt lgkmcnt(0)
    v_mov_b32 v48, v46
    v_max_f32_dpp v48, v48, v48 quad_perm:[2,3,0,1] row_mask:0xf bank_mask:0xf
    v_max_f32_dpp v48, v48, v48 quad_perm:[1,0,3,2] row_mask:0xf bank_mask:0xf
    v_sub_f32 v49, v46, v48
    v_exp_f32 v49, v49
    v_mul_f32 v49, v49, v47
    v_add_f32_dpp v49, v49, v49 quad_perm:[2,3,0,1] row_mask:0xf bank_mask:0xf
    v_add_f32_dpp v49, v49, v49 quad_perm:[1,0,3,2] row_mask:0xf bank_mask:0xf
    s_lshl_b32 s8, s2, 7
    s_add_u32 s8, s8, {SX}
    v_mov_b32 v44, s8
    v_mov_b32 v56, v48
    v_mov_b32 v57, s74
    v_mov_b32 v58, v49
    v_mov_b32 v59, s74
    s_mov_b64 exec, 1
    global_store_dwordx4 v44, v[56:59], s[40:41] sc1
    s_xor_b32 s8, s2, {PX_}
    s_lshl_b32 s8, s8, 7
    s_add_u32 s8, s8, {SX}
    v_mov_b32 v44, s8
    s_mov_b32 s73, {SPIN}
    L_pspin:
    global_load_dwordx4 v[60:63], v44, s[40:41] sc1
    s_waitcnt vmcnt(0)
    """)
    check_tags([61, 63], "L_pok")
    A(f"""
    s_sleep 32
    s_sub_u32 s73, s73, 1
    s_cbranch_scc0 L_pspin
    L_pok:
    v_readfirstlane_b32 s8, v60
    v_readfirstlane_b32 s9, v62
    s_mov_b64 exec, -1
    v_mov_b32 v60, s8
    v_mov_b32 v62, s9
    v_max_f32 v52, v48, v60
    v_sub_f32 v53, v48, v52
    v_sub_f32 v54, v60, v52
    v_exp_f32 v53, v53
    v_exp_f32 v54, v54
    v_mul_f32 v53, v53, v49
    v_fma_f32 v53, v54, v62, v53
    v_rcp_f32 v53, v53
    v_sub_f32 v54, v46, v52
    v_exp_f32 v54, v54
    v_mul_f32 v54, v54, v53
    v_and_b32 v44, 3, v1
    v_lshlrev_b32 v44, 2, v44
    v_mov_b32 v45, 1
    v_mov_b32 v55, 0
    s_mov_b64 exec, 15
    ds_write_b32 v44, v54 offset:{SCALE}
    s_mov_b64 exec, 1
    ds_write_b32 v55, v45 offset:{SCRDY}
    s_mov_b64 exec, -1
    L_nostat:
    """)
    A("; ----- tail: gather o, project, publish y, finalise -----")
    A("L_B2:")
    if opt.get("lowprio"): A("s_setprio 3")
    if HST == 3: A("s_waitcnt lgkmcnt(0)"); A("s_barrier"); A("s_branch L_hend")
    A(f"""
    s_lshl_b32 s10, s71, 6
    s_lshl_b32 s9, s4, 1
    s_add_u32 s10, s10, s9
    s_lshl_b32 s10, s10, 9
    s_add_u32 s10, s10, {OX}
    v_lshlrev_b32 v46, 4, v1
    v_add_u32 v46, s10, v46
    v_lshlrev_b32 v49, 9, v1
    v_add_u32 v49, s10, v49
    v_and_b32 v47, 1, v1
    v_lshlrev_b32 v47, 7, v47
    v_bfe_u32 v48, v1, 1, 4
    v_lshlrev_b32 v48, 2, v48
    v_add_u32 v47, v47, v48
    s_lshl_b32 s8, s71, 8
    v_add_u32 v47, s8, v47
    v_add_u32 v47, {OB}, v47
    v_lshlrev_b32 v48, 6, v{vG}
    v_add_u32 v48, s8, v48
    v_lshlrev_b32 v41, 5, v{vC}
    v_lshlrev_b32 v42, 4, v{vG}
    v_add_u32 v41, v41, v42
    s_lshl_b32 s8, s71, 9
    v_add_u32 v41, s8, v41
    v_lshlrev_b32 v42, 4, v1
    v_add_u32 v42, s8, v42
    s_lshl_b32 s10, s72, 2
    s_add_u32 s10, s10, s71
    s_lshl_b32 s10, s10, 5
    s_add_u32 s10, s10, s4
    s_lshl_b32 s10, s10, 9
    s_add_u32 s10, s10, {YX}
    v_lshlrev_b32 v43, 5, v{vC}
    v_lshlrev_b32 v44, 4, v{vG}
    v_add_u32 v43, v43, v44
    v_add_u32 v43, s10, v43
    s_cmp_eq_u32 s67, 16
    s_cselect_b32 s43, -1, 0x00ff00ff
    s_waitcnt lgkmcnt(0)
    s_barrier
    """)
    stamp(6)
    if DUAL:
        A(f"""
        v_add_u32 v49, {(OXA - OX) & 0xffffffff:#x}, v46
        s_mov_b32 s73, {SPIN}
        L_opoll:
        global_load_dwordx4 v[56:59], v49, s[40:41] sc1
        s_waitcnt vmcnt(0)
        """)
        chk4([56], "L_ook")
        A(f"""
        s_and_b32 s8, s73, 3
        s_cmp_eq_u32 s8, 0
        s_cbranch_scc0 L_onext
        global_load_dwordx4 v[56:59], v46, s[40:41] sc1
        s_waitcnt vmcnt(0)
        """)
        chk4([56], "L_ook")
        A(f"""
        L_onext:
        s_sub_u32 s73, s73, 1
        s_cbranch_scc0 L_opoll
        L_ook:
        """)
    elif opt.get("op2"):
        A(f"""
        s_mov_b32 s73, {SPIN}
        global_load_dwordx4 v[84:87], v46, s[40:41] sc1
        s_sleep {int(opt.get("op2"))}
        L_opoll:
        global_load_dwordx4 v[88:91], v46, s[40:41] sc1
        s_waitcnt vmcnt(1)
        """)
        chk4([84], "L_ookA")
        A(f"""
        global_load_dwordx4 v[84:87], v46, s[40:41] sc1
        s_waitcnt vmcnt(1)
        """)
        chk4([88], "L_ookB")
        A(f"""
        s_sub_u32 s73, s73, 1
        s_cbranch_scc0 L_opoll
        L_ookA:
        """)
        for r in range(4): A(f"v_mov_b32 v{56+r}, v{84+r}")
        A("s_branch L_ook")
        A("L_ookB:")
        for r in range(4): A(f"v_mov_b32 v{56+r}, v{88+r}")
        A("L_ook:")
    else:
        A(f"""
        s_mov_b32 s73, {SPIN}
        L_opoll:
        global_load_dwordx4 v[56:59], v46, s[40:41] sc1
        s_waitcnt vmcnt(0)
        """)
        chk4([56], "L_ook")
        A(f"""
        {"s_sleep " + str(OSL) if OSL else ""}
        s_sub_u32 s73, s73, 1
        s_cbranch_scc0 L_opoll
        L_ook:
        """)
    for r in range(4): A(f"v_mov_b32 v{60+r}, v{56+r}")
    for r in range(4): A(f"v_permlane32_swap_b32 v{56+r}, v{60+r}")
    for r in range(4): A(f"v_add_f32 v{56+r}, v{56+r}, v{60+r}")
    A(f"""
    v_cvt_pk_bf16_f32 v56, v56, v57
    v_cvt_pk_bf16_f32 v57, v58, v59
    s_mov_b32 exec_hi, 0
    ds_write2_b32 v47, v56, v57 offset0:{0} offset1:{16}
    s_mov_b32 exec_hi, -1
    """.replace("v47, v56, v57 offset0:0 offset1:16", "v47, v56, v57 offset0:0 offset1:16"))
    XO = 64
    for k in range(4): A(f"ds_read_b128 {v4(XO+4*k)}, v48 offset:{OB+16*k}")
    if stamps: A("s_waitcnt lgkmcnt(0)")
    stamp(7)
    if not stamps: A("s_waitcnt lgkmcnt(3)")
    perms(XO, 0, 8)
    for i in range(32):
        if i + 1 < 32:
            if (i + 1) % 8 == 0 and not stamps: A(f"s_waitcnt lgkmcnt({3 - (i+1)//8})")
            perms(XO + (i+1)//2, (i+1) & 1, 8 + 4*((i+1) & 1))
        mfma(4, 8 + 4*(i & 1), WOr + 4*i, "0" if i == 0 else "v[4:7]")
    for k in range(4): A(f"v_mul_f32 v{4+k}, v{4+k}, v33")
    tag4(4)
    A(f"""
    s_mov_b32 exec_lo, s43
    s_mov_b32 exec_hi, 0
    global_store_dwordx4 v43, v[4:7], s[40:41] sc1
    s_mov_b64 exec, -1
    {"s_branch L_hend" if HST == 4 else ""}
    s_cmp_eq_u32 s75, 1
    s_cbranch_scc0 L_hend
    s_lshl_b32 s10, s76, 2
    s_add_u32 s10, s10, s77
    s_lshl_b32 s10, s10, 5
    s_lshl_b32 s9, s71, 3
    s_add_u32 s10, s10, s9
    s_lshl_b32 s10, s10, 9
    s_add_u32 s10, s10, {YX}
    v_lshrrev_b32 v46, 5, v1
    v_lshlrev_b32 v46, 9, v46
    v_and_b32 v47, 31, v1
    v_lshlrev_b32 v47, 4, v47
    v_add_u32 v46, v46, v47
    v_add_u32 v46, s10, v46
    v_add_u32 v47, 2048, v46
    """)
    ya = [(46, 0), (46, 1024), (47, 0), (47, 1024)]
    A(f"""
    s_mov_b32 s73, {SPIN}
    s_mov_b32 s52, s70
    s_mov_b32 s53, s70
    s_mov_b64 s[54:55], s[52:53]
    s_mov_b64 s[56:57], s[52:53]
    s_mov_b64 s[58:59], s[52:53]
    s_mov_b32 s12, 0x0c0c0400
    s_mov_b32 s13, 0x04000c0c
    L_ypoll:
    """)
    for q, (ar, off) in enumerate(ya):
        A(f"s_mov_b64 exec, s[{52+2*q}:{53+2*q}]")
        A(f"s_cbranch_execz L_ysk{q}")
        A(f"global_load_dwordx4 {v4(56+4*q)}, v{ar}, s[40:41] offset:{off} sc1")
        A(f"L_ysk{q}:")
    A("s_mov_b32 exec_lo, s70"); A("s_mov_b32 exec_hi, s70")
    A("s_waitcnt vmcnt(0)")
    for q in range(4):
        d = 56 + 4*q
        A(f"v_perm_b32 v44, v{d+1}, v{d}, s12")
        A(f"v_perm_b32 v45, v{d+3}, v{d+2}, s13")
        A(f"v_or_b32 v44, v44, v45")
        A(f"v_cmp_ne_u32 s[{52+2*q}:{53+2*q}], s74, v44")
    A(f"""
    s_or_b64 s[8:9], s[52:53], s[54:55]
    s_or_b64 s[10:11], s[56:57], s[58:59]
    s_or_b64 s[8:9], s[8:9], s[10:11]
    s_cbranch_scc0 L_yok
    {"s_sleep " + str(int(opt.get("ysl", 1))) if int(opt.get("ysl", 1)) else ""}
    s_sub_u32 s73, s73, 1
    s_cbranch_scc0 L_ypoll
    L_yok:
    s_mov_b64 exec, -1
    """)
    sum_quads([56, 60, 64, 68])
    for r in range(4): A(f"v_mov_b32 v{60+r}, v{56+r}")
    for r in range(4): A(f"v_permlane32_swap_b32 v{56+r}, v{60+r}")
    for r in range(4): A(f"v_add_f32 v{56+r}, v{56+r}, v{60+r}")
    A(f"""
    s_lshl_b32 s8, s71, 9
    v_lshlrev_b32 v45, 4, v1
    v_add_u32 v45, s8, v45
    s_mov_b32 exec_hi, 0
    ds_write_b128 v45, v[56:59] offset:{FS}
    s_mov_b32 exec_hi, -1
    s_waitcnt lgkmcnt(0)
    s_barrier
    s_cmp_eq_u32 s71, 0
    s_cbranch_scc0 L_hend
    v_lshlrev_b32 v45, 4, v1
    s_mov_b32 exec_lo, s70
    s_mov_b32 exec_hi, 0
    """)
    for w in range(4): A(f"ds_read_b128 {v4(56+4*w)}, v45 offset:{FS+512*w}")
    A(f"""
    s_mul_i32 s8, s77, 1280
    s_add_u32 s8, s8, s65
    v_lshlrev_b32 v44, 3, v1
    v_add_u32 v44, s8, v44
    s_waitcnt lgkmcnt(0)
    """)
    sum_quads([56, 60, 64, 68])
    for k in (0, 2): pk(56+k, 56+k, FSUM+k)
    A(f"""
    v_cvt_pk_bf16_f32 v56, v56, v57
    v_cvt_pk_bf16_f32 v57, v58, v59
    global_store_dwordx2 v44, v[56:57], s[36:37] {opt.get("outf", "")}
    s_mov_b64 exec, -1
    """)
    A("L_hend:")
    stamp(8)
    store_stamps(9)
    A("L_end:")
    A("s_endpgm")
    body = A.finalize()
    body += f""".section .rodata,"a"
.p2align 6
.amdhsa_kernel {NAME}_kernel
  .amdhsa_next_free_vgpr 256
  .amdhsa_next_free_sgpr 102
  .amdhsa_accum_offset 256
  .amdhsa_group_segment_fixed_size 0
  .amdhsa_kernarg_size 104
  .amdhsa_user_sgpr_count 2
  .amdhsa_user_sgpr_kernarg_segment_ptr 1
  .amdhsa_system_sgpr_workgroup_id_x 1
.end_amdhsa_kernel
"""
    return body

if __name__ == "__main__":
    out = sys.argv[1] if len(sys.argv) > 1 else f"cdna_kernels/{NAME}.s"
    opt = {}
    for a in sys.argv[2:]:
        k, v = a.split("=")
        opt[k] = {"1": True, "0": False}.get(v, v) if k in ("stamps", "fine", "noffn") else v
    open(out, "w").write(gen(opt))
    print("wrote", out)
```
